```python
import torch

def _softmax(x, axis=-1):
    return torch.softmax(x, dim=axis)
def _gelu(x):
    return torch.nn.functional.gelu(x, approximate="tanh")
def _silu(x):
    return torch.nn.functional.silu(x)
def _sigmoid(x):
    return torch.sigmoid(x)
def _layernorm(x, axis=-1, eps=1e-5):
    m = x.mean(dim=axis, keepdim=True)
    v = x.var(dim=axis, keepdim=True, unbiased=False)
    return (x - m) / torch.sqrt(v + eps)
def _scatter_add(tgt, idx, src, axis=0):
    return tgt.clone().index_add_(axis, idx, src)
def _segment_sum(src, seg, n):
    out = torch.zeros((n,) + src.shape[1:], dtype=src.dtype)
    return out.index_add_(0, seg, src)
def _pad(x, pw):
    flat = tuple(v for pair in reversed(pw) for v in pair)
    return torch.nn.functional.pad(x, flat)

kernel_name = 'standalone__weight_only_int_quip__prompt'

def setup_inputs():

    _w = (lambda a: (lambda t: t.to(torch.bfloat16) if t.is_floating_point() else t)(torch.as_tensor(a)))
    B, S, D, F = 1, 2048, 640, 1536
    G = -1 if -1 > 0 else D
    D = (D // G) * G
    ng = D // G
    bits = 8 if 8 > 0 else 4
    qmax = 1 << bits
    qw = torch.randint(0, qmax, (D, F)).to(torch.int32)
    U, _ = (lambda *_a, **_k: torch.linalg.qr(*[torch.as_tensor(_x).float() for _x in _a], **_k))((lambda *s: torch.randn(*s, dtype=torch.bfloat16) * 0.05)(D, D))
    V, _ = (lambda *_a, **_k: torch.linalg.qr(*[torch.as_tensor(_x).float() for _x in _a], **_k))((lambda *s: torch.randn(*s, dtype=torch.bfloat16) * 0.05)(F, F))
    return {
        "x": _w((lambda *s: torch.randn(*s, dtype=torch.bfloat16) * 0.05)(B, S, D)),
        "qw": _w(qw),
        "scales": _w(torch.abs((lambda *s: torch.randn(*s, dtype=torch.bfloat16) * 0.05)(ng, F)) * 0.02 + 0.005),
        "zeros": _w(torch.full((ng, F), qmax / 2.0, dtype=float)),
        "U": _w(U.to(float)),
        "V": _w(V.to(float)),
    }

def reference(x, qw, scales, zeros, U, V):
    B, S, D = x.shape
    ng, F = scales.shape
    G = D // ng
    s = (lambda x, n, axis: torch.repeat_interleave(x, n, dim=axis))(scales, G, axis=0)
    z = (lambda x, n, axis: torch.repeat_interleave(x, n, dim=axis))(zeros, G, axis=0)
    wq = ((lambda x, dt: x.to(dt))(qw, x.dtype) - z) * s
    xr = torch.einsum("bsd,de->bse", x, U)
    h  = torch.einsum("bse,ef->bsf", xr, wq)
    y  = torch.einsum("bsf,fg->bsg", h, V)
    return y
```

```python
import sys

HEADER = open('standalone__weight_only_int_quip__prompt.s.ref').read().split('; Override launch')[0]

XR_WS = 0
T_WS = 2621440
WS_BYTES = 268435456

class E:
    def __init__(self):
        self.l = []
    def __call__(self, s):
        for line in s.strip('\n').split('\n'):
            self.l.append('    ' + line.strip())
    def label(self, s):
        self.l.append(s + ':')
    def raw(self, s):
        self.l.append(s)
    def text(self):
        return '\n'.join(self.l) + '\n'

def srd(e, d, lo, nbytes):
    e(f"""s_mov_b32 s{d}, s{lo}
    s_and_b32 s{d+1}, s{lo+1}, 0xffff
    s_mov_b32 s{d+2}, {nbytes}
    s_mov_b32 s{d+3}, 0x00020000""")

T_S = 5
T_STAGE = 28672
T_QW = 0
T_V = 16384
T_ZS = T_S * T_STAGE
T_NST = 24
X_S = 4
X_STAGE = 32768
X_U = 0
X_X = 16384
X_NST = 10
P1_LDS = T_ZS + 12288

def dequant(e, R, NZ, SC, P, A):
    for i in range(8):
        e(f"v_cvt_f32_i32 v{R+i}, v{R+i}")
    for i in range(4):
        e(f"v_pk_add_f32 v[{R+2*i}:{R+2*i+1}], v[{R+2*i}:{R+2*i+1}], v[{NZ+2*i}:{NZ+2*i+1}]")
    for i in range(4):
        e(f"v_cvt_pk_bf16_f32 v{P+i}, v{R+2*i}, v{R+2*i+1}")
    for i in range(4):
        e(f"v_lshlrev_b32 v{R+2*i}, 16, v{P+i}")
        e(f"v_and_b32 v{R+2*i+1}, 0xffff0000, v{P+i}")
    for i in range(4):
        e(f"v_pk_mul_f32 v[{R+2*i}:{R+2*i+1}], v[{R+2*i}:{R+2*i+1}], v[{SC+2*i}:{SC+2*i+1}]")
    for i in range(4):
        e(f"v_cvt_pk_bf16_f32 v{A+i}, v{R+2*i}, v{R+2*i+1}")

def t_path(e, grp):
    L = f"T{grp}"
    n = 4 if grp == 0 else 3
    kh = grp
    e("s_and_b32 s50, s3, 3")
    e("""v_and_b32 v60, 15, v0          ; c
    v_lshrrev_b32 v61, 4, v0        ; q""")
    if grp == 0:
        e(f"""s_cmp_ge_u32 s3, 3
        s_cbranch_scc1 {L}_nozs_ld
        s_lshl_b32 s51, s3, 10
        v_lshlrev_b32 v62, 4, v0
        v_add_u32 v62, s51, v62
        buffer_load_dwordx4 v[64:67], v62, s[20:23], 0 offen
        buffer_load_dwordx4 v[68:71], v62, s[24:27], 0 offen""")
        e.label(f"{L}_nozs_ld")
        e("s_mov_b32 s52, 6144")
        for i in range(4):
            e(f"""v_add_u32 v62, {4*i}, v61
            v_mul_lo_u32 v63, v62, s52
            v_xor_b32 v62, v60, v62
            v_lshl_add_u32 v{1+i}, v62, 4, v63""")
            if i:
                e(f"v_subrev_u32 v{1+i}, {1024*i}, v{1+i}")
        e("""s_lshl_b32 s28, s6, 6
        s_lshl_b32 s51, s50, 4
        s_add_u32 s28, s28, s51
        s_mul_i32 s28, s28, 6144
        s_lshl_b32 s53, s50, 12""")
        e(f"s_add_u32 s53, s53, {T_QW}")
        sstride = 256
        srcsrd = "s[8:11]"
    else:
        e("s_mov_b32 s52, 3072")
        for j in range(3):
            e(f"""v_add_u32 v62, {64*j}, v0       ; ci
            v_mul_u32_u24 v63, 171, v62
            v_lshrrev_b32 v63, 11, v63     ; row'
            v_mul_u32_u24 v64, 12, v63
            v_sub_u32 v62, v62, v64        ; pos
            v_lshrrev_b32 v64, 3, v63
            v_and_b32 v64, 1, v64
            v_lshlrev_b32 v64, 1, v64      ; ((row>>3)&1)<<1
            v_xor_b32 v62, v62, v64        ; pos ^ (..<<1)
            v_mul_lo_u32 v63, v63, s52
            v_lshl_add_u32 v{1+j}, v62, 4, v63""")
            if j:
                e(f"v_subrev_u32 v{1+j}, {1024*j}, v{1+j}")
        e("""s_mul_i32 s28, s50, 49152
        s_mul_i32 s51, s7, 192
        s_add_u32 s28, s28, s51
        s_mul_i32 s53, s50, 3072""")
        e(f"s_add_u32 s53, s53, {T_V}")
        sstride = 64 * 3072
        srcsrd = "s[12:15]"

    def issue(slot_expr_sgpr):
        e(f"s_add_u32 m0, {slot_expr_sgpr}, s53")
        e("s_nop 0")
        for i in range(n):
            off = f" offset:{1024*i}" if i else ""
            e(f"buffer_load_dwordx4 v{1+i}, {srcsrd}, s28 offen{off} lds")
        e(f"s_add_u32 s28, s28, {sstride}")

    e("s_mov_b32 s29, 0")
    for s in range(T_S - 1):
        issue("s29")
        e(f"s_add_u32 s29, s29, {T_STAGE}")
    e(f"""v_lshlrev_b32 v62, 1, v61
    v_add_u32 v62, {8*kh}, v62
    v_xor_b32 v62, v62, v60
    v_lshlrev_b32 v62, 4, v62
    v_lshl_add_u32 v62, v60, 8, v62
    s_lshl_b32 s51, s50, 12
    v_add_u32 v5, s51, v62
    v_xor_b32 v6, 16, v5
    v_lshlrev_b32 v7, 6, v61
    v_add_u32 v7, {T_ZS + 4*kh*64}, v7""")
    if T_QW:
        e(f"v_add_u32 v5, {T_QW}, v5\nv_add_u32 v6, {T_QW}, v6")
    e(f"""v_lshrrev_b32 v62, 2, v60        ; r
    v_lshl_add_u32 v62, v61, 3, v62  ; 8q + r
    v_mul_u32_u24 v62, 192, v62
    v_and_b32 v63, 3, v60
    v_lshl_add_u32 v62, v63, 3, v62
    v_add_u32 v62, {T_V + 32*kh*192}, v62
    v_and_b32 v63, 1, v61
    v_lshl_add_u32 v8, v63, 5, v62
    v_xor_b32 v63, 1, v63
    v_lshl_add_u32 v9, v63, 5, v62""")
    for i in range(24):
        e(f"v_mov_b32 v{72+i}, 0")
    if grp == 0:
        e(f"""s_cmp_ge_u32 s3, 3
        s_cbranch_scc1 {L}_nozs_wr
        s_waitcnt vmcnt({n*(T_S-1)})""")
        for i in range(4):
            e(f"""v_lshlrev_b32 v{16+2*i}, 16, v{64+i}
            v_and_b32 v{17+2*i}, 0xffff0000, v{64+i}
            v_lshlrev_b32 v{24+2*i}, 16, v{68+i}
            v_and_b32 v{25+2*i}, 0xffff0000, v{68+i}""")
        for i in range(8):
            e(f"v_xor_b32 v{16+i}, 0x80000000, v{16+i}")
        e(f"""s_lshl_b32 s51, s3, 12
        v_lshlrev_b32 v62, 6, v0
        v_add_u32 v62, s51, v62
        v_add_u32 v62, {T_ZS}, v62
        ds_write_b128 v62, v[16:19]
        ds_write_b128 v62, v[20:23] offset:16
        ds_write_b128 v62, v[24:27] offset:32
        ds_write_b128 v62, v[28:31] offset:48
        s_waitcnt lgkmcnt(0)""")
        e.label(f"{L}_nozs_wr")
    e("s_mov_b32 s30, 0")
    e(f"s_mov_b32 s31, {T_NST - T_S + 1}")

    def body(wait, do_issue):
        e(f"s_waitcnt vmcnt({wait})")
        e("s_barrier")
        if do_issue:
            issue("s29")
            e(f"""s_add_u32 s29, s29, {T_STAGE}
            s_cmp_ge_u32 s29, {T_S*T_STAGE}
            s_cselect_b32 s29, 0, s29""")
        e("""v_add_u32 v10, s30, v5
        v_add_u32 v11, s30, v6
        v_add_u32 v13, s30, v8
        v_add_u32 v14, s30, v9
        ds_read_b128 v[16:19], v10
        ds_read_b128 v[20:23], v11
        ds_read_b128 v[24:27], v7
        ds_read_b128 v[28:31], v7 offset:16
        ds_read_b128 v[32:35], v7 offset:32
        ds_read_b128 v[36:39], v7 offset:48""")
        for gt in range(6):
            a = 13 if gt % 2 == 0 else 14
            off = 64 * (gt // 2)
            e(f"ds_read_b64_tr_b16 v[{48+4*gt}:{49+4*gt}], v{a} offset:{off}")
            e(f"ds_read_b64_tr_b16 v[{50+4*gt}:{51+4*gt}], v{a} offset:{off+768}")
        e(f"""v_add_u32 v7, 512, v7
        s_add_u32 s30, s30, {T_STAGE}
        s_cmp_ge_u32 s30, {T_S*T_STAGE}
        s_cselect_b32 s30, 0, s30
        s_waitcnt lgkmcnt(12)""")
        dequant(e, 16, 24, 32, 40, 44)
        e("s_waitcnt lgkmcnt(0)")
        e("s_nop 0")
        for gt in range(6):
            e(f"v_mfma_f32_16x16x32_bf16 v[{72+4*gt}:{75+4*gt}], v[44:47], v[{48+4*gt}:{51+4*gt}], v[{72+4*gt}:{75+4*gt}]")

    e.label(f"{L}_loop")
    body(n * (T_S - 2), True)
    e(f"""s_sub_u32 s31, s31, 1
    s_cmp_lg_u32 s31, 0
    s_cbranch_scc1 {L}_loop""")
    for s in range(T_NST - T_S + 1, T_NST):
        body(n * (T_NST - 1 - s), False)
    e("s_barrier")
    e("""v_lshlrev_b32 v14, 4, v0
    s_mul_i32 s51, s50, 6144
    v_add_u32 v14, s51, v14
    s_nop 7""")
    if grp == 1:
        for gt in range(6):
            e(f"ds_write_b128 v14, v[{72+4*gt}:{75+4*gt}] offset:{1024*gt}")
        e("s_waitcnt lgkmcnt(0)")
        e("s_barrier")
    else:
        e("s_barrier")
        for gt in range(6):
            e(f"ds_read_b128 v[{48+4*gt}:{51+4*gt}], v14 offset:{1024*gt}")
        e(f"""s_lshl_b32 s51, s6, 2
        s_add_u32 s51, s51, s50
        s_lshr_b32 s52, s51, 1
        s_and_b32 s51, s51, 1
        s_lshl_b32 s51, s51, 3
        s_mul_i32 s54, s7, 120
        s_add_u32 s54, s54, s52
        s_lshl_b32 s54, s54, 10
        s_add_u32 s54, s54, s51
        s_add_u32 s54, s54, {T_WS}
        v_lshlrev_b32 v15, 4, v0""")
        for gt in range(6):
            e(f"s_waitcnt lgkmcnt({5-gt})")
            for r in range(4):
                e(f"v_add_f32 v{72+4*gt+r}, v{72+4*gt+r}, v{48+4*gt+r}")
            e(f"v_cvt_pk_bf16_f32 v{16+2*gt}, v{72+4*gt}, v{73+4*gt}")
            e(f"v_cvt_pk_bf16_f32 v{17+2*gt}, v{74+4*gt}, v{75+4*gt}")
            e(f"buffer_store_dwordx2 v[{16+2*gt}:{17+2*gt}], v15, s[16:19], s54 offen")
            e(f"s_add_u32 s54, s54, 20480")
    e("s_endpgm")

def x_path(e):
    L = "X"
    e("""s_and_b32 s50, s3, 3
    v_and_b32 v60, 15, v0          ; c
    v_lshrrev_b32 v61, 4, v0        ; q
    s_mov_b32 s52, 1280""")
    e(f"""s_cmp_ge_u32 s3, 4
    s_cbranch_scc1 {L}_ldx""")
    for i in range(4):
        e(f"""v_add_u32 v62, {4*i}, v61
        v_mul_lo_u32 v63, v62, s52
        v_or_b32 v62, {((i>>1)&1)<<2}, v61
        v_lshlrev_b32 v62, 1, v62
        v_xor_b32 v62, v60, v62
        v_lshl_add_u32 v{1+i}, v62, 4, v63""")
        if i:
            e(f"v_subrev_u32 v{1+i}, {1024*i}, v{1+i}")
    e(f"""s_mul_i32 s28, s50, 20480
    s_lshl_b32 s51, s6, 8
    s_add_u32 s28, s28, s51
    s_lshl_b32 s53, s50, 12
    s_add_u32 s53, s53, {X_U}
    s_mov_b32 s55, {64*1280}
    s_mov_b32 s8, s40
    s_and_b32 s9, s41, 0xffff
    s_mov_b32 s10, 819200
    s_mov_b32 s11, 0x00020000
    s_branch {L}_ldj""")
    e.label(f"{L}_ldx")
    for i in range(4):
        e(f"""v_lshrrev_b32 v62, 3, v0
        v_add_u32 v62, {8*i}, v62
        v_mul_lo_u32 v63, v62, s52
        v_add_u32 v62, {4*i}, v61
        v_and_b32 v62, 7, v62
        v_and_b32 v64, 7, v0
        v_xor_b32 v62, v64, v62
        v_lshl_add_u32 v{1+i}, v62, 4, v63""")
        if i:
            e(f"v_subrev_u32 v{1+i}, {1024*i}, v{1+i}")
    e(f"""s_lshl_b32 s28, s7, 7
    s_lshl_b32 s51, s50, 5
    s_add_u32 s28, s28, s51
    s_mul_i32 s28, s28, 1280
    s_lshl_b32 s53, s50, 12
    s_add_u32 s53, s53, {X_X}
    s_mov_b32 s55, 128
    s_mov_b32 s8, s32
    s_and_b32 s9, s33, 0xffff
    s_mov_b32 s10, 2621440
    s_mov_b32 s11, 0x00020000""")
    e.label(f"{L}_ldj")

    def issue():
        e("s_add_u32 m0, s29, s53")
        e("s_nop 0")
        for i in range(4):
            off = f" offset:{1024*i}" if i else ""
            e(f"buffer_load_dwordx4 v{1+i}, s[8:11], s28 offen{off} lds")
        e("s_add_u32 s28, s28, s55")

    e("s_mov_b32 s29, 0")
    for s in range(X_S - 1):
        issue()
        e(f"s_add_u32 s29, s29, {X_STAGE}")
    e("""s_and_b32 s56, s3, 1
    s_lshr_b32 s57, s3, 1
    v_lshrrev_b32 v62, 2, v60        ; r
    v_and_b32 v63, 1, v61
    v_lshl_add_u32 v63, v63, 2, v62  ; g
    v_lshl_add_u32 v62, v61, 3, v62  ; 8q+r
    v_lshlrev_b32 v62, 8, v62
    v_and_b32 v64, 3, v60
    v_lshl_add_u32 v62, v64, 3, v62
    s_lshl_b32 s51, s56, 2""")
    for a in range(4):
        e(f"""s_add_u32 s58, s51, {a}
        v_xor_b32 v64, s58, v63
        v_lshl_add_u32 v{5+a}, v64, 5, v62""")
        if X_U:
            e(f"v_add_u32 v{5+a}, {X_U}, v{5+a}")
    e(f"""v_lshrrev_b32 v62, 1, v60
    v_xor_b32 v62, v62, v61
    v_lshlrev_b32 v62, 4, v62
    v_lshl_add_u32 v62, v60, 7, v62
    s_lshl_b32 s51, s57, 12
    s_add_u32 s51, s51, {X_X}
    v_add_u32 v9, s51, v62
    v_xor_b32 v10, 64, v9""")
    for i in range(32):
        e(f"v_mov_b32 v{96+i}, 0")
    e("s_mov_b32 s30, 0")
    e(f"s_mov_b32 s31, {X_NST - X_S + 1}")

    def body(wait, do_issue):
        e(f"s_waitcnt vmcnt({wait})")
        e("s_barrier")
        if do_issue:
            issue()
            e(f"""s_add_u32 s29, s29, {X_STAGE}
            s_cmp_ge_u32 s29, {X_S*X_STAGE}
            s_cselect_b32 s29, 0, s29""")
        for a in range(6):
            e(f"v_add_u32 v{11+a}, s30, v{5+a}")
        e(f"""s_add_u32 s30, s30, {X_STAGE}
        s_cmp_ge_u32 s30, {X_S*X_STAGE}
        s_cselect_b32 s30, 0, s30""")
        for kh in range(2):
            base = 32 + 32 * kh
            for a in range(4):
                e(f"ds_read_b64_tr_b16 v[{base+4*a}:{base+4*a+1}], v{11+a} offset:{8192*kh}")
                e(f"ds_read_b64_tr_b16 v[{base+4*a+2}:{base+4*a+3}], v{11+a} offset:{8192*kh+1024}")
            for mt in range(2):
                e(f"ds_read_b128 v[{base+16+4*mt}:{base+19+4*mt}], v{15+kh} offset:{2048*mt}")
        for kh in range(2):
            base = 32 + 32 * kh
            e(f"s_waitcnt lgkmcnt({10 if kh == 0 else 0})")
            for a in range(4):
                for mt in range(2):
                    d = 96 + 8 * a + 4 * mt
                    e(f"v_mfma_f32_16x16x32_bf16 v[{d}:{d+3}], v[{base+4*a}:{base+4*a+3}], v[{base+16+4*mt}:{base+19+4*mt}], v[{d}:{d+3}]")

    e.label(f"{L}_loop")
    body(4 * (X_S - 2), True)
    e(f"""s_sub_u32 s31, s31, 1
    s_cmp_lg_u32 s31, 0
    s_cbranch_scc1 {L}_loop""")
    for s in range(X_NST - X_S + 1, X_NST):
        body(4 * (X_NST - 1 - s), False)
    e(f"""s_lshl_b32 s51, s7, 3
    s_lshl_b32 s52, s57, 1
    s_add_u32 s51, s51, s52
    s_mul_i32 s51, s51, 20
    s_lshl_b32 s52, s6, 2
    s_add_u32 s51, s51, s52
    s_lshl_b32 s52, s56, 1
    s_add_u32 s51, s51, s52
    s_lshl_b32 s54, s51, 10
    s_add_u32 s54, s54, {XR_WS}
    s_add_u32 s55, s54, 20480
    v_lshlrev_b32 v62, 4, v0
    s_nop 7""")
    for mt in range(2):
        for kb in range(2):
            P = 32 + 8 * mt + 4 * kb
            d0 = 96 + 8 * (2 * kb) + 4 * mt
            d1 = 96 + 8 * (2 * kb + 1) + 4 * mt
            e(f"""v_cvt_pk_bf16_f32 v{P}, v{d0}, v{d0+1}
            v_cvt_pk_bf16_f32 v{P+1}, v{d0+2}, v{d0+3}
            v_cvt_pk_bf16_f32 v{P+2}, v{d1}, v{d1+1}
            v_cvt_pk_bf16_f32 v{P+3}, v{d1+2}, v{d1+3}""")
            so = "s54" if mt == 0 else "s55"
            off = f" offset:{1024*kb}" if kb else ""
            e(f"buffer_store_dwordx4 v[{P}:{P+3}], v62, s[16:19], {so} offen{off}")
    e("s_endpgm")

def p1_kernel(e):
    e.raw(".p2align 8")
    e.raw(".type p1_kernel,@function")
    e.label("p1_kernel")
    e("""s_cmp_ge_u32 s2, 240
    s_cbranch_scc1 P1_end
    s_load_dwordx16 s[32:47], s[0:1], 0
    s_load_dwordx2 s[48:49], s[0:1], 64
    v_lshrrev_b32 v1, 6, v0
    v_and_b32 v0, 63, v0
    s_and_b32 s4, s2, 7
    s_lshr_b32 s5, s2, 3
    v_readfirstlane_b32 s3, v1
    s_waitcnt lgkmcnt(0)""")
    srd(e, 16, 48, WS_BYTES)
    e("""s_cmp_ge_u32 s5, 20
    s_cbranch_scc1 P1_x""")
    e("""s_mul_i32 s7, s5, 52
    s_lshr_b32 s7, s7, 8          ; i/5
    s_mul_i32 s51, s7, 5
    s_sub_u32 s6, s5, s51         ; i%5
    s_and_b32 s51, s4, 1
    s_mul_i32 s51, s51, 5
    s_add_u32 s6, s6, s51
    s_lshr_b32 s51, s4, 1
    s_lshl_b32 s51, s51, 2
    s_add_u32 s7, s7, s51""")
    srd(e, 8, 34, 3932160)
    srd(e, 12, 42, 4718592)
    srd(e, 20, 38, 3072)
    srd(e, 24, 36, 3072)
    e("""s_cmp_ge_u32 s3, 4
    s_cbranch_scc1 P1_t1""")
    t_path(e, 0)
    e.label("P1_t1")
    t_path(e, 1)
    e.label("P1_x")
    e("""s_sub_u32 s5, s5, 20
    s_cmp_ge_u32 s5, 5
    s_cselect_b32 s51, 1, 0
    s_mul_i32 s52, s51, 5
    s_sub_u32 s6, s5, s52
    s_lshl_b32 s7, s4, 1
    s_add_u32 s7, s7, s51""")
    x_path(e)
    e.label("P1_end")
    e("s_endpgm")

P2_LDS = 120 * 1024

def p2_kernel(e):
    e.raw(".p2align 8")
    e.raw(".type p2_kernel,@function")
    e.label("p2_kernel")
    e("""s_cmp_ge_u32 s2, 256
    s_cbranch_scc1 P2_end
    s_load_dwordx2 s[44:45], s[0:1], 48
    s_load_dwordx2 s[48:49], s[0:1], 64
    v_lshrrev_b32 v1, 6, v0
    v_and_b32 v0, 63, v0
    s_and_b32 s4, s2, 7
    s_lshr_b32 s5, s2, 3
    v_readfirstlane_b32 s3, v1
    v_lshlrev_b32 v1, 4, v0""")
    e("""s_and_b32 s6, s4, 3
    s_lshl_b32 s6, s6, 2
    s_and_b32 s51, s5, 3
    s_add_u32 s6, s6, s51
    s_lshr_b32 s7, s4, 2
    s_lshl_b32 s7, s7, 3
    s_lshr_b32 s51, s5, 2
    s_add_u32 s7, s7, s51""")
    e(f"""s_and_b32 s51, s3, 1
    s_mul_i32 s51, s51, 3
    s_mul_i32 s52, s7, 6
    s_add_u32 s51, s51, s52
    s_mul_i32 s51, s51, 20
    s_lshr_b32 s52, s3, 1
    s_add_u32 s51, s51, s52
    s_lshl_b32 s20, s51, 10
    s_add_u32 s20, s20, {T_WS}
    s_add_u32 s21, s20, 20480
    s_add_u32 s22, s20, 40960
    s_lshl_b32 s51, s6, 3
    s_lshl_b32 s52, s3, 1
    s_add_u32 s51, s51, s52
    s_mul_i32 s23, s51, 20480
    s_add_u32 s23, s23, {XR_WS}
    s_add_u32 s24, s23, 20480
    s_mul_i32 s25, s3, 3072
    s_waitcnt lgkmcnt(0)""")
    srd(e, 16, 48, WS_BYTES)
    srd(e, 8, 44, 6291456)

    def issue(t):
        for j in range(3):
            e(f"s_add_u32 m0, s25, {(12*t + j)*1024}")
            e(f"s_add_u32 s26, s{20+j}, {2048*t}")
            e(f"buffer_load_dwordx4 v1, s[16:19], s26 offen lds")
        for kk in range(2):
            kb = 2 * t + kk
            for mi in range(2):
                a = (kb * 2 + mi) * 4
                if kk == 0:
                    e(f"s_add_u32 s{27+mi}, s{23+mi}, {2048*t}")
                off = " offset:1024" if kk else ""
                e(f"buffer_load_dwordx4 a[{a}:{a+3}], v1, s[16:19], s{27+mi} offen{off}")

    for t in range(9):
        issue(t)
    ACC = 64
    for i in range(48):
        e(f"v_mov_b32 v{ACC+i}, 0")
    FB = [8, 32]

    def reads(kb):
        b = FB[kb & 1]
        for gt in range(6):
            off = (kb * 6 + gt) * 1024
            if off < 65536:
                e(f"ds_read_b128 v[{b+4*gt}:{b+4*gt+3}], v1 offset:{off}")
            else:
                e(f"ds_read_b128 v[{b+4*gt}:{b+4*gt+3}], v2 offset:{off-65536}")

    def mfmas(kb):
        b = FB[kb & 1]
        for gt in range(6):
            for mi in range(2):
                d = ACC + (gt * 2 + mi) * 4
                a = (kb * 2 + mi) * 4
                e(f"v_mfma_f32_16x16x32_bf16 v[{d}:{d+3}], v[{b+4*gt}:{b+4*gt+3}], a[{a}:{a+3}], v[{d}:{d+3}]")

    e("v_add_u32 v2, 0x10000, v1")
    e("s_waitcnt vmcnt(56)")
    e("s_barrier")
    issue(9)
    reads(0)
    for kb in range(20):
        t = kb // 2
        if kb + 1 < 20:
            if kb % 2 == 1:
                e(f"s_waitcnt vmcnt({70 - 7*(t+2)})")
                e("s_barrier")
            reads(kb + 1)
            e("s_waitcnt lgkmcnt(6)")
        else:
            e("s_waitcnt lgkmcnt(0)")
        mfmas(kb)
    e("""v_and_b32 v3, 15, v0
    v_lshrrev_b32 v4, 4, v0
    s_mov_b32 s52, 3072
    v_mul_lo_u32 v3, v3, s52
    v_and_b32 v5, 1, v4
    v_lshrrev_b32 v4, 1, v4
    v_lshlrev_b32 v5, 5, v5          ; (q&1)*16 elems *2B
    v_lshl_add_u32 v5, v4, 4, v5     ; + (q>>1)*8 elems*2B
    v_add_u32 v3, v3, v5
    s_lshl_b32 s51, s6, 7
    s_lshl_b32 s52, s3, 5
    s_add_u32 s51, s51, s52
    s_mul_i32 s54, s51, 3072
    s_mul_i32 s52, s7, 192
    s_add_u32 s54, s54, s52
    s_add_u32 s55, s54, 49152
    s_nop 7""")
    for mi in range(2):
        for a in range(3):
            P = 8 + (mi * 3 + a) * 4
            dA = ACC + ((2 * a) * 2 + mi) * 4
            dB = ACC + ((2 * a + 1) * 2 + mi) * 4
            e(f"""v_cvt_pk_bf16_f32 v{P}, v{dA}, v{dA+1}
            v_cvt_pk_bf16_f32 v{P+1}, v{dA+2}, v{dA+3}
            v_cvt_pk_bf16_f32 v{P+2}, v{dB}, v{dB+1}
            v_cvt_pk_bf16_f32 v{P+3}, v{dB+2}, v{dB+3}
            s_nop 1
            v_permlane16_swap_b32 v{P}, v{P+2}
            v_permlane16_swap_b32 v{P+1}, v{P+3}""")
            so = "s54" if mi == 0 else "s55"
            off = f" offset:{64*a}" if a else ""
            e("s_nop 1")
            e(f"buffer_store_dwordx4 v[{P}:{P+3}], v3, s[8:11], {so} offen{off}")
    e.label("P2_end")
    e("s_endpgm")

def main(out):
    e = E()
    e.raw(HEADER.rstrip('\n'))
    e.raw(f"; @launch kernel=p1_kernel grid=(240,1,1) block=(512,1,1) lds={P1_LDS}")
    e.raw(f"; @launch kernel=p2_kernel grid=(256,1,1) block=(256,1,1) lds={P2_LDS}")
    e.raw('.amdgcn_target "amdgcn-amd-amdhsa--gfx950"')
    e.raw(".text")
    e.raw(".globl p1_kernel")
    e.raw(".globl p2_kernel")
    p1_kernel(e)
    p2_kernel(e)
    e.raw('.section .rodata,"a"')
    for name, vg, acc in (("p1_kernel", 128, 128), ("p2_kernel", 112 + 160, 112)):
        e.raw(".p2align 6")
        e.raw(f""".amdhsa_kernel {name}
  .amdhsa_next_free_vgpr {vg}
  .amdhsa_next_free_sgpr 64
  .amdhsa_accum_offset {acc}
  .amdhsa_group_segment_fixed_size 0
  .amdhsa_kernarg_size 72
  .amdhsa_user_sgpr_count 2
  .amdhsa_user_sgpr_kernarg_segment_ptr 1
  .amdhsa_system_sgpr_workgroup_id_x 1
  .amdhsa_float_denorm_mode_32 3
.end_amdhsa_kernel""")
    open(out, 'w').write(e.text())

if __name__ == '__main__':
    main(sys.argv[1] if len(sys.argv) > 1 else 'standalone__weight_only_int_quip__prompt.s')
```

```python
import sys

HEADER = open('standalone__weight_only_int_quip__prompt.s.ref').read().split('; Override launch')[0]

XR_WS = 0
T_WS = 2621440
WS_BYTES = 268435456
OPT = dict(ldprio=0, noload=0, nocomp=0, touch=1)

class E:
    def __init__(self):
        self.l = []
    def __call__(self, s):
        for line in s.strip('\n').split('\n'):
            t = line.strip()
            if OPT['noload'] and t.endswith(' lds'): continue
            if OPT['nocomp'] and (t.startswith('ds_read') or t.startswith('v_mfma') or '_dpp' in t or t.startswith('v_cvt')): continue
            self.l.append('    ' + t)
    def label(self, s):
        self.l.append(s + ':')
    def raw(self, s):
        self.l.append(s)
    def text(self):
        return '\n'.join(self.l) + '\n'

DIAG = False
STAMP_WS = 64 << 20
def stamp(e, i):
    if not DIAG: return
    e(f"""s_memtime s[{64+4*i}:{65+4*i}]
    s_memrealtime s[{66+4*i}:{67+4*i}]
    s_waitcnt lgkmcnt(0)""")
def stamp_flush(e, n, kern):
    if not DIAG: return
    e(f"""s_waitcnt vmcnt(0)""")
    stamp(e, n - 1)
    e(f"""s_lshl_b32 s60, s2, 4
    s_add_u32 s60, s60, s3
    s_lshl_b32 s60, s60, 7
    s_add_u32 s60, s60, {STAMP_WS + kern * (1 << 20)}
    v_mov_b32 v2, 0
    s_getreg_b32 s61, hwreg(HW_REG_XCC_ID)
    s_getreg_b32 s62, hwreg(HW_REG_HW_ID)
    v_mov_b32 v4, s61
    v_mov_b32 v5, s62
    buffer_store_dwordx2 v[4:5], v2, s[16:19], s60 offen offset:112
    s_waitcnt vmcnt(0)""")
    for i in range(n):
        e(f"""v_mov_b32 v4, s{64+4*i}
        v_mov_b32 v5, s{65+4*i}
        v_mov_b32 v6, s{66+4*i}
        v_mov_b32 v7, s{67+4*i}
        buffer_store_dwordx4 v[4:7], v2, s[16:19], s60 offen offset:{16*i}
        s_waitcnt vmcnt(0)""")

def srd(e, d, lo, nbytes):
    e(f"""s_mov_b32 s{d}, s{lo}
    s_and_b32 s{d+1}, s{lo+1}, 0xffff
    s_mov_b32 s{d+2}, {nbytes}
    s_mov_b32 s{d+3}, 0x00020000""")

T_S = 5
T_STAGE = 28672
T_QW = 0
T_V = 16384
T_ZS = T_S * T_STAGE
T_NST = 24
X_S = 4
X_STAGE = 32768
X_U = 0
X_X = 16384
X_NST = 10
P1_LDS = T_ZS + 12288

def loader_loop(e, L, nst, S, stage_bytes, npieces, issue):
    if OPT['ldprio']:
        e(f"s_setprio {OPT['ldprio']}")
    e("s_mov_b32 s29, 0")
    for s in range(S - 1):
        issue()
        e(f"s_add_u32 s29, s29, {stage_bytes}")
    e(f"s_mov_b32 s31, {nst - S + 1}")
    e.label(f"{L}_ldloop")
    e(f"s_waitcnt vmcnt({npieces*(S-2)})")
    e("s_barrier")
    issue()
    e(f"""s_add_u32 s29, s29, {stage_bytes}
    s_cmp_ge_u32 s29, {S*stage_bytes}
    s_cselect_b32 s29, 0, s29
    s_sub_u32 s31, s31, 1
    s_cmp_lg_u32 s31, 0
    s_cbranch_scc1 {L}_ldloop""")
    for s in range(nst - S + 1, nst):
        e(f"s_waitcnt vmcnt({npieces*(nst-1-s)})")
        e("s_barrier")
    e("s_endpgm")

def dequant_ops(R, ZS, P, A):
    ops = []
    for i in range(8):
        ops.append(f"v_cvt_f32_i32 v{R+i}, v{R+i}")
    for i in range(8):
        ops.append(f"v_add_f32_dpp v{R+i}, v{ZS}, v{R+i} row_newbcast:{i} row_mask:0xf bank_mask:0xf")
    for i in range(4):
        ops.append(f"v_cvt_pk_bf16_f32 v{P+i}, v{R+2*i}, v{R+2*i+1}")
    for i in range(4):
        ops.append(f"v_lshlrev_b32 v{R+2*i}, 16, v{P+i}")
        ops.append(f"v_and_b32 v{R+2*i+1}, 0xffff0000, v{P+i}")
    for i in range(8):
        ops.append(f"v_mul_f32_dpp v{R+i}, v{ZS}, v{R+i} row_newbcast:{8+i} row_mask:0xf bank_mask:0xf")
    for i in range(4):
        ops.append(f"v_cvt_pk_bf16_f32 v{A+i}, v{R+2*i}, v{R+2*i+1}")
    return ops

def t_loader(e):
    e("""s_sub_u32 s50, s3, 8
    v_and_b32 v60, 15, v0
    v_lshrrev_b32 v61, 4, v0
    s_mov_b32 s52, 6144""")
    for i in range(4):
        e(f"""v_add_u32 v62, {4*i}, v61
        v_mul_lo_u32 v63, v62, s52
        v_xor_b32 v62, v60, v62
        v_lshl_add_u32 v{1+i}, v62, 4, v63""")
        if i:
            e(f"v_subrev_u32 v{1+i}, {1024*i}, v{1+i}")
    e(f"""s_lshl_b32 s28, s6, 6
    s_lshl_b32 s51, s50, 4
    s_add_u32 s28, s28, s51
    s_mul_i32 s28, s28, 6144
    s_lshl_b32 s53, s50, 12
    s_add_u32 s53, s53, {T_QW}
    s_mov_b32 s52, 3072""")
    for j in range(3):
        e(f"""v_add_u32 v62, {64*j}, v0
        v_mul_u32_u24 v63, 171, v62
        v_lshrrev_b32 v63, 11, v63
        v_mul_u32_u24 v64, 12, v63
        v_sub_u32 v62, v62, v64
        v_lshrrev_b32 v64, 3, v63
        v_and_b32 v64, 1, v64
        v_lshlrev_b32 v64, 1, v64
        v_xor_b32 v62, v62, v64
        v_mul_lo_u32 v63, v63, s52
        v_lshl_add_u32 v{5+j}, v62, 4, v63""")
        if j:
            e(f"v_subrev_u32 v{5+j}, {1024*j}, v{5+j}")
    e(f"""s_mul_i32 s27, s50, 49152
    s_mul_i32 s51, s7, 192
    s_add_u32 s27, s27, s51
    s_mul_i32 s54, s50, 3072
    s_add_u32 s54, s54, {T_V}""")
    def issue():
        e("s_add_u32 m0, s29, s53")
        e("s_nop 0")
        for i in range(4):
            off = f" offset:{1024*i}" if i else ""
            e(f"buffer_load_dwordx4 v{1+i}, s[8:11], s28 offen{off} lds")
        e("s_add_u32 m0, s29, s54")
        e("s_add_u32 s28, s28, 256")
        for j in range(3):
            off = f" offset:{1024*j}" if j else ""
            e(f"buffer_load_dwordx4 v{5+j}, s[12:15], s27 offen{off} lds")
        e(f"s_add_u32 s27, s27, {64*3072}")
    loader_loop(e, "TL", T_NST, T_S, T_STAGE, 7, issue)

def t_consumer(e, par):
    L = f"TC{par}"
    e("""s_and_b32 s50, s3, 3
    v_and_b32 v60, 15, v0          ; c
    v_lshrrev_b32 v61, 4, v0        ; q""")
    if par == 0:
        e(f"""s_cmp_ge_u32 s3, 3
        s_cbranch_scc1 {L}_nozs
        s_lshl_b32 s51, s3, 10
        v_lshlrev_b32 v62, 4, v0
        v_add_u32 v62, s51, v62
        buffer_load_dwordx4 v[64:67], v62, s[20:23], 0 offen
        buffer_load_dwordx4 v[68:71], v62, s[24:27], 0 offen
        s_waitcnt vmcnt(0)""")
        for i in range(4):
            e(f"""v_lshlrev_b32 v{16+2*i}, 16, v{64+i}
            v_and_b32 v{17+2*i}, 0xffff0000, v{64+i}
            v_lshlrev_b32 v{24+2*i}, 16, v{68+i}
            v_and_b32 v{25+2*i}, 0xffff0000, v{68+i}""")
        for i in range(8):
            e(f"v_xor_b32 v{16+i}, 0x80000000, v{16+i}")
        e(f"""s_lshl_b32 s51, s3, 12
        v_lshlrev_b32 v62, 6, v0
        v_add_u32 v62, s51, v62
        v_add_u32 v62, {T_ZS}, v62
        ds_write_b128 v62, v[16:19]
        ds_write_b128 v62, v[20:23] offset:16
        ds_write_b128 v62, v[24:27] offset:32
        ds_write_b128 v62, v[28:31] offset:48
        s_waitcnt lgkmcnt(0)""")
        e.label(f"{L}_nozs")
    if OPT['touch']:
        for rnd in range(2):
            e(f"""s_lshl_b32 s51, s5, 3
            s_add_u32 s51, s51, s3
            s_add_u32 s51, s51, {64 + 160*rnd}
            s_lshr_b32 s52, s51, 4          ; stage
            s_and_b32 s51, s51, 15          ; u
            s_cmp_ge_u32 s51, 10
            s_cbranch_scc1 {L}_tv{rnd}
            s_lshl_b32 s51, s51, 6
            v_add_u32 v62, s51, v0          ; t
            v_lshrrev_b32 v63, 1, v62       ; row
            v_and_b32 v62, 1, v62
            s_mov_b32 s53, 6144
            v_mul_lo_u32 v63, v63, s53
            v_lshl_add_u32 v62, v62, 7, v63
            s_and_b32 s53, s4, 1
            s_mul_i32 s53, s53, {320*6144}
            s_lshl_b32 s52, s52, 8
            s_add_u32 s53, s53, s52
            buffer_load_dword v{1+rnd}, v62, s[8:11], s53 offen
            s_branch {L}_td{rnd}""")
            e.label(f"{L}_tv{rnd}")
            e(f"""s_sub_u32 s51, s51, 10
            s_lshl_b32 s51, s51, 6
            v_add_u32 v62, s51, v0          ; t in 0..383
            v_mul_u32_u24 v63, 171, v62
            v_lshrrev_b32 v63, 10, v63      ; row = t/6
            v_mul_u32_u24 v64, 6, v63
            v_sub_u32 v62, v62, v64
            s_mov_b32 s53, 3072
            v_mul_lo_u32 v63, v63, s53
            v_lshl_add_u32 v62, v62, 7, v63
            s_lshr_b32 s53, s4, 1
            s_mul_i32 s53, s53, 768
            s_mul_i32 s52, s52, {64*3072}
            s_add_u32 s53, s53, s52
            buffer_load_dword v{1+rnd}, v62, s[12:15], s53 offen""")
            e.label(f"{L}_td{rnd}")
    e(f"""v_lshlrev_b32 v62, 1, v61
    v_xor_b32 v62, v62, v60
    v_lshlrev_b32 v62, 4, v62
    v_lshl_add_u32 v62, v60, 8, v62
    s_lshl_b32 s51, s50, 12
    s_add_u32 s51, s51, {T_QW}
    v_add_u32 v5, s51, v62
    v_xor_b32 v6, 16, v5
    v_xor_b32 v7, 128, v5
    v_xor_b32 v8, 144, v5
    v_lshlrev_b32 v9, 2, v0
    v_add_u32 v9, {T_ZS + 512*par}, v9""")
    e(f"""v_lshrrev_b32 v62, 2, v60        ; r
    v_lshl_add_u32 v62, v61, 3, v62  ; 8q + r
    v_mul_u32_u24 v62, 192, v62
    v_and_b32 v63, 3, v60
    v_lshl_add_u32 v62, v63, 3, v62
    v_add_u32 v62, {T_V}, v62
    v_and_b32 v63, 1, v61
    v_lshl_add_u32 v10, v63, 5, v62
    v_xor_b32 v63, 1, v63
    v_lshl_add_u32 v11, v63, 5, v62""")
    ACC = 120
    RAW = [24, 32]
    ZS = [40, 41]
    P = 44
    A = [48, 52]
    B = [64, 88]
    for i in range(24):
        e(f"v_mov_b32 v{ACC+i}, 0")
    e(f"s_mov_b32 s30, {T_STAGE*par}")
    e("s_mov_b32 s31, 12")
    stamp(e, 1)
    if par == 1:
        e("s_barrier")
    e.label(f"{L}_loop")
    e("s_barrier")
    for i in range(4):
        e(f"v_add_u32 v{12+i}, s30, v{5+i}")
    e("""v_add_u32 v16, s30, v10
    v_add_u32 v17, s30, v11""")
    e(f"""ds_read_b128 v[{RAW[0]}:{RAW[0]+3}], v12
    ds_read_b128 v[{RAW[0]+4}:{RAW[0]+7}], v13
    ds_read_b32 v{ZS[0]}, v9
    ds_read_b128 v[{RAW[1]}:{RAW[1]+3}], v14
    ds_read_b128 v[{RAW[1]+4}:{RAW[1]+7}], v15
    ds_read_b32 v{ZS[1]}, v9 offset:256""")
    def trs(kh):
        for gt in range(6):
            a = 16 if gt % 2 == 0 else 17
            off = 64 * (gt // 2) + kh * 32 * 192
            e(f"ds_read_b64_tr_b16 v[{B[kh]+4*gt}:{B[kh]+4*gt+1}], v{a} offset:{off}")
            e(f"ds_read_b64_tr_b16 v[{B[kh]+4*gt+2}:{B[kh]+4*gt+3}], v{a} offset:{off+768}")
    trl = []
    for kh in range(2):
        for gt in range(6):
            a = 16 if gt % 2 == 0 else 17
            off = 64 * (gt // 2) + kh * 32 * 192
            trl.append(f"ds_read_b64_tr_b16 v[{B[kh]+4*gt}:{B[kh]+4*gt+1}], v{a} offset:{off}")
            trl.append(f"ds_read_b64_tr_b16 v[{B[kh]+4*gt+2}:{B[kh]+4*gt+3}], v{a} offset:{off+768}")
    for r in trl[:6]:
        e(r)
    e(f"""v_add_u32 v9, 1024, v9
    s_add_u32 s30, s30, {2*T_STAGE}
    s_cmp_ge_u32 s30, {T_S*T_STAGE}
    s_cselect_b32 s51, {T_S*T_STAGE}, 0
    s_sub_u32 s30, s30, s51
    s_waitcnt lgkmcnt(9)""")
    d0 = dequant_ops(RAW[0], ZS[0], P, A[0])
    ti = 6
    for i, op in enumerate(d0):
        e(op)
        if i % 2 == 1 and ti < 24:
            e(trl[ti]); ti += 1
    assert ti == 24
    e("s_waitcnt lgkmcnt(0)")
    e("s_barrier")
    d1 = dequant_ops(RAW[1], ZS[1], P, A[1])
    k = 0
    for gt in range(6):
        e(f"v_mfma_f32_16x16x32_bf16 v[{ACC+4*gt}:{ACC+4*gt+3}], v[{A[0]}:{A[0]+3}], v[{B[0]+4*gt}:{B[0]+4*gt+3}], v[{ACC+4*gt}:{ACC+4*gt+3}]")
        for op in d1[k:k+7]:
            e(op)
        k += 7
    e("s_nop 1")
    for gt in range(6):
        e(f"v_mfma_f32_16x16x32_bf16 v[{ACC+4*gt}:{ACC+4*gt+3}], v[{A[1]}:{A[1]+3}], v[{B[1]+4*gt}:{B[1]+4*gt+3}], v[{ACC+4*gt}:{ACC+4*gt+3}]")
    e(f"""s_sub_u32 s31, s31, 1
    s_cmp_lg_u32 s31, 0
    s_cbranch_scc1 {L}_loop""")
    stamp(e, 2)
    e("""v_lshlrev_b32 v14, 4, v0
    s_mul_i32 s51, s50, 6144
    v_add_u32 v14, s51, v14
    v_lshlrev_b32 v15, 4, v0
    s_nop 7""")
    if par == 0:
        e("s_barrier")
        for gt in range(6):
            e(f"ds_write_b128 v14, v[{ACC+4*gt}:{ACC+4*gt+3}] offset:{1024*gt}")
        e("s_waitcnt lgkmcnt(0)")
        e("s_barrier")
    else:
        e(f"""s_lshl_b32 s51, s6, 2
        s_add_u32 s51, s51, s50
        s_lshr_b32 s52, s51, 1
        s_and_b32 s51, s51, 1
        s_lshl_b32 s51, s51, 3
        s_mul_i32 s54, s7, 120
        s_add_u32 s54, s54, s52
        s_lshl_b32 s54, s54, 10
        s_add_u32 s54, s54, s51
        s_add_u32 s54, s54, {T_WS}""")
        e("s_barrier")
        for gt in range(6):
            e(f"ds_read_b128 v[{64+4*gt}:{67+4*gt}], v14 offset:{1024*gt}")
        for gt in range(6):
            e(f"s_waitcnt lgkmcnt({5-gt})")
            for r in range(4):
                e(f"v_add_f32 v{ACC+4*gt+r}, v{ACC+4*gt+r}, v{64+4*gt+r}")
            e(f"v_cvt_pk_bf16_f32 v{24+2*gt}, v{ACC+4*gt}, v{ACC+4*gt+1}")
            e(f"v_cvt_pk_bf16_f32 v{25+2*gt}, v{ACC+4*gt+2}, v{ACC+4*gt+3}")
            e(f"buffer_store_dwordx2 v[{24+2*gt}:{25+2*gt}], v15, s[16:19], s54 offen")
            e(f"s_add_u32 s54, s54, 20480")
    stamp_flush(e, 4, 0)
    e("s_endpgm")

def x_loader(e):
    e("""s_sub_u32 s50, s3, 8
    v_and_b32 v60, 15, v0
    v_lshrrev_b32 v61, 4, v0
    s_mov_b32 s52, 1280""")
    for i in range(4):
        e(f"""v_add_u32 v62, {4*i}, v61
        v_mul_lo_u32 v63, v62, s52
        v_or_b32 v62, {((i>>1)&1)<<2}, v61
        v_lshlrev_b32 v62, 1, v62
        v_xor_b32 v62, v60, v62
        v_lshl_add_u32 v{1+i}, v62, 4, v63""")
        if i:
            e(f"v_subrev_u32 v{1+i}, {1024*i}, v{1+i}")
    e(f"""s_mul_i32 s28, s50, 20480
    s_lshl_b32 s51, s6, 8
    s_add_u32 s28, s28, s51
    s_lshl_b32 s53, s50, 12
    s_add_u32 s53, s53, {X_U}""")
    for i in range(4):
        e(f"""v_lshrrev_b32 v62, 3, v0
        v_add_u32 v62, {8*i}, v62
        v_mul_lo_u32 v63, v62, s52
        v_add_u32 v62, {4*i}, v61
        v_and_b32 v62, 7, v62
        v_and_b32 v64, 7, v0
        v_xor_b32 v62, v64, v62
        v_lshl_add_u32 v{5+i}, v62, 4, v63""")
        if i:
            e(f"v_subrev_u32 v{5+i}, {1024*i}, v{5+i}")
    e(f"""s_lshl_b32 s27, s7, 7
    s_lshl_b32 s51, s50, 5
    s_add_u32 s27, s27, s51
    s_mul_i32 s27, s27, 1280
    s_lshl_b32 s54, s50, 12
    s_add_u32 s54, s54, {X_X}""")
    def issue():
        e("s_add_u32 m0, s29, s53")
        e("s_nop 0")
        for i in range(4):
            off = f" offset:{1024*i}" if i else ""
            e(f"buffer_load_dwordx4 v{1+i}, s[8:11], s28 offen{off} lds")
        e("s_add_u32 m0, s29, s54")
        e(f"s_add_u32 s28, s28, {64*1280}")
        for i in range(4):
            off = f" offset:{1024*i}" if i else ""
            e(f"buffer_load_dwordx4 v{5+i}, s[12:15], s27 offen{off} lds")
        e("s_add_u32 s27, s27, 128")
    loader_loop(e, "XL", X_NST, X_S, X_STAGE, 8, issue)

def x_consumer(e):
    L = "XC"
    if OPT['touch']:
        for rnd in range(2):
            e(f"""s_lshl_b32 s51, s5, 3
            s_add_u32 s51, s51, s3
            s_add_u32 s51, s51, {42 + 80*rnd}
            s_cmp_ge_u32 s51, 140
            s_cbranch_scc1 {L}_td{rnd}
            s_mul_i32 s52, s51, 147
            s_lshr_b32 s52, s52, 11         ; stage = p/14
            s_mul_i32 s53, s52, 14
            s_sub_u32 s51, s51, s53         ; u
            s_cmp_ge_u32 s51, 4
            s_cbranch_scc1 {L}_tu{rnd}
            s_lshl_b32 s51, s51, 6
            v_add_u32 v62, s51, v0          ; row
            s_mov_b32 s53, 1280
            v_mul_lo_u32 v62, v62, s53
            s_mul_i32 s53, s4, {256*1280}
            s_lshl_b32 s52, s52, 7
            s_add_u32 s53, s53, s52
            buffer_load_dword v{1+rnd}, v62, s[12:15], s53 offen
            s_branch {L}_td{rnd}""")
            e.label(f"{L}_tu{rnd}")
            e(f"""s_sub_u32 s51, s51, 4
            s_lshl_b32 s51, s51, 13
            v_lshlrev_b32 v62, 7, v0
            s_mul_i32 s52, s52, {64*1280}
            s_add_u32 s53, s51, s52
            buffer_load_dword v{1+rnd}, v62, s[8:11], s53 offen""")
            e.label(f"{L}_td{rnd}")
    e("""v_and_b32 v60, 15, v0          ; c
    v_lshrrev_b32 v61, 4, v0        ; q
    s_and_b32 s56, s3, 1
    s_lshr_b32 s57, s3, 1
    v_lshrrev_b32 v62, 2, v60        ; r
    v_and_b32 v63, 1, v61
    v_lshl_add_u32 v63, v63, 2, v62  ; g
    v_lshl_add_u32 v62, v61, 3, v62  ; 8q+r
    v_lshlrev_b32 v62, 8, v62
    v_and_b32 v64, 3, v60
    v_lshl_add_u32 v62, v64, 3, v62
    s_lshl_b32 s51, s56, 2""")
    for a in range(4):
        e(f"""s_add_u32 s58, s51, {a}
        v_xor_b32 v64, s58, v63
        v_lshl_add_u32 v{5+a}, v64, 5, v62""")
        if X_U:
            e(f"v_add_u32 v{5+a}, {X_U}, v{5+a}")
    e(f"""v_lshrrev_b32 v62, 1, v60
    v_xor_b32 v62, v62, v61
    v_lshlrev_b32 v62, 4, v62
    v_lshl_add_u32 v62, v60, 7, v62
    s_lshl_b32 s51, s57, 12
    s_add_u32 s51, s51, {X_X}
    v_add_u32 v9, s51, v62
    v_xor_b32 v10, 64, v9""")
    for i in range(32):
        e(f"v_mov_b32 v{96+i}, 0")
    e("s_mov_b32 s30, 0")
    e(f"s_mov_b32 s31, {X_NST}")
    stamp(e, 1)
    e.label(f"{L}_loop")
    e("s_barrier")
    for a in range(6):
        e(f"v_add_u32 v{11+a}, s30, v{5+a}")
    e(f"""s_add_u32 s30, s30, {X_STAGE}
    s_cmp_ge_u32 s30, {X_S*X_STAGE}
    s_cselect_b32 s30, 0, s30""")
    for kh in range(2):
        base = 32 + 32 * kh
        for a in range(4):
            e(f"ds_read_b64_tr_b16 v[{base+4*a}:{base+4*a+1}], v{11+a} offset:{8192*kh}")
            e(f"ds_read_b64_tr_b16 v[{base+4*a+2}:{base+4*a+3}], v{11+a} offset:{8192*kh+1024}")
        for mt in range(2):
            e(f"ds_read_b128 v[{base+16+4*mt}:{base+19+4*mt}], v{15+kh} offset:{2048*mt}")
    for kh in range(2):
        base = 32 + 32 * kh
        e(f"s_waitcnt lgkmcnt({10 if kh == 0 else 0})")
        for a in range(4):
            for mt in range(2):
                d = 96 + 8 * a + 4 * mt
                e(f"v_mfma_f32_16x16x32_bf16 v[{d}:{d+3}], v[{base+4*a}:{base+4*a+3}], v[{base+16+4*mt}:{base+19+4*mt}], v[{d}:{d+3}]")
    e(f"""s_sub_u32 s31, s31, 1
    s_cmp_lg_u32 s31, 0
    s_cbranch_scc1 {L}_loop""")
    stamp(e, 2)
    e(f"""s_lshl_b32 s51, s7, 3
    s_lshl_b32 s52, s57, 1
    s_add_u32 s51, s51, s52
    s_mul_i32 s51, s51, 20
    s_lshl_b32 s52, s6, 2
    s_add_u32 s51, s51, s52
    s_lshl_b32 s52, s56, 1
    s_add_u32 s51, s51, s52
    s_lshl_b32 s54, s51, 10
    s_add_u32 s54, s54, {XR_WS}
    s_add_u32 s55, s54, 20480
    v_lshlrev_b32 v62, 4, v0
    s_nop 7""")
    for mt in range(2):
        for kb in range(2):
            P = 32 + 8 * mt + 4 * kb
            d0 = 96 + 8 * (2 * kb) + 4 * mt
            d1 = 96 + 8 * (2 * kb + 1) + 4 * mt
            e(f"""v_cvt_pk_bf16_f32 v{P}, v{d0}, v{d0+1}
            v_cvt_pk_bf16_f32 v{P+1}, v{d0+2}, v{d0+3}
            v_cvt_pk_bf16_f32 v{P+2}, v{d1}, v{d1+1}
            v_cvt_pk_bf16_f32 v{P+3}, v{d1+2}, v{d1+3}""")
            so = "s54" if mt == 0 else "s55"
            off = f" offset:{1024*kb}" if kb else ""
            e(f"buffer_store_dwordx4 v[{P}:{P+3}], v62, s[16:19], {so} offen{off}")
    stamp_flush(e, 4, 0)
    e("s_endpgm")

def p1_kernel(e):
    e.raw(".p2align 8")
    e.raw(".type p1_kernel,@function")
    e.label("p1_kernel")
    e("""s_cmp_ge_u32 s2, 240
    s_cbranch_scc1 P1_end""")
    stamp(e, 0)
    e("""s_load_dwordx16 s[32:47], s[0:1], 0
    s_load_dwordx2 s[48:49], s[0:1], 64
    v_lshrrev_b32 v1, 6, v0
    v_and_b32 v0, 63, v0
    s_and_b32 s4, s2, 7
    s_lshr_b32 s5, s2, 3
    v_readfirstlane_b32 s3, v1
    s_waitcnt lgkmcnt(0)""")
    srd(e, 16, 48, WS_BYTES)
    e("""s_cmp_ge_u32 s5, 20
    s_cbranch_scc1 P1_x""")
    e("""s_mul_i32 s7, s5, 52
    s_lshr_b32 s7, s7, 8          ; i/5
    s_mul_i32 s51, s7, 5
    s_sub_u32 s6, s5, s51         ; i%5
    s_and_b32 s51, s4, 1
    s_mul_i32 s51, s51, 5
    s_add_u32 s6, s6, s51
    s_lshr_b32 s51, s4, 1
    s_lshl_b32 s51, s51, 2
    s_add_u32 s7, s7, s51""")
    srd(e, 8, 34, 3932160)
    srd(e, 12, 42, 4718592)
    e("""s_cmp_ge_u32 s3, 8
    s_cbranch_scc1 P1_tl
    s_cmp_ge_u32 s3, 4
    s_cbranch_scc1 P1_tc1""")
    srd(e, 20, 38, 3072)
    srd(e, 24, 36, 3072)
    t_consumer(e, 0)
    e.label("P1_tc1")
    t_consumer(e, 1)
    e.label("P1_tl")
    t_loader(e)
    e.label("P1_x")
    e("""s_sub_u32 s5, s5, 20
    s_cmp_ge_u32 s5, 5
    s_cselect_b32 s51, 1, 0
    s_mul_i32 s52, s51, 5
    s_sub_u32 s6, s5, s52
    s_lshl_b32 s7, s4, 1
    s_add_u32 s7, s7, s51""")
    srd(e, 8, 40, 819200)
    srd(e, 12, 32, 2621440)
    e("""s_cmp_ge_u32 s3, 8
    s_cbranch_scc1 P1_xl""")
    x_consumer(e)
    e.label("P1_xl")
    x_loader(e)
    e.label("P1_end")
    e("s_endpgm")

Y_S = 5
Y_STAGE = 28672
Y_NST = 10
P2_LDS = Y_S * Y_STAGE

def p2_kernel(e):
    e.raw(".p2align 8")
    e.raw(".type p2_kernel,@function")
    e.label("p2_kernel")
    e("""s_cmp_ge_u32 s2, 256
    s_cbranch_scc1 P2_end""")
    stamp(e, 0)
    e("""s_load_dwordx2 s[44:45], s[0:1], 48
    s_load_dwordx2 s[48:49], s[0:1], 64
    v_lshrrev_b32 v1, 6, v0
    v_and_b32 v0, 63, v0
    s_and_b32 s4, s2, 7
    s_lshr_b32 s5, s2, 3
    v_readfirstlane_b32 s3, v1
    v_lshlrev_b32 v1, 4, v0""")
    e("""s_and_b32 s6, s4, 3
    s_lshl_b32 s6, s6, 2
    s_and_b32 s51, s5, 3
    s_add_u32 s6, s6, s51
    s_lshr_b32 s7, s4, 2
    s_lshl_b32 s7, s7, 3
    s_lshr_b32 s51, s5, 2
    s_add_u32 s7, s7, s51
    s_cmp_ge_u32 s3, 4
    s_cbranch_scc0 P2_c""")
    e(f"""s_sub_u32 s50, s3, 4
    s_and_b32 s51, s50, 1
    s_lshr_b32 s52, s50, 1           ; kk
    s_mul_i32 s53, s52, 14336
    s_mul_i32 s55, s51, 3072
    s_add_u32 s54, s53, 6144
    s_add_u32 s53, s53, s55          ; T lds base
    s_lshl_b32 s55, s51, 12
    s_add_u32 s54, s54, s55          ; xr lds base
    s_mul_i32 s55, s51, 3
    s_mul_i32 s56, s7, 6
    s_add_u32 s55, s55, s56
    s_mul_i32 s55, s55, 20
    s_add_u32 s55, s55, s52
    s_lshl_b32 s28, s55, 10
    s_add_u32 s28, s28, {T_WS}
    s_lshl_b32 s55, s51, 2
    s_lshl_b32 s56, s6, 3
    s_add_u32 s55, s55, s56
    s_mul_i32 s55, s55, 20
    s_add_u32 s55, s55, s52
    s_lshl_b32 s27, s55, 10
    s_add_u32 s27, s27, {XR_WS}""")
    for i in range(1, 4):
        e(f"v_add_u32 v{1+i}, {19456*i}, v1")
    e("s_waitcnt lgkmcnt(0)")
    srd(e, 16, 48, WS_BYTES)
    def issue():
        e("s_add_u32 m0, s29, s53")
        e("s_nop 0")
        for i in range(3):
            off = f" offset:{1024*i}" if i else ""
            e(f"buffer_load_dwordx4 v{1+i}, s[16:19], s28 offen{off} lds")
        e("s_add_u32 m0, s29, s54")
        e("s_add_u32 s28, s28, 2048")
        for i in range(4):
            off = f" offset:{1024*i}" if i else ""
            e(f"buffer_load_dwordx4 v{1+i}, s[16:19], s27 offen{off} lds")
        e("s_add_u32 s27, s27, 2048")
    loader_loop(e, "YL", Y_NST, Y_S, Y_STAGE, 7, issue)
    e.label("P2_c")
    ACC = 64
    FB = [8, 112]
    for i in range(48):
        e(f"v_mov_b32 v{ACC+i}, 0")
    e("""s_lshl_b32 s51, s3, 11
    s_add_u32 s51, s51, 6144
    v_add_u32 v2, s51, v1
    s_waitcnt lgkmcnt(0)""")
    srd(e, 16, 48, WS_BYTES)
    srd(e, 8, 44, 6291456)
    e("s_mov_b32 s30, 0")

    def rlist(kk, b):
        l = []
        for mi in range(2):
            l.append(f"ds_read_b128 v[{b+24+4*mi}:{b+27+4*mi}], v4 offset:{kk*14336 + mi*1024}")
        for gt in range(6):
            l.append(f"ds_read_b128 v[{b+4*gt}:{b+4*gt+3}], v3 offset:{kk*14336 + gt*1024}")
        return l

    def block(b, rl):
        i = 0
        for gt in range(6):
            for mi in range(2):
                d = ACC + (gt * 2 + mi) * 4
                e(f"v_mfma_f32_16x16x32_bf16 v[{d}:{d+3}], v[{b+4*gt}:{b+4*gt+3}], v[{b+24+4*mi}:{b+27+4*mi}], v[{d}:{d+3}]")
                if i < len(rl):
                    e(rl[i]); i += 1

    def newslot():
        e(f"""v_add_u32 v3, s30, v1
        v_add_u32 v4, s30, v2
        s_add_u32 s30, s30, {Y_STAGE}
        s_cmp_ge_u32 s30, {Y_S*Y_STAGE}
        s_cselect_b32 s30, 0, s30""")

    e("s_barrier")
    stamp(e, 1)
    newslot()
    for r in rlist(0, FB[0]):
        e(r)
    e(f"s_mov_b32 s31, {Y_NST-1}")
    e.label("P2_loop")
    e("s_waitcnt lgkmcnt(0)")
    block(FB[0], rlist(1, FB[1]))
    e("s_waitcnt lgkmcnt(0)")
    e("s_barrier")
    newslot()
    block(FB[1], rlist(0, FB[0]))
    e("""s_sub_u32 s31, s31, 1
    s_cmp_lg_u32 s31, 0
    s_cbranch_scc1 P2_loop""")
    e("s_waitcnt lgkmcnt(0)")
    block(FB[0], rlist(1, FB[1]))
    e("s_waitcnt lgkmcnt(0)")
    block(FB[1], [])
    stamp(e, 2)
    e("""v_and_b32 v3, 15, v0
    v_lshrrev_b32 v4, 4, v0
    s_mov_b32 s52, 3072
    v_mul_lo_u32 v3, v3, s52
    v_and_b32 v5, 1, v4
    v_lshrrev_b32 v4, 1, v4
    v_lshlrev_b32 v5, 5, v5
    v_lshl_add_u32 v5, v4, 4, v5
    v_add_u32 v3, v3, v5
    s_lshl_b32 s51, s6, 7
    s_lshl_b32 s52, s3, 5
    s_add_u32 s51, s51, s52
    s_mul_i32 s54, s51, 3072
    s_mul_i32 s52, s7, 192
    s_add_u32 s54, s54, s52
    s_add_u32 s55, s54, 49152
    s_nop 7""")
    for mi in range(2):
        for a in range(3):
            P = 8 + (mi * 3 + a) * 4
            dA = ACC + ((2 * a) * 2 + mi) * 4
            dB = ACC + ((2 * a + 1) * 2 + mi) * 4
            e(f"""v_cvt_pk_bf16_f32 v{P}, v{dA}, v{dA+1}
            v_cvt_pk_bf16_f32 v{P+1}, v{dA+2}, v{dA+3}
            v_cvt_pk_bf16_f32 v{P+2}, v{dB}, v{dB+1}
            v_cvt_pk_bf16_f32 v{P+3}, v{dB+2}, v{dB+3}
            s_nop 1
            v_permlane16_swap_b32 v{P}, v{P+2}
            v_permlane16_swap_b32 v{P+1}, v{P+3}""")
            so = "s54" if mi == 0 else "s55"
            off = f" offset:{64*a}" if a else ""
            e("s_nop 1")
            e(f"buffer_store_dwordx4 v[{P}:{P+3}], v3, s[8:11], {so} offen{off}")
    stamp_flush(e, 4, 1)
    e.label("P2_end")
    e("s_endpgm")

def main(out):
    e = E()
    e.raw(HEADER.rstrip('\n'))
    e.raw(f"; @launch kernel=p1_kernel grid=(240,1,1) block=(768,1,1) lds={P1_LDS}")
    e.raw(f"; @launch kernel=p2_kernel grid=(256,1,1) block=(512,1,1) lds={P2_LDS}")
    e.raw('.amdgcn_target "amdgcn-amd-amdhsa--gfx950"')
    e.raw(".text")
    e.raw(".globl p1_kernel")
    e.raw(".globl p2_kernel")
    p1_kernel(e)
    p2_kernel(e)
    e.raw('.section .rodata,"a"')
    for name, vg, acc in (("p1_kernel", 144, 144), ("p2_kernel", 144, 144)):
        e.raw(".p2align 6")
        e.raw(f""".amdhsa_kernel {name}
  .amdhsa_next_free_vgpr {vg}
  .amdhsa_next_free_sgpr 96
  .amdhsa_accum_offset {acc}
  .amdhsa_group_segment_fixed_size 0
  .amdhsa_kernarg_size 72
  .amdhsa_user_sgpr_count 2
  .amdhsa_user_sgpr_kernarg_segment_ptr 1
  .amdhsa_system_sgpr_workgroup_id_x 1
  .amdhsa_float_denorm_mode_32 3
.end_amdhsa_kernel""")
    open(out, 'w').write(e.text())

if __name__ == '__main__':
    for a in sys.argv[2:]:
        if a == 'diag':
            DIAG = True
        elif '=' in a:
            k, v = a.split('=')
            OPT[k] = int(v)
    main(sys.argv[1] if len(sys.argv) > 1 else 'standalone__weight_only_int_quip__prompt.s')
```

```python
import sys

HEADER = open('standalone__weight_only_int_quip__prompt.s.ref').read().split('; Override launch')[0]

XR_WS = 0
T_WS = 2621440
WS_BYTES = 268435456
OPT = dict(ldprio=0, noload=0, nocomp=0, touch=1, tdelta=12, xdelta=6, nt=0, nttouch=0, xtouch=0, samek=0)

class E:
    def __init__(self):
        self.l = []
    def __call__(self, s):
        for line in s.strip('\n').split('\n'):
            t = line.strip()
            if OPT['noload'] and t.endswith(' lds'): continue
            if OPT['samek'] and (t.startswith('s_add_u32 s28, s28,') or t.startswith('s_add_u32 s27, s27,')): continue
            if OPT['nt'] and t.endswith(' lds') and ('s[8:11]' in t or 's[12:15]' in t): t = t[:-4] + ' nt lds'
            if OPT['nttouch'] and t.startswith('buffer_load_dword v'): t = t + ' nt'
            if OPT['nocomp'] and (t.startswith('ds_read') or t.startswith('v_mfma') or '_dpp' in t or t.startswith('v_cvt')): continue
            self.l.append('    ' + t)
    def label(self, s):
        self.l.append(s + ':')
    def raw(self, s):
        self.l.append(s)
    def text(self):
        return '\n'.join(self.l) + '\n'

DIAG = False
STAMP_WS = 64 << 20
def stamp(e, i):
    if not DIAG: return
    e(f"""s_memtime s[{64+4*i}:{65+4*i}]
    s_memrealtime s[{66+4*i}:{67+4*i}]
    s_waitcnt lgkmcnt(0)""")
def stamp_flush(e, n, kern):
    if not DIAG: return
    e(f"""s_waitcnt vmcnt(0)""")
    stamp(e, n - 1)
    e(f"""s_lshl_b32 s60, s2, 4
    s_add_u32 s60, s60, s3
    s_lshl_b32 s60, s60, 7
    s_add_u32 s60, s60, {STAMP_WS + kern * (1 << 20)}
    v_mov_b32 v2, 0
    s_getreg_b32 s61, hwreg(HW_REG_XCC_ID)
    s_getreg_b32 s62, hwreg(HW_REG_HW_ID)
    v_mov_b32 v4, s61
    v_mov_b32 v5, s62
    buffer_store_dwordx2 v[4:5], v2, s[16:19], s60 offen offset:112
    s_waitcnt vmcnt(0)""")
    for i in range(n):
        e(f"""v_mov_b32 v4, s{64+4*i}
        v_mov_b32 v5, s{65+4*i}
        v_mov_b32 v6, s{66+4*i}
        v_mov_b32 v7, s{67+4*i}
        buffer_store_dwordx4 v[4:7], v2, s[16:19], s60 offen offset:{16*i}
        s_waitcnt vmcnt(0)""")

def srd(e, d, lo, nbytes):
    e(f"""s_mov_b32 s{d}, s{lo}
    s_and_b32 s{d+1}, s{lo+1}, 0xffff
    s_mov_b32 s{d+2}, {nbytes}
    s_mov_b32 s{d+3}, 0x00020000""")

T_S = 5
T_STAGE = 28672
T_QW = 0
T_V = 16384
T_ZS = T_S * T_STAGE
T_NST = 24
X_S = 4
X_STAGE = 32768
X_U = 0
X_X = 16384
X_NST = 10
P1_LDS = T_ZS + 12288

def loader_loop(e, L, nst, S, stage_bytes, npieces, issue):
    if OPT['ldprio']:
        e(f"s_setprio {OPT['ldprio']}")
    e("s_mov_b32 s29, 0")
    for s in range(S - 1):
        issue()
        e(f"s_add_u32 s29, s29, {stage_bytes}")
    e(f"s_mov_b32 s31, {nst - S + 1}")
    def rec():
        if DIAG:
            e("""s_memtime s[62:63]
            s_waitcnt lgkmcnt(0)
            v_mov_b32 v21, s62
            v_cmp_eq_u32 vcc, s61, v0
            s_nop 1
            v_cndmask_b32 v20, v20, v21, vcc
            s_add_u32 s61, s61, 1""")
    if DIAG:
        e("s_mov_b32 s61, 0\nv_mov_b32 v20, 0")
        rec()
    e.label(f"{L}_ldloop")
    e(f"s_waitcnt vmcnt({npieces*(S-2)})")
    e("s_barrier")
    rec()
    issue()
    e(f"""s_add_u32 s29, s29, {stage_bytes}
    s_cmp_ge_u32 s29, {S*stage_bytes}
    s_cselect_b32 s29, 0, s29
    s_sub_u32 s31, s31, 1
    s_cmp_lg_u32 s31, 0
    s_cbranch_scc1 {L}_ldloop""")
    for s in range(nst - S + 1, nst):
        e(f"s_waitcnt vmcnt({npieces*(nst-1-s)})")
        e("s_barrier")
        rec()
    if DIAG:
        kern = 1 if L == "YL" else 0
        e(f"""s_lshl_b32 s60, s2, 2
        s_add_u32 s60, s60, s50
        s_lshl_b32 s60, s60, 8
        s_add_u32 s60, s60, {STAMP_WS + (4 + kern) * (1 << 20)}
        v_lshlrev_b32 v21, 2, v0
        buffer_store_dword v20, v21, s[16:19], s60 offen""")
    e("s_endpgm")

def dequant_ops(R, ZS, P, A):
    ops = []
    for i in range(8):
        ops.append(f"v_cvt_f32_i32 v{R+i}, v{R+i}")
    for i in range(8):
        ops.append(f"v_add_f32_dpp v{R+i}, v{ZS}, v{R+i} row_newbcast:{i} row_mask:0xf bank_mask:0xf")
    for i in range(4):
        ops.append(f"v_cvt_pk_bf16_f32 v{P+i}, v{R+2*i}, v{R+2*i+1}")
    for i in range(4):
        ops.append(f"v_lshlrev_b32 v{R+2*i}, 16, v{P+i}")
        ops.append(f"v_and_b32 v{R+2*i+1}, 0xffff0000, v{P+i}")
    for i in range(8):
        ops.append(f"v_mul_f32_dpp v{R+i}, v{ZS}, v{R+i} row_newbcast:{8+i} row_mask:0xf bank_mask:0xf")
    for i in range(4):
        ops.append(f"v_cvt_pk_bf16_f32 v{A+i}, v{R+2*i}, v{R+2*i+1}")
    return ops

def t_loader(e):
    e("""s_sub_u32 s50, s3, 8
    v_and_b32 v60, 15, v0
    v_lshrrev_b32 v61, 4, v0
    s_mov_b32 s52, 6144""")
    for i in range(4):
        e(f"""v_add_u32 v62, {4*i}, v61
        v_mul_lo_u32 v63, v62, s52
        v_xor_b32 v62, v60, v62
        v_lshl_add_u32 v{1+i}, v62, 4, v63""")
        if i:
            e(f"v_subrev_u32 v{1+i}, {1024*i}, v{1+i}")
    e(f"""s_lshl_b32 s28, s6, 6
    s_lshl_b32 s51, s50, 4
    s_add_u32 s28, s28, s51
    s_mul_i32 s28, s28, 6144
    s_lshl_b32 s53, s50, 12
    s_add_u32 s53, s53, {T_QW}
    s_mov_b32 s52, 3072""")
    for j in range(3):
        e(f"""v_add_u32 v62, {64*j}, v0
        v_mul_u32_u24 v63, 171, v62
        v_lshrrev_b32 v63, 11, v63
        v_mul_u32_u24 v64, 12, v63
        v_sub_u32 v62, v62, v64
        v_lshrrev_b32 v64, 3, v63
        v_and_b32 v64, 1, v64
        v_lshlrev_b32 v64, 1, v64
        v_xor_b32 v62, v62, v64
        v_mul_lo_u32 v63, v63, s52
        v_lshl_add_u32 v{5+j}, v62, 4, v63""")
        if j:
            e(f"v_subrev_u32 v{5+j}, {1024*j}, v{5+j}")
    e(f"""s_mul_i32 s27, s50, 49152
    s_mul_i32 s51, s7, 192
    s_add_u32 s27, s27, s51
    s_mul_i32 s54, s50, 3072
    s_add_u32 s54, s54, {T_V}""")
    def issue():
        e("s_add_u32 m0, s29, s53")
        e("s_nop 0")
        for i in range(4):
            off = f" offset:{1024*i}" if i else ""
            e(f"buffer_load_dwordx4 v{1+i}, s[8:11], s28 offen{off} lds")
        e("s_add_u32 m0, s29, s54")
        e("s_add_u32 s28, s28, 256")
        for j in range(3):
            off = f" offset:{1024*j}" if j else ""
            e(f"buffer_load_dwordx4 v{5+j}, s[12:15], s27 offen{off} lds")
        e(f"s_add_u32 s27, s27, {64*3072}")
    loader_loop(e, "TL", T_NST, T_S, T_STAGE, 7, issue)

def tcheck(e, tag):
    e(f"""s_cmp_gt_u32 s26, s25
    s_cbranch_scc1 {tag}_nt
    s_cmp_ge_u32 s26, {T_NST}
    s_cbranch_scc1 {tag}_nt
    buffer_load_dword v2, v3, s[52:55], s27 offen
    s_add_u32 s26, s26, 10
    s_add_u32 s27, s27, s28""")
    e.label(f"{tag}_nt")

def t_consumer(e, par):
    L = f"TC{par}"
    e("""s_and_b32 s50, s3, 3
    v_and_b32 v60, 15, v0          ; c
    v_lshrrev_b32 v61, 4, v0        ; q""")
    if par == 0:
        e(f"""s_cmp_ge_u32 s3, 3
        s_cbranch_scc1 {L}_nozs
        s_lshl_b32 s51, s3, 10
        v_lshlrev_b32 v62, 4, v0
        v_add_u32 v62, s51, v62
        buffer_load_dwordx4 v[64:67], v62, s[20:23], 0 offen
        buffer_load_dwordx4 v[68:71], v62, s[24:27], 0 offen
        s_waitcnt vmcnt(0)""")
        for i in range(4):
            e(f"""v_lshlrev_b32 v{16+2*i}, 16, v{64+i}
            v_and_b32 v{17+2*i}, 0xffff0000, v{64+i}
            v_lshlrev_b32 v{24+2*i}, 16, v{68+i}
            v_and_b32 v{25+2*i}, 0xffff0000, v{68+i}""")
        for i in range(8):
            e(f"v_xor_b32 v{16+i}, 0x80000000, v{16+i}")
        e(f"""s_lshl_b32 s51, s3, 12
        v_lshlrev_b32 v62, 6, v0
        v_add_u32 v62, s51, v62
        v_add_u32 v62, {T_ZS}, v62
        ds_write_b128 v62, v[16:19]
        ds_write_b128 v62, v[20:23] offset:16
        ds_write_b128 v62, v[24:27] offset:32
        ds_write_b128 v62, v[28:31] offset:48
        s_waitcnt lgkmcnt(0)""")
        e.label(f"{L}_nozs")
    if OPT['touch']:
        e(f"""s_lshl_b32 s51, s5, 3
        s_add_u32 s51, s51, s3
        s_lshr_b32 s26, s51, 4          ; sigma0
        s_and_b32 s51, s51, 15          ; u
        s_cmp_ge_u32 s51, 10
        s_cbranch_scc1 {L}_tv
        s_lshl_b32 s51, s51, 6
        v_add_u32 v62, s51, v0          ; t
        v_lshrrev_b32 v63, 1, v62       ; row
        v_and_b32 v62, 1, v62
        s_mov_b32 s53, 6144
        v_mul_lo_u32 v63, v63, s53
        v_lshl_add_u32 v3, v62, 7, v63
        s_and_b32 s27, s4, 1
        s_mul_i32 s27, s27, {320*6144}
        s_lshl_b32 s52, s26, 8
        s_add_u32 s27, s27, s52
        s_mov_b32 s28, 2560
        s_mov_b32 s52, s34
        s_and_b32 s53, s35, 0xffff
        s_mov_b32 s54, 3932160
        s_mov_b32 s55, 0x00020000
        s_branch {L}_td""")
        e.label(f"{L}_tv")
        e(f"""s_sub_u32 s51, s51, 10
        s_lshl_b32 s51, s51, 6
        v_add_u32 v62, s51, v0          ; t in 0..383
        v_mul_u32_u24 v63, 171, v62
        v_lshrrev_b32 v63, 10, v63      ; row = t/6
        v_mul_u32_u24 v64, 6, v63
        v_sub_u32 v62, v62, v64
        s_mov_b32 s53, 3072
        v_mul_lo_u32 v63, v63, s53
        v_lshl_add_u32 v3, v62, 7, v63
        s_lshr_b32 s27, s4, 1
        s_mul_i32 s27, s27, 768
        s_mul_i32 s52, s26, {64*3072}
        s_add_u32 s27, s27, s52
        s_mov_b32 s28, {640*3072}
        s_mov_b32 s52, s42
        s_and_b32 s53, s43, 0xffff
        s_mov_b32 s54, 4718592
        s_mov_b32 s55, 0x00020000""")
        e.label(f"{L}_td")
        e(f"""s_cmp_ge_u32 s26, {T_S-1}
        s_cbranch_scc1 {L}_t0
        s_add_u32 s26, s26, 10
        s_add_u32 s27, s27, s28""")
        e.label(f"{L}_t0")
        e(f"s_mov_b32 s25, {OPT['tdelta'] + par}      ; s + delta")
        tcheck(e, L + "p0")
        tcheck(e, L + "p1")
    e(f"""v_lshlrev_b32 v62, 1, v61
    v_xor_b32 v62, v62, v60
    v_lshlrev_b32 v62, 4, v62
    v_lshl_add_u32 v62, v60, 8, v62
    s_lshl_b32 s51, s50, 12
    s_add_u32 s51, s51, {T_QW}
    v_add_u32 v5, s51, v62
    v_xor_b32 v6, 16, v5
    v_xor_b32 v7, 128, v5
    v_xor_b32 v8, 144, v5
    v_lshlrev_b32 v9, 2, v0
    v_add_u32 v9, {T_ZS + 512*par}, v9""")
    e(f"""v_lshrrev_b32 v62, 2, v60        ; r
    v_lshl_add_u32 v62, v61, 3, v62  ; 8q + r
    v_mul_u32_u24 v62, 192, v62
    v_and_b32 v63, 3, v60
    v_lshl_add_u32 v62, v63, 3, v62
    v_add_u32 v62, {T_V}, v62
    v_and_b32 v63, 1, v61
    v_lshl_add_u32 v10, v63, 5, v62
    v_xor_b32 v63, 1, v63
    v_lshl_add_u32 v11, v63, 5, v62""")
    ACC = 120
    RAW = [24, 32]
    ZS = [40, 41]
    P = 44
    A = [48, 52]
    B = [64, 88]
    for i in range(24):
        e(f"v_mov_b32 v{ACC+i}, 0")
    e(f"s_mov_b32 s30, {T_STAGE*par}")
    e("s_mov_b32 s31, 12")
    stamp(e, 1)
    if par == 1:
        e("s_barrier")
    e.label(f"{L}_loop")
    e("s_barrier")
    for i in range(4):
        e(f"v_add_u32 v{12+i}, s30, v{5+i}")
    e("""v_add_u32 v16, s30, v10
    v_add_u32 v17, s30, v11""")
    e(f"""ds_read_b128 v[{RAW[0]}:{RAW[0]+3}], v12
    ds_read_b128 v[{RAW[0]+4}:{RAW[0]+7}], v13
    ds_read_b32 v{ZS[0]}, v9
    ds_read_b128 v[{RAW[1]}:{RAW[1]+3}], v14
    ds_read_b128 v[{RAW[1]+4}:{RAW[1]+7}], v15
    ds_read_b32 v{ZS[1]}, v9 offset:256""")
    def trs(kh):
        for gt in range(6):
            a = 16 if gt % 2 == 0 else 17
            off = 64 * (gt // 2) + kh * 32 * 192
            e(f"ds_read_b64_tr_b16 v[{B[kh]+4*gt}:{B[kh]+4*gt+1}], v{a} offset:{off}")
            e(f"ds_read_b64_tr_b16 v[{B[kh]+4*gt+2}:{B[kh]+4*gt+3}], v{a} offset:{off+768}")
    trl = []
    for kh in range(2):
        for gt in range(6):
            a = 16 if gt % 2 == 0 else 17
            off = 64 * (gt // 2) + kh * 32 * 192
            trl.append(f"ds_read_b64_tr_b16 v[{B[kh]+4*gt}:{B[kh]+4*gt+1}], v{a} offset:{off}")
            trl.append(f"ds_read_b64_tr_b16 v[{B[kh]+4*gt+2}:{B[kh]+4*gt+3}], v{a} offset:{off+768}")
    for r in trl[:6]:
        e(r)
    e(f"""v_add_u32 v9, 1024, v9
    s_add_u32 s30, s30, {2*T_STAGE}
    s_cmp_ge_u32 s30, {T_S*T_STAGE}
    s_cselect_b32 s51, {T_S*T_STAGE}, 0
    s_sub_u32 s30, s30, s51
    s_waitcnt lgkmcnt(9)""")
    d0 = dequant_ops(RAW[0], ZS[0], P, A[0])
    ti = 6
    for i, op in enumerate(d0):
        e(op)
        if i % 2 == 1 and ti < 24:
            e(trl[ti]); ti += 1
    assert ti == 24
    e("s_waitcnt lgkmcnt(0)")
    e("s_barrier")
    if OPT['touch']:
        e("s_add_u32 s25, s25, 2")
        tcheck(e, L + "l")
    d1 = dequant_ops(RAW[1], ZS[1], P, A[1])
    k = 0
    for gt in range(6):
        e(f"v_mfma_f32_16x16x32_bf16 v[{ACC+4*gt}:{ACC+4*gt+3}], v[{A[0]}:{A[0]+3}], v[{B[0]+4*gt}:{B[0]+4*gt+3}], v[{ACC+4*gt}:{ACC+4*gt+3}]")
        for op in d1[k:k+7]:
            e(op)
        k += 7
    e("s_nop 1")
    for gt in range(6):
        e(f"v_mfma_f32_16x16x32_bf16 v[{ACC+4*gt}:{ACC+4*gt+3}], v[{A[1]}:{A[1]+3}], v[{B[1]+4*gt}:{B[1]+4*gt+3}], v[{ACC+4*gt}:{ACC+4*gt+3}]")
    e(f"""s_sub_u32 s31, s31, 1
    s_cmp_lg_u32 s31, 0
    s_cbranch_scc1 {L}_loop""")
    stamp(e, 2)
    e("""v_lshlrev_b32 v14, 4, v0
    s_mul_i32 s51, s50, 6144
    v_add_u32 v14, s51, v14
    v_lshlrev_b32 v15, 4, v0
    s_nop 7""")
    if par == 0:
        e("s_barrier")
        for gt in range(6):
            e(f"ds_write_b128 v14, v[{ACC+4*gt}:{ACC+4*gt+3}] offset:{1024*gt}")
        e("s_waitcnt lgkmcnt(0)")
        e("s_barrier")
    else:
        e(f"""s_lshl_b32 s51, s6, 2
        s_add_u32 s51, s51, s50
        s_lshr_b32 s52, s51, 1
        s_and_b32 s51, s51, 1
        s_lshl_b32 s51, s51, 3
        s_mul_i32 s54, s7, 120
        s_add_u32 s54, s54, s52
        s_lshl_b32 s54, s54, 10
        s_add_u32 s54, s54, s51
        s_add_u32 s54, s54, {T_WS}""")
        e("s_barrier")
        for gt in range(6):
            e(f"ds_read_b128 v[{64+4*gt}:{67+4*gt}], v14 offset:{1024*gt}")
        for gt in range(6):
            e(f"s_waitcnt lgkmcnt({5-gt})")
            for r in range(4):
                e(f"v_add_f32 v{ACC+4*gt+r}, v{ACC+4*gt+r}, v{64+4*gt+r}")
            e(f"v_cvt_pk_bf16_f32 v{24+2*gt}, v{ACC+4*gt}, v{ACC+4*gt+1}")
            e(f"v_cvt_pk_bf16_f32 v{25+2*gt}, v{ACC+4*gt+2}, v{ACC+4*gt+3}")
            e(f"buffer_store_dwordx2 v[{24+2*gt}:{25+2*gt}], v15, s[16:19], s54 offen")
            e(f"s_add_u32 s54, s54, 20480")
    stamp_flush(e, 4, 0)
    e("s_endpgm")

def x_loader(e):
    e("""s_sub_u32 s50, s3, 8
    v_and_b32 v60, 15, v0
    v_lshrrev_b32 v61, 4, v0
    s_mov_b32 s52, 1280""")
    for i in range(4):
        e(f"""v_add_u32 v62, {4*i}, v61
        v_mul_lo_u32 v63, v62, s52
        v_or_b32 v62, {((i>>1)&1)<<2}, v61
        v_lshlrev_b32 v62, 1, v62
        v_xor_b32 v62, v60, v62
        v_lshl_add_u32 v{1+i}, v62, 4, v63""")
        if i:
            e(f"v_subrev_u32 v{1+i}, {1024*i}, v{1+i}")
    e(f"""s_mul_i32 s28, s50, 20480
    s_lshl_b32 s51, s6, 8
    s_add_u32 s28, s28, s51
    s_lshl_b32 s53, s50, 12
    s_add_u32 s53, s53, {X_U}""")
    for i in range(4):
        e(f"""v_lshrrev_b32 v62, 3, v0
        v_add_u32 v62, {8*i}, v62
        v_mul_lo_u32 v63, v62, s52
        v_add_u32 v62, {4*i}, v61
        v_and_b32 v62, 7, v62
        v_and_b32 v64, 7, v0
        v_xor_b32 v62, v64, v62
        v_lshl_add_u32 v{5+i}, v62, 4, v63""")
        if i:
            e(f"v_subrev_u32 v{5+i}, {1024*i}, v{5+i}")
    e(f"""s_lshl_b32 s27, s7, 7
    s_lshl_b32 s51, s50, 5
    s_add_u32 s27, s27, s51
    s_mul_i32 s27, s27, 1280
    s_lshl_b32 s54, s50, 12
    s_add_u32 s54, s54, {X_X}""")
    def issue():
        e("s_add_u32 m0, s29, s53")
        e("s_nop 0")
        for i in range(4):
            off = f" offset:{1024*i}" if i else ""
            e(f"buffer_load_dwordx4 v{1+i}, s[8:11], s28 offen{off} lds")
        e("s_add_u32 m0, s29, s54")
        e(f"s_add_u32 s28, s28, {64*1280}")
        for i in range(4):
            off = f" offset:{1024*i}" if i else ""
            e(f"buffer_load_dwordx4 v{5+i}, s[12:15], s27 offen{off} lds")
        e("s_add_u32 s27, s27, 128")
    loader_loop(e, "XL", X_NST, X_S, X_STAGE, 8, issue)

def x_consumer(e):
    L = "XC"
    if OPT['xtouch']:
        for rnd in range(2):
            e(f"""s_lshl_b32 s51, s5, 3
            s_add_u32 s51, s51, s3
            s_add_u32 s51, s51, {42 + 80*rnd}
            s_cmp_ge_u32 s51, 140
            s_cbranch_scc1 {L}_td{rnd}
            s_mul_i32 s52, s51, 147
            s_lshr_b32 s52, s52, 11         ; stage = p/14
            s_mul_i32 s53, s52, 14
            s_sub_u32 s51, s51, s53         ; u
            s_cmp_ge_u32 s51, 4
            s_cbranch_scc1 {L}_tu{rnd}
            s_lshl_b32 s51, s51, 6
            v_add_u32 v62, s51, v0          ; row
            s_mov_b32 s53, 1280
            v_mul_lo_u32 v62, v62, s53
            s_mul_i32 s53, s4, {256*1280}
            s_lshl_b32 s52, s52, 7
            s_add_u32 s53, s53, s52
            buffer_load_dword v{1+rnd}, v62, s[12:15], s53 offen
            s_branch {L}_td{rnd}""")
            e.label(f"{L}_tu{rnd}")
            e(f"""s_sub_u32 s51, s51, 4
            s_lshl_b32 s51, s51, 13
            v_lshlrev_b32 v62, 7, v0
            s_mul_i32 s52, s52, {64*1280}
            s_add_u32 s53, s51, s52
            buffer_load_dword v{1+rnd}, v62, s[8:11], s53 offen""")
            e.label(f"{L}_td{rnd}")
    e("""v_and_b32 v60, 15, v0          ; c
    v_lshrrev_b32 v61, 4, v0        ; q
    s_and_b32 s56, s3, 1
    s_lshr_b32 s57, s3, 1
    v_lshrrev_b32 v62, 2, v60        ; r
    v_and_b32 v63, 1, v61
    v_lshl_add_u32 v63, v63, 2, v62  ; g
    v_lshl_add_u32 v62, v61, 3, v62  ; 8q+r
    v_lshlrev_b32 v62, 8, v62
    v_and_b32 v64, 3, v60
    v_lshl_add_u32 v62, v64, 3, v62
    s_lshl_b32 s51, s56, 2""")
    for a in range(4):
        e(f"""s_add_u32 s58, s51, {a}
        v_xor_b32 v64, s58, v63
        v_lshl_add_u32 v{5+a}, v64, 5, v62""")
        if X_U:
            e(f"v_add_u32 v{5+a}, {X_U}, v{5+a}")
    e(f"""v_lshrrev_b32 v62, 1, v60
    v_xor_b32 v62, v62, v61
    v_lshlrev_b32 v62, 4, v62
    v_lshl_add_u32 v62, v60, 7, v62
    s_lshl_b32 s51, s57, 12
    s_add_u32 s51, s51, {X_X}
    v_add_u32 v9, s51, v62
    v_xor_b32 v10, 64, v9""")
    for i in range(32):
        e(f"v_mov_b32 v{96+i}, 0")
    e("s_mov_b32 s30, 0")
    e(f"s_mov_b32 s31, {X_NST}")
    stamp(e, 1)
    e.label(f"{L}_loop")
    e("s_barrier")
    for a in range(6):
        e(f"v_add_u32 v{11+a}, s30, v{5+a}")
    e(f"""s_add_u32 s30, s30, {X_STAGE}
    s_cmp_ge_u32 s30, {X_S*X_STAGE}
    s_cselect_b32 s30, 0, s30""")
    for kh in range(2):
        base = 32 + 32 * kh
        for a in range(4):
            e(f"ds_read_b64_tr_b16 v[{base+4*a}:{base+4*a+1}], v{11+a} offset:{8192*kh}")
            e(f"ds_read_b64_tr_b16 v[{base+4*a+2}:{base+4*a+3}], v{11+a} offset:{8192*kh+1024}")
        for mt in range(2):
            e(f"ds_read_b128 v[{base+16+4*mt}:{base+19+4*mt}], v{15+kh} offset:{2048*mt}")
    for kh in range(2):
        base = 32 + 32 * kh
        e(f"s_waitcnt lgkmcnt({10 if kh == 0 else 0})")
        for a in range(4):
            for mt in range(2):
                d = 96 + 8 * a + 4 * mt
                e(f"v_mfma_f32_16x16x32_bf16 v[{d}:{d+3}], v[{base+4*a}:{base+4*a+3}], v[{base+16+4*mt}:{base+19+4*mt}], v[{d}:{d+3}]")
    e(f"""s_sub_u32 s31, s31, 1
    s_cmp_lg_u32 s31, 0
    s_cbranch_scc1 {L}_loop""")
    stamp(e, 2)
    e(f"""s_lshl_b32 s51, s7, 3
    s_lshl_b32 s52, s57, 1
    s_add_u32 s51, s51, s52
    s_mul_i32 s51, s51, 20
    s_lshl_b32 s52, s6, 2
    s_add_u32 s51, s51, s52
    s_lshl_b32 s52, s56, 1
    s_add_u32 s51, s51, s52
    s_lshl_b32 s54, s51, 10
    s_add_u32 s54, s54, {XR_WS}
    s_add_u32 s55, s54, 20480
    v_lshlrev_b32 v62, 4, v0
    s_nop 7""")
    for mt in range(2):
        for kb in range(2):
            P = 32 + 8 * mt + 4 * kb
            d0 = 96 + 8 * (2 * kb) + 4 * mt
            d1 = 96 + 8 * (2 * kb + 1) + 4 * mt
            e(f"""v_cvt_pk_bf16_f32 v{P}, v{d0}, v{d0+1}
            v_cvt_pk_bf16_f32 v{P+1}, v{d0+2}, v{d0+3}
            v_cvt_pk_bf16_f32 v{P+2}, v{d1}, v{d1+1}
            v_cvt_pk_bf16_f32 v{P+3}, v{d1+2}, v{d1+3}""")
            so = "s54" if mt == 0 else "s55"
            off = f" offset:{1024*kb}" if kb else ""
            e(f"buffer_store_dwordx4 v[{P}:{P+3}], v62, s[16:19], {so} offen{off}")
    stamp_flush(e, 4, 0)
    e("s_endpgm")

def p1_kernel(e):
    e.raw(".p2align 8")
    e.raw(".type p1_kernel,@function")
    e.label("p1_kernel")
    e("""s_cmp_ge_u32 s2, 240
    s_cbranch_scc1 P1_end""")
    stamp(e, 0)
    e("""s_load_dwordx16 s[32:47], s[0:1], 0
    s_load_dwordx2 s[48:49], s[0:1], 64
    v_lshrrev_b32 v1, 6, v0
    v_and_b32 v0, 63, v0
    s_and_b32 s4, s2, 7
    s_lshr_b32 s5, s2, 3
    v_readfirstlane_b32 s3, v1
    s_waitcnt lgkmcnt(0)""")
    srd(e, 16, 48, WS_BYTES)
    e("""s_cmp_ge_u32 s5, 20
    s_cbranch_scc1 P1_x""")
    e("""s_mul_i32 s7, s5, 52
    s_lshr_b32 s7, s7, 8          ; i/5
    s_mul_i32 s51, s7, 5
    s_sub_u32 s6, s5, s51         ; i%5
    s_and_b32 s51, s4, 1
    s_mul_i32 s51, s51, 5
    s_add_u32 s6, s6, s51
    s_lshr_b32 s51, s4, 1
    s_lshl_b32 s51, s51, 2
    s_add_u32 s7, s7, s51""")
    srd(e, 8, 34, 3932160)
    srd(e, 12, 42, 4718592)
    e("""s_cmp_ge_u32 s3, 8
    s_cbranch_scc1 P1_tl
    s_cmp_ge_u32 s3, 4
    s_cbranch_scc1 P1_tc1""")
    srd(e, 20, 38, 3072)
    srd(e, 24, 36, 3072)
    t_consumer(e, 0)
    e.label("P1_tc1")
    t_consumer(e, 1)
    e.label("P1_tl")
    t_loader(e)
    e.label("P1_x")
    e("""s_sub_u32 s5, s5, 20
    s_cmp_ge_u32 s5, 5
    s_cselect_b32 s51, 1, 0
    s_mul_i32 s52, s51, 5
    s_sub_u32 s6, s5, s52
    s_lshl_b32 s7, s4, 1
    s_add_u32 s7, s7, s51""")
    srd(e, 8, 40, 819200)
    srd(e, 12, 32, 2621440)
    e("""s_cmp_ge_u32 s3, 8
    s_cbranch_scc1 P1_xl""")
    x_consumer(e)
    e.label("P1_xl")
    x_loader(e)
    e.label("P1_end")
    e("s_endpgm")

Y_S = 5
Y_STAGE = 28672
Y_NST = 10
P2_LDS = Y_S * Y_STAGE

def p2_kernel(e):
    e.raw(".p2align 8")
    e.raw(".type p2_kernel,@function")
    e.label("p2_kernel")
    e("""s_cmp_ge_u32 s2, 256
    s_cbranch_scc1 P2_end""")
    stamp(e, 0)
    e("""s_load_dwordx2 s[44:45], s[0:1], 48
    s_load_dwordx2 s[48:49], s[0:1], 64
    v_lshrrev_b32 v1, 6, v0
    v_and_b32 v0, 63, v0
    s_and_b32 s4, s2, 7
    s_lshr_b32 s5, s2, 3
    v_readfirstlane_b32 s3, v1
    v_lshlrev_b32 v1, 4, v0""")
    e("""s_and_b32 s6, s4, 3
    s_lshl_b32 s6, s6, 2
    s_and_b32 s51, s5, 3
    s_add_u32 s6, s6, s51
    s_lshr_b32 s7, s4, 2
    s_lshl_b32 s7, s7, 3
    s_lshr_b32 s51, s5, 2
    s_add_u32 s7, s7, s51
    s_cmp_ge_u32 s3, 4
    s_cbranch_scc0 P2_c""")
    e(f"""s_sub_u32 s50, s3, 4
    s_and_b32 s51, s50, 1
    s_lshr_b32 s52, s50, 1           ; kk
    s_mul_i32 s53, s52, 14336
    s_mul_i32 s55, s51, 3072
    s_add_u32 s54, s53, 6144
    s_add_u32 s53, s53, s55          ; T lds base
    s_lshl_b32 s55, s51, 12
    s_add_u32 s54, s54, s55          ; xr lds base
    s_mul_i32 s55, s51, 3
    s_mul_i32 s56, s7, 6
    s_add_u32 s55, s55, s56
    s_mul_i32 s55, s55, 20
    s_add_u32 s55, s55, s52
    s_lshl_b32 s28, s55, 10
    s_add_u32 s28, s28, {T_WS}
    s_lshl_b32 s55, s51, 2
    s_lshl_b32 s56, s6, 3
    s_add_u32 s55, s55, s56
    s_mul_i32 s55, s55, 20
    s_add_u32 s55, s55, s52
    s_lshl_b32 s27, s55, 10
    s_add_u32 s27, s27, {XR_WS}""")
    for i in range(1, 4):
        e(f"v_add_u32 v{1+i}, {19456*i}, v1")
    e("s_waitcnt lgkmcnt(0)")
    srd(e, 16, 48, WS_BYTES)
    def issue():
        e("s_add_u32 m0, s29, s53")
        e("s_nop 0")
        for i in range(3):
            off = f" offset:{1024*i}" if i else ""
            e(f"buffer_load_dwordx4 v{1+i}, s[16:19], s28 offen{off} lds")
        e("s_add_u32 m0, s29, s54")
        e("s_add_u32 s28, s28, 2048")
        for i in range(4):
            off = f" offset:{1024*i}" if i else ""
            e(f"buffer_load_dwordx4 v{1+i}, s[16:19], s27 offen{off} lds")
        e("s_add_u32 s27, s27, 2048")
    loader_loop(e, "YL", Y_NST, Y_S, Y_STAGE, 7, issue)
    e.label("P2_c")
    ACC = 64
    FB = [8, 112]
    for i in range(48):
        e(f"v_mov_b32 v{ACC+i}, 0")
    e("""s_lshl_b32 s51, s3, 11
    s_add_u32 s51, s51, 6144
    v_add_u32 v2, s51, v1
    s_waitcnt lgkmcnt(0)""")
    srd(e, 16, 48, WS_BYTES)
    srd(e, 8, 44, 6291456)
    e("s_mov_b32 s30, 0")

    def rlist(kk, b):
        l = []
        for mi in range(2):
            l.append(f"ds_read_b128 v[{b+24+4*mi}:{b+27+4*mi}], v4 offset:{kk*14336 + mi*1024}")
        for gt in range(6):
            l.append(f"ds_read_b128 v[{b+4*gt}:{b+4*gt+3}], v3 offset:{kk*14336 + gt*1024}")
        return l

    def block(b, rl):
        i = 0
        for gt in range(6):
            for mi in range(2):
                d = ACC + (gt * 2 + mi) * 4
                e(f"v_mfma_f32_16x16x32_bf16 v[{d}:{d+3}], v[{b+4*gt}:{b+4*gt+3}], v[{b+24+4*mi}:{b+27+4*mi}], v[{d}:{d+3}]")
                if i < len(rl):
                    e(rl[i]); i += 1

    def newslot():
        e(f"""v_add_u32 v3, s30, v1
        v_add_u32 v4, s30, v2
        s_add_u32 s30, s30, {Y_STAGE}
        s_cmp_ge_u32 s30, {Y_S*Y_STAGE}
        s_cselect_b32 s30, 0, s30""")

    e("s_barrier")
    stamp(e, 1)
    newslot()
    for r in rlist(0, FB[0]):
        e(r)
    e(f"s_mov_b32 s31, {Y_NST-1}")
    e.label("P2_loop")
    e("s_waitcnt lgkmcnt(0)")
    block(FB[0], rlist(1, FB[1]))
    e("s_waitcnt lgkmcnt(0)")
    e("s_barrier")
    newslot()
    block(FB[1], rlist(0, FB[0]))
    e("""s_sub_u32 s31, s31, 1
    s_cmp_lg_u32 s31, 0
    s_cbranch_scc1 P2_loop""")
    e("s_waitcnt lgkmcnt(0)")
    block(FB[0], rlist(1, FB[1]))
    e("s_waitcnt lgkmcnt(0)")
    block(FB[1], [])
    stamp(e, 2)
    e("""v_and_b32 v3, 15, v0
    v_lshrrev_b32 v4, 4, v0
    s_mov_b32 s52, 3072
    v_mul_lo_u32 v3, v3, s52
    v_and_b32 v5, 1, v4
    v_lshrrev_b32 v4, 1, v4
    v_lshlrev_b32 v5, 5, v5
    v_lshl_add_u32 v5, v4, 4, v5
    v_add_u32 v3, v3, v5
    s_lshl_b32 s51, s6, 7
    s_lshl_b32 s52, s3, 5
    s_add_u32 s51, s51, s52
    s_mul_i32 s54, s51, 3072
    s_mul_i32 s52, s7, 192
    s_add_u32 s54, s54, s52
    s_add_u32 s55, s54, 49152
    s_nop 7""")
    for mi in range(2):
        for a in range(3):
            P = 8 + (mi * 3 + a) * 4
            dA = ACC + ((2 * a) * 2 + mi) * 4
            dB = ACC + ((2 * a + 1) * 2 + mi) * 4
            e(f"""v_cvt_pk_bf16_f32 v{P}, v{dA}, v{dA+1}
            v_cvt_pk_bf16_f32 v{P+1}, v{dA+2}, v{dA+3}
            v_cvt_pk_bf16_f32 v{P+2}, v{dB}, v{dB+1}
            v_cvt_pk_bf16_f32 v{P+3}, v{dB+2}, v{dB+3}
            s_nop 1
            v_permlane16_swap_b32 v{P}, v{P+2}
            v_permlane16_swap_b32 v{P+1}, v{P+3}""")
            so = "s54" if mi == 0 else "s55"
            off = f" offset:{64*a}" if a else ""
            e("s_nop 1")
            e(f"buffer_store_dwordx4 v[{P}:{P+3}], v3, s[8:11], {so} offen{off}")
    stamp_flush(e, 4, 1)
    e.label("P2_end")
    e("s_endpgm")

def main(out):
    e = E()
    e.raw(HEADER.rstrip('\n'))
    e.raw(f"; @launch kernel=p1_kernel grid=(240,1,1) block=(768,1,1) lds={P1_LDS}")
    e.raw(f"; @launch kernel=p2_kernel grid=(256,1,1) block=(512,1,1) lds={P2_LDS}")
    e.raw('.amdgcn_target "amdgcn-amd-amdhsa--gfx950"')
    e.raw(".text")
    e.raw(".globl p1_kernel")
    e.raw(".globl p2_kernel")
    p1_kernel(e)
    p2_kernel(e)
    e.raw('.section .rodata,"a"')
    for name, vg, acc in (("p1_kernel", 144, 144), ("p2_kernel", 144, 144)):
        e.raw(".p2align 6")
        e.raw(f""".amdhsa_kernel {name}
  .amdhsa_next_free_vgpr {vg}
  .amdhsa_next_free_sgpr 96
  .amdhsa_accum_offset {acc}
  .amdhsa_group_segment_fixed_size 0
  .amdhsa_kernarg_size 72
  .amdhsa_user_sgpr_count 2
  .amdhsa_user_sgpr_kernarg_segment_ptr 1
  .amdhsa_system_sgpr_workgroup_id_x 1
  .amdhsa_float_denorm_mode_32 3
.end_amdhsa_kernel""")
    open(out, 'w').write(e.text())

if __name__ == '__main__':
    for a in sys.argv[2:]:
        if a == 'diag':
            DIAG = True
        elif '=' in a:
            k, v = a.split('=')
            OPT[k] = int(v)
    main(sys.argv[1] if len(sys.argv) > 1 else 'standalone__weight_only_int_quip__prompt.s')
```

```python
import sys

HEADER = open('standalone__weight_only_int_quip__prompt.s.ref').read().split('; Override launch')[0]

XR_WS = 0
T_WS = 2621440
WS_BYTES = 268435456
OPT = dict(ldprio=0, noload=0, nocomp=0, touch=1, tdelta=12, xdelta=6, nt=0, nttouch=0, xtouch=0, samek=0, dbg=0)

class E:
    def __init__(self):
        self.l = []
    def __call__(self, s):
        for line in s.strip('\n').split('\n'):
            t = line.strip()
            if OPT['noload'] and t.endswith(' lds'): continue
            if OPT['samek'] and (t.startswith('s_add_u32 s28, s28,') or t.startswith('s_add_u32 s27, s27,')): continue
            if OPT['nt'] and t.endswith(' lds') and ('s[8:11]' in t or 's[12:15]' in t): t = t[:-4] + ' nt lds'
            if OPT['nttouch'] and t.startswith('buffer_load_dword v'): t = t + ' nt'
            if OPT['nocomp'] and (t.startswith('ds_read') or t.startswith('v_mfma') or '_dpp' in t or t.startswith('v_cvt')): continue
            self.l.append('    ' + t)
    def label(self, s):
        self.l.append(s + ':')
    def raw(self, s):
        self.l.append(s)
    def text(self):
        return '\n'.join(self.l) + '\n'

DIAG = False
STAMP_WS = 64 << 20
def dbg_entry(e):
    if not OPT['dbg']: return
    e("""s_memrealtime s[90:91]
    s_load_dwordx2 s[92:93], s[0:1], 56
    s_waitcnt lgkmcnt(0)
    s_mov_b32 s88, s92
    s_and_b32 s89, s93, 0xffff
    s_not_b32 s94, s90
    s_mov_b32 s90, 256
    s_mov_b32 s91, 0x00020000""")
def dbg_exit(e):
    if not OPT['dbg']: return
    e("""s_waitcnt vmcnt(0)
    s_memrealtime s[92:93]
    s_waitcnt lgkmcnt(0)
    v_mov_b32 v2, 0
    v_mov_b32 v4, s94
    v_mov_b32 v5, s92
    s_mov_b64 exec, 1
    buffer_atomic_umax v4, v2, s[88:91], 0 offen
    buffer_atomic_umax v5, v2, s[88:91], 0 offen offset:4
    s_waitcnt vmcnt(0)""")

def stamp(e, i):
    if i == 0: dbg_entry(e)
    if not DIAG: return
    e(f"""s_memtime s[{64+4*i}:{65+4*i}]
    s_memrealtime s[{66+4*i}:{67+4*i}]
    s_waitcnt lgkmcnt(0)""")
def stamp_flush(e, n, kern):
    dbg_exit(e)
    if not DIAG: return
    e(f"""s_waitcnt vmcnt(0)""")
    stamp(e, n - 1)
    e(f"""s_lshl_b32 s60, s2, 4
    s_add_u32 s60, s60, s3
    s_lshl_b32 s60, s60, 7
    s_add_u32 s60, s60, {STAMP_WS + kern * (1 << 20)}
    v_mov_b32 v2, 0
    s_getreg_b32 s61, hwreg(HW_REG_XCC_ID)
    s_getreg_b32 s62, hwreg(HW_REG_HW_ID)
    v_mov_b32 v4, s61
    v_mov_b32 v5, s62
    buffer_store_dwordx2 v[4:5], v2, s[16:19], s60 offen offset:112
    s_waitcnt vmcnt(0)""")
    for i in range(n):
        e(f"""v_mov_b32 v4, s{64+4*i}
        v_mov_b32 v5, s{65+4*i}
        v_mov_b32 v6, s{66+4*i}
        v_mov_b32 v7, s{67+4*i}
        buffer_store_dwordx4 v[4:7], v2, s[16:19], s60 offen offset:{16*i}
        s_waitcnt vmcnt(0)""")

def srd(e, d, lo, nbytes):
    e(f"""s_mov_b32 s{d}, s{lo}
    s_and_b32 s{d+1}, s{lo+1}, 0xffff
    s_mov_b32 s{d+2}, {nbytes}
    s_mov_b32 s{d+3}, 0x00020000""")

T_S = 5
T_STAGE = 28672
T_QW = 0
T_V = 16384
T_ZS = T_S * T_STAGE
T_NST = 24
X_S = 4
X_STAGE = 32768
X_U = 0
X_X = 16384
X_NST = 10
P1_LDS = T_ZS + 12288

def loader_loop(e, L, nst, S, stage_bytes, npieces, issue):
    if OPT['ldprio']:
        e(f"s_setprio {OPT['ldprio']}")
    e("s_mov_b32 s29, 0")
    for s in range(S - 1):
        issue()
        e(f"s_add_u32 s29, s29, {stage_bytes}")
    e(f"s_mov_b32 s31, {nst - S + 1}")
    def rec():
        if DIAG:
            e("""s_memtime s[62:63]
            s_waitcnt lgkmcnt(0)
            v_mov_b32 v21, s62
            v_cmp_eq_u32 vcc, s61, v0
            s_nop 1
            v_cndmask_b32 v20, v20, v21, vcc
            s_add_u32 s61, s61, 1""")
    if DIAG:
        e("s_mov_b32 s61, 0\nv_mov_b32 v20, 0")
        rec()
    e.label(f"{L}_ldloop")
    e(f"s_waitcnt vmcnt({npieces*(S-2)})")
    e("s_barrier")
    rec()
    issue()
    e(f"""s_add_u32 s29, s29, {stage_bytes}
    s_cmp_ge_u32 s29, {S*stage_bytes}
    s_cselect_b32 s29, 0, s29
    s_sub_u32 s31, s31, 1
    s_cmp_lg_u32 s31, 0
    s_cbranch_scc1 {L}_ldloop""")
    for s in range(nst - S + 1, nst):
        e(f"s_waitcnt vmcnt({npieces*(nst-1-s)})")
        e("s_barrier")
        rec()
    if DIAG:
        kern = 1 if L == "YL" else 0
        e(f"""s_lshl_b32 s60, s2, 2
        s_add_u32 s60, s60, s50
        s_lshl_b32 s60, s60, 8
        s_add_u32 s60, s60, {STAMP_WS + (4 + kern) * (1 << 20)}
        v_lshlrev_b32 v21, 2, v0
        buffer_store_dword v20, v21, s[16:19], s60 offen""")
    e("s_endpgm")

def dequant_ops(R, ZS, P, A):
    ops = []
    for i in range(8):
        ops.append(f"v_cvt_f32_i32 v{R+i}, v{R+i}")
    for i in range(8):
        ops.append(f"v_add_f32_dpp v{R+i}, v{ZS}, v{R+i} row_newbcast:{i} row_mask:0xf bank_mask:0xf")
    for i in range(4):
        ops.append(f"v_cvt_pk_bf16_f32 v{P+i}, v{R+2*i}, v{R+2*i+1}")
    for i in range(4):
        ops.append(f"v_lshlrev_b32 v{R+2*i}, 16, v{P+i}")
        ops.append(f"v_and_b32 v{R+2*i+1}, 0xffff0000, v{P+i}")
    for i in range(8):
        ops.append(f"v_mul_f32_dpp v{R+i}, v{ZS}, v{R+i} row_newbcast:{8+i} row_mask:0xf bank_mask:0xf")
    for i in range(4):
        ops.append(f"v_cvt_pk_bf16_f32 v{A+i}, v{R+2*i}, v{R+2*i+1}")
    return ops

def t_loader(e):
    e("""s_sub_u32 s50, s3, 8
    v_and_b32 v60, 15, v0
    v_lshrrev_b32 v61, 4, v0
    s_mov_b32 s52, 6144""")
    for i in range(4):
        e(f"""v_add_u32 v62, {4*i}, v61
        v_mul_lo_u32 v63, v62, s52
        v_xor_b32 v62, v60, v62
        v_lshl_add_u32 v{1+i}, v62, 4, v63""")
        if i:
            e(f"v_subrev_u32 v{1+i}, {1024*i}, v{1+i}")
    e(f"""s_lshl_b32 s28, s6, 6
    s_lshl_b32 s51, s50, 4
    s_add_u32 s28, s28, s51
    s_mul_i32 s28, s28, 6144
    s_lshl_b32 s53, s50, 12
    s_add_u32 s53, s53, {T_QW}
    s_mov_b32 s52, 3072""")
    for j in range(3):
        e(f"""v_add_u32 v62, {64*j}, v0
        v_mul_u32_u24 v63, 171, v62
        v_lshrrev_b32 v63, 11, v63
        v_mul_u32_u24 v64, 12, v63
        v_sub_u32 v62, v62, v64
        v_lshrrev_b32 v64, 3, v63
        v_and_b32 v64, 1, v64
        v_lshlrev_b32 v64, 1, v64
        v_xor_b32 v62, v62, v64
        v_mul_lo_u32 v63, v63, s52
        v_lshl_add_u32 v{5+j}, v62, 4, v63""")
        if j:
            e(f"v_subrev_u32 v{5+j}, {1024*j}, v{5+j}")
    e(f"""s_mul_i32 s27, s50, 49152
    s_mul_i32 s51, s7, 192
    s_add_u32 s27, s27, s51
    s_mul_i32 s54, s50, 3072
    s_add_u32 s54, s54, {T_V}""")
    def issue():
        e("s_add_u32 m0, s29, s53")
        e("s_nop 0")
        for i in range(4):
            off = f" offset:{1024*i}" if i else ""
            e(f"buffer_load_dwordx4 v{1+i}, s[8:11], s28 offen{off} lds")
        e("s_add_u32 m0, s29, s54")
        e("s_add_u32 s28, s28, 256")
        for j in range(3):
            off = f" offset:{1024*j}" if j else ""
            e(f"buffer_load_dwordx4 v{5+j}, s[12:15], s27 offen{off} lds")
        e(f"s_add_u32 s27, s27, {64*3072}")
    loader_loop(e, "TL", T_NST, T_S, T_STAGE, 7, issue)

def tcheck(e, tag):
    e(f"""s_cmp_gt_u32 s26, s25
    s_cbranch_scc1 {tag}_nt
    s_cmp_ge_u32 s26, {T_NST}
    s_cbranch_scc1 {tag}_nt
    buffer_load_dword v2, v3, s[52:55], s27 offen
    s_add_u32 s26, s26, 10
    s_add_u32 s27, s27, s28""")
    e.label(f"{tag}_nt")

def t_consumer(e, par):
    L = f"TC{par}"
    e("""s_and_b32 s50, s3, 3
    v_and_b32 v60, 15, v0          ; c
    v_lshrrev_b32 v61, 4, v0        ; q""")
    if par == 0:
        e(f"""s_cmp_ge_u32 s3, 3
        s_cbranch_scc1 {L}_nozs
        s_lshl_b32 s51, s3, 10
        v_lshlrev_b32 v62, 4, v0
        v_add_u32 v62, s51, v62
        buffer_load_dwordx4 v[64:67], v62, s[20:23], 0 offen
        buffer_load_dwordx4 v[68:71], v62, s[24:27], 0 offen
        s_waitcnt vmcnt(0)""")
        for i in range(4):
            e(f"""v_lshlrev_b32 v{16+2*i}, 16, v{64+i}
            v_and_b32 v{17+2*i}, 0xffff0000, v{64+i}
            v_lshlrev_b32 v{24+2*i}, 16, v{68+i}
            v_and_b32 v{25+2*i}, 0xffff0000, v{68+i}""")
        for i in range(8):
            e(f"v_xor_b32 v{16+i}, 0x80000000, v{16+i}")
        e(f"""s_lshl_b32 s51, s3, 12
        v_lshlrev_b32 v62, 6, v0
        v_add_u32 v62, s51, v62
        v_add_u32 v62, {T_ZS}, v62
        ds_write_b128 v62, v[16:19]
        ds_write_b128 v62, v[20:23] offset:16
        ds_write_b128 v62, v[24:27] offset:32
        ds_write_b128 v62, v[28:31] offset:48
        s_waitcnt lgkmcnt(0)""")
        e.label(f"{L}_nozs")
    if OPT['touch']:
        e(f"""s_lshl_b32 s51, s5, 3
        s_add_u32 s51, s51, s3
        s_lshr_b32 s26, s51, 4          ; sigma0
        s_and_b32 s51, s51, 15          ; u
        s_cmp_ge_u32 s51, 10
        s_cbranch_scc1 {L}_tv
        s_lshl_b32 s51, s51, 6
        v_add_u32 v62, s51, v0          ; t
        v_lshrrev_b32 v63, 1, v62       ; row
        v_and_b32 v62, 1, v62
        s_mov_b32 s53, 6144
        v_mul_lo_u32 v63, v63, s53
        v_lshl_add_u32 v3, v62, 7, v63
        s_and_b32 s27, s4, 1
        s_mul_i32 s27, s27, {320*6144}
        s_lshl_b32 s52, s26, 8
        s_add_u32 s27, s27, s52
        s_mov_b32 s28, 2560
        s_mov_b32 s52, s34
        s_and_b32 s53, s35, 0xffff
        s_mov_b32 s54, 3932160
        s_mov_b32 s55, 0x00020000
        s_branch {L}_td""")
        e.label(f"{L}_tv")
        e(f"""s_sub_u32 s51, s51, 10
        s_lshl_b32 s51, s51, 6
        v_add_u32 v62, s51, v0          ; t in 0..383
        v_mul_u32_u24 v63, 171, v62
        v_lshrrev_b32 v63, 10, v63      ; row = t/6
        v_mul_u32_u24 v64, 6, v63
        v_sub_u32 v62, v62, v64
        s_mov_b32 s53, 3072
        v_mul_lo_u32 v63, v63, s53
        v_lshl_add_u32 v3, v62, 7, v63
        s_lshr_b32 s27, s4, 1
        s_mul_i32 s27, s27, 768
        s_mul_i32 s52, s26, {64*3072}
        s_add_u32 s27, s27, s52
        s_mov_b32 s28, {640*3072}
        s_mov_b32 s52, s42
        s_and_b32 s53, s43, 0xffff
        s_mov_b32 s54, 4718592
        s_mov_b32 s55, 0x00020000""")
        e.label(f"{L}_td")
        e(f"""s_cmp_ge_u32 s26, {T_S-1}
        s_cbranch_scc1 {L}_t0
        s_add_u32 s26, s26, 10
        s_add_u32 s27, s27, s28""")
        e.label(f"{L}_t0")
        e(f"s_mov_b32 s25, {OPT['tdelta'] + par}      ; s + delta")
        tcheck(e, L + "p0")
        tcheck(e, L + "p1")
    e(f"""v_lshlrev_b32 v62, 1, v61
    v_xor_b32 v62, v62, v60
    v_lshlrev_b32 v62, 4, v62
    v_lshl_add_u32 v62, v60, 8, v62
    s_lshl_b32 s51, s50, 12
    s_add_u32 s51, s51, {T_QW}
    v_add_u32 v5, s51, v62
    v_xor_b32 v6, 16, v5
    v_xor_b32 v7, 128, v5
    v_xor_b32 v8, 144, v5
    v_lshlrev_b32 v9, 2, v0
    v_add_u32 v9, {T_ZS + 512*par}, v9""")
    e(f"""v_lshrrev_b32 v62, 2, v60        ; r
    v_lshl_add_u32 v62, v61, 3, v62  ; 8q + r
    v_mul_u32_u24 v62, 192, v62
    v_and_b32 v63, 3, v60
    v_lshl_add_u32 v62, v63, 3, v62
    v_add_u32 v62, {T_V}, v62
    v_and_b32 v63, 1, v61
    v_lshl_add_u32 v10, v63, 5, v62
    v_xor_b32 v63, 1, v63
    v_lshl_add_u32 v11, v63, 5, v62""")
    ACC = 120
    RAW = [24, 32]
    ZS = [40, 41]
    P = 44
    A = [48, 52]
    B = [64, 88]
    for i in range(24):
        e(f"v_mov_b32 v{ACC+i}, 0")
    e(f"s_mov_b32 s30, {T_STAGE*par}")
    e("s_mov_b32 s31, 12")
    stamp(e, 1)
    if par == 1:
        e("s_barrier")
    e.label(f"{L}_loop")
    e("s_barrier")
    for i in range(4):
        e(f"v_add_u32 v{12+i}, s30, v{5+i}")
    e("""v_add_u32 v16, s30, v10
    v_add_u32 v17, s30, v11""")
    e(f"""ds_read_b128 v[{RAW[0]}:{RAW[0]+3}], v12
    ds_read_b128 v[{RAW[0]+4}:{RAW[0]+7}], v13
    ds_read_b32 v{ZS[0]}, v9
    ds_read_b128 v[{RAW[1]}:{RAW[1]+3}], v14
    ds_read_b128 v[{RAW[1]+4}:{RAW[1]+7}], v15
    ds_read_b32 v{ZS[1]}, v9 offset:256""")
    def trs(kh):
        for gt in range(6):
            a = 16 if gt % 2 == 0 else 17
            off = 64 * (gt // 2) + kh * 32 * 192
            e(f"ds_read_b64_tr_b16 v[{B[kh]+4*gt}:{B[kh]+4*gt+1}], v{a} offset:{off}")
            e(f"ds_read_b64_tr_b16 v[{B[kh]+4*gt+2}:{B[kh]+4*gt+3}], v{a} offset:{off+768}")
    trl = []
    for kh in range(2):
        for gt in range(6):
            a = 16 if gt % 2 == 0 else 17
            off = 64 * (gt // 2) + kh * 32 * 192
            trl.append(f"ds_read_b64_tr_b16 v[{B[kh]+4*gt}:{B[kh]+4*gt+1}], v{a} offset:{off}")
            trl.append(f"ds_read_b64_tr_b16 v[{B[kh]+4*gt+2}:{B[kh]+4*gt+3}], v{a} offset:{off+768}")
    for r in trl[:6]:
        e(r)
    e(f"""v_add_u32 v9, 1024, v9
    s_add_u32 s30, s30, {2*T_STAGE}
    s_cmp_ge_u32 s30, {T_S*T_STAGE}
    s_cselect_b32 s51, {T_S*T_STAGE}, 0
    s_sub_u32 s30, s30, s51
    s_waitcnt lgkmcnt(9)""")
    d0 = dequant_ops(RAW[0], ZS[0], P, A[0])
    ti = 6
    for i, op in enumerate(d0):
        e(op)
        if i % 2 == 1 and ti < 24:
            e(trl[ti]); ti += 1
    assert ti == 24
    e("s_waitcnt lgkmcnt(0)")
    e("s_barrier")
    if OPT['touch']:
        e("s_add_u32 s25, s25, 2")
        tcheck(e, L + "l")
    d1 = dequant_ops(RAW[1], ZS[1], P, A[1])
    k = 0
    for gt in range(6):
        e(f"v_mfma_f32_16x16x32_bf16 v[{ACC+4*gt}:{ACC+4*gt+3}], v[{A[0]}:{A[0]+3}], v[{B[0]+4*gt}:{B[0]+4*gt+3}], v[{ACC+4*gt}:{ACC+4*gt+3}]")
        for op in d1[k:k+7]:
            e(op)
        k += 7
    e("s_nop 1")
    for gt in range(6):
        e(f"v_mfma_f32_16x16x32_bf16 v[{ACC+4*gt}:{ACC+4*gt+3}], v[{A[1]}:{A[1]+3}], v[{B[1]+4*gt}:{B[1]+4*gt+3}], v[{ACC+4*gt}:{ACC+4*gt+3}]")
    e(f"""s_sub_u32 s31, s31, 1
    s_cmp_lg_u32 s31, 0
    s_cbranch_scc1 {L}_loop""")
    stamp(e, 2)
    e("""v_lshlrev_b32 v14, 4, v0
    s_mul_i32 s51, s50, 6144
    v_add_u32 v14, s51, v14
    v_lshlrev_b32 v15, 4, v0
    s_nop 7""")
    if par == 0:
        e("s_barrier")
        for gt in range(6):
            e(f"ds_write_b128 v14, v[{ACC+4*gt}:{ACC+4*gt+3}] offset:{1024*gt}")
        e("s_waitcnt lgkmcnt(0)")
        e("s_barrier")
    else:
        e(f"""s_lshl_b32 s51, s6, 2
        s_add_u32 s51, s51, s50
        s_lshr_b32 s52, s51, 1
        s_and_b32 s51, s51, 1
        s_lshl_b32 s51, s51, 3
        s_mul_i32 s54, s7, 120
        s_add_u32 s54, s54, s52
        s_lshl_b32 s54, s54, 10
        s_add_u32 s54, s54, s51
        s_add_u32 s54, s54, {T_WS}""")
        e("s_barrier")
        for gt in range(6):
            e(f"ds_read_b128 v[{64+4*gt}:{67+4*gt}], v14 offset:{1024*gt}")
        for gt in range(6):
            e(f"s_waitcnt lgkmcnt({5-gt})")
            for r in range(4):
                e(f"v_add_f32 v{ACC+4*gt+r}, v{ACC+4*gt+r}, v{64+4*gt+r}")
            e(f"v_cvt_pk_bf16_f32 v{24+2*gt}, v{ACC+4*gt}, v{ACC+4*gt+1}")
            e(f"v_cvt_pk_bf16_f32 v{25+2*gt}, v{ACC+4*gt+2}, v{ACC+4*gt+3}")
            e(f"buffer_store_dwordx2 v[{24+2*gt}:{25+2*gt}], v15, s[16:19], s54 offen")
            e(f"s_add_u32 s54, s54, 20480")
    stamp_flush(e, 4, 0)
    e("s_endpgm")

def x_loader(e):
    e("""s_sub_u32 s50, s3, 8
    v_and_b32 v60, 15, v0
    v_lshrrev_b32 v61, 4, v0
    s_mov_b32 s52, 1280""")
    for i in range(4):
        e(f"""v_add_u32 v62, {4*i}, v61
        v_mul_lo_u32 v63, v62, s52
        v_or_b32 v62, {((i>>1)&1)<<2}, v61
        v_lshlrev_b32 v62, 1, v62
        v_xor_b32 v62, v60, v62
        v_lshl_add_u32 v{1+i}, v62, 4, v63""")
        if i:
            e(f"v_subrev_u32 v{1+i}, {1024*i}, v{1+i}")
    e(f"""s_mul_i32 s28, s50, 20480
    s_lshl_b32 s51, s6, 8
    s_add_u32 s28, s28, s51
    s_lshl_b32 s53, s50, 12
    s_add_u32 s53, s53, {X_U}""")
    for i in range(4):
        e(f"""v_lshrrev_b32 v62, 3, v0
        v_add_u32 v62, {8*i}, v62
        v_mul_lo_u32 v63, v62, s52
        v_add_u32 v62, {4*i}, v61
        v_and_b32 v62, 7, v62
        v_and_b32 v64, 7, v0
        v_xor_b32 v62, v64, v62
        v_lshl_add_u32 v{5+i}, v62, 4, v63""")
        if i:
            e(f"v_subrev_u32 v{5+i}, {1024*i}, v{5+i}")
    e(f"""s_lshl_b32 s27, s7, 7
    s_lshl_b32 s51, s50, 5
    s_add_u32 s27, s27, s51
    s_mul_i32 s27, s27, 1280
    s_lshl_b32 s54, s50, 12
    s_add_u32 s54, s54, {X_X}""")
    def issue():
        e("s_add_u32 m0, s29, s53")
        e("s_nop 0")
        for i in range(4):
            off = f" offset:{1024*i}" if i else ""
            e(f"buffer_load_dwordx4 v{1+i}, s[8:11], s28 offen{off} lds")
        e("s_add_u32 m0, s29, s54")
        e(f"s_add_u32 s28, s28, {64*1280}")
        for i in range(4):
            off = f" offset:{1024*i}" if i else ""
            e(f"buffer_load_dwordx4 v{5+i}, s[12:15], s27 offen{off} lds")
        e("s_add_u32 s27, s27, 128")
    loader_loop(e, "XL", X_NST, X_S, X_STAGE, 8, issue)

def x_consumer(e):
    L = "XC"
    if OPT['xtouch']:
        for rnd in range(2):
            e(f"""s_lshl_b32 s51, s5, 3
            s_add_u32 s51, s51, s3
            s_add_u32 s51, s51, {42 + 80*rnd}
            s_cmp_ge_u32 s51, 140
            s_cbranch_scc1 {L}_td{rnd}
            s_mul_i32 s52, s51, 147
            s_lshr_b32 s52, s52, 11         ; stage = p/14
            s_mul_i32 s53, s52, 14
            s_sub_u32 s51, s51, s53         ; u
            s_cmp_ge_u32 s51, 4
            s_cbranch_scc1 {L}_tu{rnd}
            s_lshl_b32 s51, s51, 6
            v_add_u32 v62, s51, v0          ; row
            s_mov_b32 s53, 1280
            v_mul_lo_u32 v62, v62, s53
            s_mul_i32 s53, s4, {256*1280}
            s_lshl_b32 s52, s52, 7
            s_add_u32 s53, s53, s52
            buffer_load_dword v{1+rnd}, v62, s[12:15], s53 offen
            s_branch {L}_td{rnd}""")
            e.label(f"{L}_tu{rnd}")
            e(f"""s_sub_u32 s51, s51, 4
            s_lshl_b32 s51, s51, 13
            v_lshlrev_b32 v62, 7, v0
            s_mul_i32 s52, s52, {64*1280}
            s_add_u32 s53, s51, s52
            buffer_load_dword v{1+rnd}, v62, s[8:11], s53 offen""")
            e.label(f"{L}_td{rnd}")
    e("""v_and_b32 v60, 15, v0          ; c
    v_lshrrev_b32 v61, 4, v0        ; q
    s_and_b32 s56, s3, 1
    s_lshr_b32 s57, s3, 1
    v_lshrrev_b32 v62, 2, v60        ; r
    v_and_b32 v63, 1, v61
    v_lshl_add_u32 v63, v63, 2, v62  ; g
    v_lshl_add_u32 v62, v61, 3, v62  ; 8q+r
    v_lshlrev_b32 v62, 8, v62
    v_and_b32 v64, 3, v60
    v_lshl_add_u32 v62, v64, 3, v62
    s_lshl_b32 s51, s56, 2""")
    for a in range(4):
        e(f"""s_add_u32 s58, s51, {a}
        v_xor_b32 v64, s58, v63
        v_lshl_add_u32 v{5+a}, v64, 5, v62""")
        if X_U:
            e(f"v_add_u32 v{5+a}, {X_U}, v{5+a}")
    e(f"""v_lshrrev_b32 v62, 1, v60
    v_xor_b32 v62, v62, v61
    v_lshlrev_b32 v62, 4, v62
    v_lshl_add_u32 v62, v60, 7, v62
    s_lshl_b32 s51, s57, 12
    s_add_u32 s51, s51, {X_X}
    v_add_u32 v9, s51, v62
    v_xor_b32 v10, 64, v9""")
    for i in range(32):
        e(f"v_mov_b32 v{96+i}, 0")
    e("s_mov_b32 s30, 0")
    e(f"s_mov_b32 s31, {X_NST}")
    stamp(e, 1)
    e.label(f"{L}_loop")
    e("s_barrier")
    for a in range(6):
        e(f"v_add_u32 v{11+a}, s30, v{5+a}")
    e(f"""s_add_u32 s30, s30, {X_STAGE}
    s_cmp_ge_u32 s30, {X_S*X_STAGE}
    s_cselect_b32 s30, 0, s30""")
    for kh in range(2):
        base = 32 + 32 * kh
        for a in range(4):
            e(f"ds_read_b64_tr_b16 v[{base+4*a}:{base+4*a+1}], v{11+a} offset:{8192*kh}")
            e(f"ds_read_b64_tr_b16 v[{base+4*a+2}:{base+4*a+3}], v{11+a} offset:{8192*kh+1024}")
        for mt in range(2):
            e(f"ds_read_b128 v[{base+16+4*mt}:{base+19+4*mt}], v{15+kh} offset:{2048*mt}")
    for kh in range(2):
        base = 32 + 32 * kh
        e(f"s_waitcnt lgkmcnt({10 if kh == 0 else 0})")
        for a in range(4):
            for mt in range(2):
                d = 96 + 8 * a + 4 * mt
                e(f"v_mfma_f32_16x16x32_bf16 v[{d}:{d+3}], v[{base+4*a}:{base+4*a+3}], v[{base+16+4*mt}:{base+19+4*mt}], v[{d}:{d+3}]")
    e(f"""s_sub_u32 s31, s31, 1
    s_cmp_lg_u32 s31, 0
    s_cbranch_scc1 {L}_loop""")
    stamp(e, 2)
    e(f"""s_lshl_b32 s51, s7, 3
    s_lshl_b32 s52, s57, 1
    s_add_u32 s51, s51, s52
    s_mul_i32 s51, s51, 20
    s_lshl_b32 s52, s6, 2
    s_add_u32 s51, s51, s52
    s_lshl_b32 s52, s56, 1
    s_add_u32 s51, s51, s52
    s_lshl_b32 s54, s51, 10
    s_add_u32 s54, s54, {XR_WS}
    s_add_u32 s55, s54, 20480
    v_lshlrev_b32 v62, 4, v0
    s_nop 7""")
    for mt in range(2):
        for kb in range(2):
            P = 32 + 8 * mt + 4 * kb
            d0 = 96 + 8 * (2 * kb) + 4 * mt
            d1 = 96 + 8 * (2 * kb + 1) + 4 * mt
            e(f"""v_cvt_pk_bf16_f32 v{P}, v{d0}, v{d0+1}
            v_cvt_pk_bf16_f32 v{P+1}, v{d0+2}, v{d0+3}
            v_cvt_pk_bf16_f32 v{P+2}, v{d1}, v{d1+1}
            v_cvt_pk_bf16_f32 v{P+3}, v{d1+2}, v{d1+3}""")
            so = "s54" if mt == 0 else "s55"
            off = f" offset:{1024*kb}" if kb else ""
            e(f"buffer_store_dwordx4 v[{P}:{P+3}], v62, s[16:19], {so} offen{off}")
    stamp_flush(e, 4, 0)
    e("s_endpgm")

def p1_kernel(e):
    e.raw(".p2align 8")
    e.raw(".type p1_kernel,@function")
    e.label("p1_kernel")
    e("""s_cmp_ge_u32 s2, 240
    s_cbranch_scc1 P1_end""")
    stamp(e, 0)
    e("""s_load_dwordx16 s[32:47], s[0:1], 0
    s_load_dwordx2 s[48:49], s[0:1], 64
    v_lshrrev_b32 v1, 6, v0
    v_and_b32 v0, 63, v0
    s_and_b32 s4, s2, 7
    s_lshr_b32 s5, s2, 3
    v_readfirstlane_b32 s3, v1
    s_waitcnt lgkmcnt(0)""")
    srd(e, 16, 48, WS_BYTES)
    e("""s_cmp_ge_u32 s5, 20
    s_cbranch_scc1 P1_x""")
    e("""s_mul_i32 s7, s5, 52
    s_lshr_b32 s7, s7, 8          ; i/5
    s_mul_i32 s51, s7, 5
    s_sub_u32 s6, s5, s51         ; i%5
    s_and_b32 s51, s4, 1
    s_mul_i32 s51, s51, 5
    s_add_u32 s6, s6, s51
    s_lshr_b32 s51, s4, 1
    s_lshl_b32 s51, s51, 2
    s_add_u32 s7, s7, s51""")
    srd(e, 8, 34, 3932160)
    srd(e, 12, 42, 4718592)
    e("""s_cmp_ge_u32 s3, 8
    s_cbranch_scc1 P1_tl
    s_cmp_ge_u32 s3, 4
    s_cbranch_scc1 P1_tc1""")
    srd(e, 20, 38, 3072)
    srd(e, 24, 36, 3072)
    t_consumer(e, 0)
    e.label("P1_tc1")
    t_consumer(e, 1)
    e.label("P1_tl")
    t_loader(e)
    e.label("P1_x")
    e("""s_sub_u32 s5, s5, 20
    s_cmp_ge_u32 s5, 5
    s_cselect_b32 s51, 1, 0
    s_mul_i32 s52, s51, 5
    s_sub_u32 s6, s5, s52
    s_lshl_b32 s7, s4, 1
    s_add_u32 s7, s7, s51""")
    srd(e, 8, 40, 819200)
    srd(e, 12, 32, 2621440)
    e("""s_cmp_ge_u32 s3, 8
    s_cbranch_scc1 P1_xl""")
    x_consumer(e)
    e.label("P1_xl")
    x_loader(e)
    e.label("P1_end")
    e("s_endpgm")

Y_S = 5
Y_STAGE = 28672
Y_NST = 10
P2_LDS = Y_S * Y_STAGE

def p2_kernel(e):
    e.raw(".p2align 8")
    e.raw(".type p2_kernel,@function")
    e.label("p2_kernel")
    e("""s_cmp_ge_u32 s2, 256
    s_cbranch_scc1 P2_end""")
    stamp(e, 0)
    e("""s_load_dwordx2 s[44:45], s[0:1], 48
    s_load_dwordx2 s[48:49], s[0:1], 64
    v_lshrrev_b32 v1, 6, v0
    v_and_b32 v0, 63, v0
    s_and_b32 s4, s2, 7
    s_lshr_b32 s5, s2, 3
    v_readfirstlane_b32 s3, v1
    v_lshlrev_b32 v1, 4, v0""")
    e("""s_and_b32 s6, s4, 3
    s_lshl_b32 s6, s6, 2
    s_and_b32 s51, s5, 3
    s_add_u32 s6, s6, s51
    s_lshr_b32 s7, s4, 2
    s_lshl_b32 s7, s7, 3
    s_lshr_b32 s51, s5, 2
    s_add_u32 s7, s7, s51
    s_cmp_ge_u32 s3, 4
    s_cbranch_scc0 P2_c""")
    e(f"""s_sub_u32 s50, s3, 4
    s_and_b32 s51, s50, 1
    s_lshr_b32 s52, s50, 1           ; kk
    s_mul_i32 s53, s52, 14336
    s_mul_i32 s55, s51, 3072
    s_add_u32 s54, s53, 6144
    s_add_u32 s53, s53, s55          ; T lds base
    s_lshl_b32 s55, s51, 12
    s_add_u32 s54, s54, s55          ; xr lds base
    s_mul_i32 s55, s51, 3
    s_mul_i32 s56, s7, 6
    s_add_u32 s55, s55, s56
    s_mul_i32 s55, s55, 20
    s_add_u32 s55, s55, s52
    s_lshl_b32 s28, s55, 10
    s_add_u32 s28, s28, {T_WS}
    s_lshl_b32 s55, s51, 2
    s_lshl_b32 s56, s6, 3
    s_add_u32 s55, s55, s56
    s_mul_i32 s55, s55, 20
    s_add_u32 s55, s55, s52
    s_lshl_b32 s27, s55, 10
    s_add_u32 s27, s27, {XR_WS}""")
    for i in range(1, 4):
        e(f"v_add_u32 v{1+i}, {19456*i}, v1")
    e("s_waitcnt lgkmcnt(0)")
    srd(e, 16, 48, WS_BYTES)
    def issue():
        e("s_add_u32 m0, s29, s53")
        e("s_nop 0")
        for i in range(3):
            off = f" offset:{1024*i}" if i else ""
            e(f"buffer_load_dwordx4 v{1+i}, s[16:19], s28 offen{off} lds")
        e("s_add_u32 m0, s29, s54")
        e("s_add_u32 s28, s28, 2048")
        for i in range(4):
            off = f" offset:{1024*i}" if i else ""
            e(f"buffer_load_dwordx4 v{1+i}, s[16:19], s27 offen{off} lds")
        e("s_add_u32 s27, s27, 2048")
    loader_loop(e, "YL", Y_NST, Y_S, Y_STAGE, 7, issue)
    e.label("P2_c")
    ACC = 64
    FB = [8, 112]
    for i in range(48):
        e(f"v_mov_b32 v{ACC+i}, 0")
    e("""s_lshl_b32 s51, s3, 11
    s_add_u32 s51, s51, 6144
    v_add_u32 v2, s51, v1
    s_waitcnt lgkmcnt(0)""")
    srd(e, 16, 48, WS_BYTES)
    srd(e, 8, 44, 6291456)
    e("s_mov_b32 s30, 0")

    def rlist(kk, b):
        l = []
        for mi in range(2):
            l.append(f"ds_read_b128 v[{b+24+4*mi}:{b+27+4*mi}], v4 offset:{kk*14336 + mi*1024}")
        for gt in range(6):
            l.append(f"ds_read_b128 v[{b+4*gt}:{b+4*gt+3}], v3 offset:{kk*14336 + gt*1024}")
        return l

    def block(b, rl):
        i = 0
        for gt in range(6):
            for mi in range(2):
                d = ACC + (gt * 2 + mi) * 4
                e(f"v_mfma_f32_16x16x32_bf16 v[{d}:{d+3}], v[{b+4*gt}:{b+4*gt+3}], v[{b+24+4*mi}:{b+27+4*mi}], v[{d}:{d+3}]")
                if i < len(rl):
                    e(rl[i]); i += 1

    def newslot():
        e(f"""v_add_u32 v3, s30, v1
        v_add_u32 v4, s30, v2
        s_add_u32 s30, s30, {Y_STAGE}
        s_cmp_ge_u32 s30, {Y_S*Y_STAGE}
        s_cselect_b32 s30, 0, s30""")

    e("s_barrier")
    stamp(e, 1)
    newslot()
    for r in rlist(0, FB[0]):
        e(r)
    e(f"s_mov_b32 s31, {Y_NST-1}")
    e.label("P2_loop")
    e("s_waitcnt lgkmcnt(0)")
    block(FB[0], rlist(1, FB[1]))
    e("s_waitcnt lgkmcnt(0)")
    e("s_barrier")
    newslot()
    block(FB[1], rlist(0, FB[0]))
    e("""s_sub_u32 s31, s31, 1
    s_cmp_lg_u32 s31, 0
    s_cbranch_scc1 P2_loop""")
    e("s_waitcnt lgkmcnt(0)")
    block(FB[0], rlist(1, FB[1]))
    e("s_waitcnt lgkmcnt(0)")
    block(FB[1], [])
    stamp(e, 2)
    e("""v_and_b32 v3, 15, v0
    v_lshrrev_b32 v4, 4, v0
    s_mov_b32 s52, 3072
    v_mul_lo_u32 v3, v3, s52
    v_and_b32 v5, 1, v4
    v_lshrrev_b32 v4, 1, v4
    v_lshlrev_b32 v5, 5, v5
    v_lshl_add_u32 v5, v4, 4, v5
    v_add_u32 v3, v3, v5
    s_lshl_b32 s51, s6, 7
    s_lshl_b32 s52, s3, 5
    s_add_u32 s51, s51, s52
    s_mul_i32 s54, s51, 3072
    s_mul_i32 s52, s7, 192
    s_add_u32 s54, s54, s52
    s_add_u32 s55, s54, 49152
    s_nop 7""")
    for mi in range(2):
        for a in range(3):
            P = 8 + (mi * 3 + a) * 4
            dA = ACC + ((2 * a) * 2 + mi) * 4
            dB = ACC + ((2 * a + 1) * 2 + mi) * 4
            e(f"""v_cvt_pk_bf16_f32 v{P}, v{dA}, v{dA+1}
            v_cvt_pk_bf16_f32 v{P+1}, v{dA+2}, v{dA+3}
            v_cvt_pk_bf16_f32 v{P+2}, v{dB}, v{dB+1}
            v_cvt_pk_bf16_f32 v{P+3}, v{dB+2}, v{dB+3}
            s_nop 1
            v_permlane16_swap_b32 v{P}, v{P+2}
            v_permlane16_swap_b32 v{P+1}, v{P+3}""")
            so = "s54" if mi == 0 else "s55"
            off = f" offset:{64*a}" if a else ""
            e("s_nop 1")
            e(f"buffer_store_dwordx4 v[{P}:{P+3}], v3, s[8:11], {so} offen{off}")
    stamp_flush(e, 4, 1)
    e.label("P2_end")
    e("s_endpgm")

def main(out):
    e = E()
    e.raw(HEADER.rstrip('\n'))
    e.raw(f"; @launch kernel=p1_kernel grid=(240,1,1) block=(768,1,1) lds={P1_LDS}")
    e.raw(f"; @launch kernel=p2_kernel grid=(256,1,1) block=(512,1,1) lds={P2_LDS}")
    e.raw('.amdgcn_target "amdgcn-amd-amdhsa--gfx950"')
    e.raw(".text")
    e.raw(".globl p1_kernel")
    e.raw(".globl p2_kernel")
    p1_kernel(e)
    p2_kernel(e)
    e.raw('.section .rodata,"a"')
    for name, vg, acc in (("p1_kernel", 144, 144), ("p2_kernel", 144, 144)):
        e.raw(".p2align 6")
        e.raw(f""".amdhsa_kernel {name}
  .amdhsa_next_free_vgpr {vg}
  .amdhsa_next_free_sgpr 96
  .amdhsa_accum_offset {acc}
  .amdhsa_group_segment_fixed_size 0
  .amdhsa_kernarg_size 72
  .amdhsa_user_sgpr_count 2
  .amdhsa_user_sgpr_kernarg_segment_ptr 1
  .amdhsa_system_sgpr_workgroup_id_x 1
  .amdhsa_float_denorm_mode_32 3
.end_amdhsa_kernel""")
    open(out, 'w').write(e.text())

if __name__ == '__main__':
    for a in sys.argv[2:]:
        if a == 'diag':
            DIAG = True
        elif '=' in a:
            k, v = a.split('=')
            OPT[k] = int(v)
    main(sys.argv[1] if len(sys.argv) > 1 else 'standalone__weight_only_int_quip__prompt.s')
```

```python
import sys

HEADER = open('standalone__weight_only_int_quip__prompt.s.ref').read().split('; Override launch')[0]

XR_WS = 0
T_WS = 2621440
WS_BYTES = 268435456
OPT = dict(ldprio=0, noload=0, nocomp=0, touch=1, tdelta=12, xdelta=6, nt=0, nttouch=0, xtouch=0, samek=0, dbg=0)

class E:
    def __init__(self):
        self.l = []
    def __call__(self, s):
        for line in s.strip('\n').split('\n'):
            t = line.strip()
            if OPT['noload'] and t.endswith(' lds'): continue
            if OPT['samek'] and (t.startswith('s_add_u32 s28, s28,') or t.startswith('s_add_u32 s27, s27,')): continue
            if OPT['nt'] and t.endswith(' lds') and ('s[8:11]' in t or 's[12:15]' in t): t = t[:-4] + ' nt lds'
            if OPT['nttouch'] and t.startswith('buffer_load_dword v'): t = t + ' nt'
            if OPT['nocomp'] and (t.startswith('ds_read') or t.startswith('v_mfma') or '_dpp' in t or t.startswith('v_cvt')): continue
            self.l.append('    ' + t)
    def label(self, s):
        self.l.append(s + ':')
    def raw(self, s):
        self.l.append(s)
    def text(self):
        return '\n'.join(self.l) + '\n'

DIAG = False
STAMP_WS = 64 << 20
def dbg_entry(e):
    if not OPT['dbg']: return
    e("""s_memrealtime s[90:91]
    s_load_dwordx2 s[92:93], s[0:1], 56
    s_waitcnt lgkmcnt(0)
    s_mov_b32 s88, s92
    s_and_b32 s89, s93, 0xffff
    s_not_b32 s94, s90
    s_mov_b32 s90, 256
    s_mov_b32 s91, 0x00020000""")
def dbg_exit(e):
    if not OPT['dbg']: return
    e("""s_waitcnt vmcnt(0)
    s_memrealtime s[92:93]
    s_waitcnt lgkmcnt(0)
    v_mov_b32 v2, 0
    v_mov_b32 v4, s94
    v_mov_b32 v5, s92
    s_mov_b64 exec, 1
    buffer_atomic_umax v4, v2, s[88:91], 0 offen
    buffer_atomic_umax v5, v2, s[88:91], 0 offen offset:4
    s_waitcnt vmcnt(0)""")

CUR_K = [0]
def stamp(e, i):
    if i == 0 and OPT['dbg'] == CUR_K[0] + 1: dbg_entry(e)
    if not DIAG: return
    e(f"""s_memtime s[{64+4*i}:{65+4*i}]
    s_memrealtime s[{66+4*i}:{67+4*i}]
    s_waitcnt lgkmcnt(0)""")
def stamp_flush(e, n, kern):
    if OPT['dbg'] == kern + 1: dbg_exit(e)
    if not DIAG: return
    e(f"""s_waitcnt vmcnt(0)""")
    stamp(e, n - 1)
    e(f"""s_lshl_b32 s60, s2, 4
    s_add_u32 s60, s60, s3
    s_lshl_b32 s60, s60, 7
    s_add_u32 s60, s60, {STAMP_WS + kern * (1 << 20)}
    v_mov_b32 v2, 0
    s_getreg_b32 s61, hwreg(HW_REG_XCC_ID)
    s_getreg_b32 s62, hwreg(HW_REG_HW_ID)
    v_mov_b32 v4, s61
    v_mov_b32 v5, s62
    buffer_store_dwordx2 v[4:5], v2, s[16:19], s60 offen offset:112
    s_waitcnt vmcnt(0)""")
    for i in range(n):
        e(f"""v_mov_b32 v4, s{64+4*i}
        v_mov_b32 v5, s{65+4*i}
        v_mov_b32 v6, s{66+4*i}
        v_mov_b32 v7, s{67+4*i}
        buffer_store_dwordx4 v[4:7], v2, s[16:19], s60 offen offset:{16*i}
        s_waitcnt vmcnt(0)""")

def srd(e, d, lo, nbytes):
    e(f"""s_mov_b32 s{d}, s{lo}
    s_and_b32 s{d+1}, s{lo+1}, 0xffff
    s_mov_b32 s{d+2}, {nbytes}
    s_mov_b32 s{d+3}, 0x00020000""")

T_S = 5
T_STAGE = 28672
T_QW = 0
T_V = 16384
T_ZS = T_S * T_STAGE
T_NST = 24
X_S = 4
X_STAGE = 32768
X_U = 0
X_X = 16384
X_NST = 10
P1_LDS = T_ZS + 12288

def loader_loop(e, L, nst, S, stage_bytes, npieces, issue):
    if OPT['ldprio']:
        e(f"s_setprio {OPT['ldprio']}")
    e("s_mov_b32 s29, 0")
    for s in range(S - 1):
        issue()
        e(f"s_add_u32 s29, s29, {stage_bytes}")
    e(f"s_mov_b32 s31, {nst - S + 1}")
    def rec():
        if DIAG:
            e("""s_memtime s[62:63]
            s_waitcnt lgkmcnt(0)
            v_mov_b32 v21, s62
            v_cmp_eq_u32 vcc, s61, v0
            s_nop 1
            v_cndmask_b32 v20, v20, v21, vcc
            s_add_u32 s61, s61, 1""")
    if DIAG:
        e("s_mov_b32 s61, 0\nv_mov_b32 v20, 0")
        rec()
    e.label(f"{L}_ldloop")
    e(f"s_waitcnt vmcnt({npieces*(S-2)})")
    e("s_barrier")
    rec()
    issue()
    e(f"""s_add_u32 s29, s29, {stage_bytes}
    s_cmp_ge_u32 s29, {S*stage_bytes}
    s_cselect_b32 s29, 0, s29
    s_sub_u32 s31, s31, 1
    s_cmp_lg_u32 s31, 0
    s_cbranch_scc1 {L}_ldloop""")
    for s in range(nst - S + 1, nst):
        e(f"s_waitcnt vmcnt({npieces*(nst-1-s)})")
        e("s_barrier")
        rec()
    if DIAG:
        kern = 1 if L == "YL" else 0
        e(f"""s_lshl_b32 s60, s2, 2
        s_add_u32 s60, s60, s50
        s_lshl_b32 s60, s60, 8
        s_add_u32 s60, s60, {STAMP_WS + (4 + kern) * (1 << 20)}
        v_lshlrev_b32 v21, 2, v0
        buffer_store_dword v20, v21, s[16:19], s60 offen""")
    e("s_endpgm")

def dequant_ops(R, ZS, P, A):
    ops = []
    for i in range(8):
        ops.append(f"v_cvt_f32_i32 v{R+i}, v{R+i}")
    for i in range(8):
        ops.append(f"v_add_f32_dpp v{R+i}, v{ZS}, v{R+i} row_newbcast:{i} row_mask:0xf bank_mask:0xf")
    for i in range(4):
        ops.append(f"v_cvt_pk_bf16_f32 v{P+i}, v{R+2*i}, v{R+2*i+1}")
    for i in range(4):
        ops.append(f"v_lshlrev_b32 v{R+2*i}, 16, v{P+i}")
        ops.append(f"v_and_b32 v{R+2*i+1}, 0xffff0000, v{P+i}")
    for i in range(8):
        ops.append(f"v_mul_f32_dpp v{R+i}, v{ZS}, v{R+i} row_newbcast:{8+i} row_mask:0xf bank_mask:0xf")
    for i in range(4):
        ops.append(f"v_cvt_pk_bf16_f32 v{A+i}, v{R+2*i}, v{R+2*i+1}")
    return ops

def t_loader(e):
    e("""s_sub_u32 s50, s3, 8
    v_and_b32 v60, 15, v0
    v_lshrrev_b32 v61, 4, v0
    s_mov_b32 s52, 6144""")
    for i in range(4):
        e(f"""v_add_u32 v62, {4*i}, v61
        v_mul_lo_u32 v63, v62, s52
        v_xor_b32 v62, v60, v62
        v_lshl_add_u32 v{1+i}, v62, 4, v63""")
        if i:
            e(f"v_subrev_u32 v{1+i}, {1024*i}, v{1+i}")
    e(f"""s_lshl_b32 s28, s6, 6
    s_lshl_b32 s51, s50, 4
    s_add_u32 s28, s28, s51
    s_mul_i32 s28, s28, 6144
    s_lshl_b32 s53, s50, 12
    s_add_u32 s53, s53, {T_QW}
    s_mov_b32 s52, 3072""")
    for j in range(3):
        e(f"""v_add_u32 v62, {64*j}, v0
        v_mul_u32_u24 v63, 171, v62
        v_lshrrev_b32 v63, 11, v63
        v_mul_u32_u24 v64, 12, v63
        v_sub_u32 v62, v62, v64
        v_lshrrev_b32 v64, 3, v63
        v_and_b32 v64, 1, v64
        v_lshlrev_b32 v64, 1, v64
        v_xor_b32 v62, v62, v64
        v_mul_lo_u32 v63, v63, s52
        v_lshl_add_u32 v{5+j}, v62, 4, v63""")
        if j:
            e(f"v_subrev_u32 v{5+j}, {1024*j}, v{5+j}")
    e(f"""s_mul_i32 s27, s50, 49152
    s_mul_i32 s51, s7, 192
    s_add_u32 s27, s27, s51
    s_mul_i32 s54, s50, 3072
    s_add_u32 s54, s54, {T_V}""")
    def issue():
        e("s_add_u32 m0, s29, s53")
        e("s_nop 0")
        for i in range(4):
            off = f" offset:{1024*i}" if i else ""
            e(f"buffer_load_dwordx4 v{1+i}, s[8:11], s28 offen{off} lds")
        e("s_add_u32 m0, s29, s54")
        e("s_add_u32 s28, s28, 256")
        for j in range(3):
            off = f" offset:{1024*j}" if j else ""
            e(f"buffer_load_dwordx4 v{5+j}, s[12:15], s27 offen{off} lds")
        e(f"s_add_u32 s27, s27, {64*3072}")
    loader_loop(e, "TL", T_NST, T_S, T_STAGE, 7, issue)

def tcheck(e, tag):
    e(f"""s_cmp_gt_u32 s26, s25
    s_cbranch_scc1 {tag}_nt
    s_cmp_ge_u32 s26, {T_NST}
    s_cbranch_scc1 {tag}_nt
    buffer_load_dword v2, v3, s[52:55], s27 offen
    s_add_u32 s26, s26, 10
    s_add_u32 s27, s27, s28""")
    e.label(f"{tag}_nt")

def t_consumer(e, par):
    L = f"TC{par}"
    e("""s_and_b32 s50, s3, 3
    v_and_b32 v60, 15, v0          ; c
    v_lshrrev_b32 v61, 4, v0        ; q""")
    if par == 0:
        e(f"""s_cmp_ge_u32 s3, 3
        s_cbranch_scc1 {L}_nozs
        s_lshl_b32 s51, s3, 10
        v_lshlrev_b32 v62, 4, v0
        v_add_u32 v62, s51, v62
        buffer_load_dwordx4 v[64:67], v62, s[20:23], 0 offen
        buffer_load_dwordx4 v[68:71], v62, s[24:27], 0 offen
        s_waitcnt vmcnt(0)""")
        for i in range(4):
            e(f"""v_lshlrev_b32 v{16+2*i}, 16, v{64+i}
            v_and_b32 v{17+2*i}, 0xffff0000, v{64+i}
            v_lshlrev_b32 v{24+2*i}, 16, v{68+i}
            v_and_b32 v{25+2*i}, 0xffff0000, v{68+i}""")
        for i in range(8):
            e(f"v_xor_b32 v{16+i}, 0x80000000, v{16+i}")
        e(f"""s_lshl_b32 s51, s3, 12
        v_lshlrev_b32 v62, 6, v0
        v_add_u32 v62, s51, v62
        v_add_u32 v62, {T_ZS}, v62
        ds_write_b128 v62, v[16:19]
        ds_write_b128 v62, v[20:23] offset:16
        ds_write_b128 v62, v[24:27] offset:32
        ds_write_b128 v62, v[28:31] offset:48
        s_waitcnt lgkmcnt(0)""")
        e.label(f"{L}_nozs")
    if OPT['touch']:
        e(f"""s_lshl_b32 s51, s5, 3
        s_add_u32 s51, s51, s3
        s_lshr_b32 s26, s51, 4          ; sigma0
        s_and_b32 s51, s51, 15          ; u
        s_cmp_ge_u32 s51, 10
        s_cbranch_scc1 {L}_tv
        s_lshl_b32 s51, s51, 6
        v_add_u32 v62, s51, v0          ; t
        v_lshrrev_b32 v63, 1, v62       ; row
        v_and_b32 v62, 1, v62
        s_mov_b32 s53, 6144
        v_mul_lo_u32 v63, v63, s53
        v_lshl_add_u32 v3, v62, 7, v63
        s_and_b32 s27, s4, 1
        s_mul_i32 s27, s27, {320*6144}
        s_lshl_b32 s52, s26, 8
        s_add_u32 s27, s27, s52
        s_mov_b32 s28, 2560
        s_mov_b32 s52, s34
        s_and_b32 s53, s35, 0xffff
        s_mov_b32 s54, 3932160
        s_mov_b32 s55, 0x00020000
        s_branch {L}_td""")
        e.label(f"{L}_tv")
        e(f"""s_sub_u32 s51, s51, 10
        s_lshl_b32 s51, s51, 6
        v_add_u32 v62, s51, v0          ; t in 0..383
        v_mul_u32_u24 v63, 171, v62
        v_lshrrev_b32 v63, 10, v63      ; row = t/6
        v_mul_u32_u24 v64, 6, v63
        v_sub_u32 v62, v62, v64
        s_mov_b32 s53, 3072
        v_mul_lo_u32 v63, v63, s53
        v_lshl_add_u32 v3, v62, 7, v63
        s_lshr_b32 s27, s4, 1
        s_mul_i32 s27, s27, 768
        s_mul_i32 s52, s26, {64*3072}
        s_add_u32 s27, s27, s52
        s_mov_b32 s28, {640*3072}
        s_mov_b32 s52, s42
        s_and_b32 s53, s43, 0xffff
        s_mov_b32 s54, 4718592
        s_mov_b32 s55, 0x00020000""")
        e.label(f"{L}_td")
        e(f"""s_cmp_ge_u32 s26, {T_S-1}
        s_cbranch_scc1 {L}_t0
        s_add_u32 s26, s26, 10
        s_add_u32 s27, s27, s28""")
        e.label(f"{L}_t0")
        e(f"s_mov_b32 s25, {OPT['tdelta'] + par}      ; s + delta")
        tcheck(e, L + "p0")
        tcheck(e, L + "p1")
    e(f"""v_lshlrev_b32 v62, 1, v61
    v_xor_b32 v62, v62, v60
    v_lshlrev_b32 v62, 4, v62
    v_lshl_add_u32 v62, v60, 8, v62
    s_lshl_b32 s51, s50, 12
    s_add_u32 s51, s51, {T_QW}
    v_add_u32 v5, s51, v62
    v_xor_b32 v6, 16, v5
    v_xor_b32 v7, 128, v5
    v_xor_b32 v8, 144, v5
    v_lshlrev_b32 v9, 2, v0
    v_add_u32 v9, {T_ZS + 512*par}, v9""")
    e(f"""v_lshrrev_b32 v62, 2, v60        ; r
    v_lshl_add_u32 v62, v61, 3, v62  ; 8q + r
    v_mul_u32_u24 v62, 192, v62
    v_and_b32 v63, 3, v60
    v_lshl_add_u32 v62, v63, 3, v62
    v_add_u32 v62, {T_V}, v62
    v_and_b32 v63, 1, v61
    v_lshl_add_u32 v10, v63, 5, v62
    v_xor_b32 v63, 1, v63
    v_lshl_add_u32 v11, v63, 5, v62""")
    ACC = 120
    RAW = [24, 32]
    ZS = [40, 41]
    P = 44
    A = [48, 52]
    B = [64, 88]
    for i in range(24):
        e(f"v_mov_b32 v{ACC+i}, 0")
    e(f"s_mov_b32 s30, {T_STAGE*par}")
    e("s_mov_b32 s31, 12")
    stamp(e, 1)
    if par == 1:
        e("s_barrier")
    e.label(f"{L}_loop")
    e("s_barrier")
    for i in range(4):
        e(f"v_add_u32 v{12+i}, s30, v{5+i}")
    e("""v_add_u32 v16, s30, v10
    v_add_u32 v17, s30, v11""")
    e(f"""ds_read_b128 v[{RAW[0]}:{RAW[0]+3}], v12
    ds_read_b128 v[{RAW[0]+4}:{RAW[0]+7}], v13
    ds_read_b32 v{ZS[0]}, v9
    ds_read_b128 v[{RAW[1]}:{RAW[1]+3}], v14
    ds_read_b128 v[{RAW[1]+4}:{RAW[1]+7}], v15
    ds_read_b32 v{ZS[1]}, v9 offset:256""")
    def trs(kh):
        for gt in range(6):
            a = 16 if gt % 2 == 0 else 17
            off = 64 * (gt // 2) + kh * 32 * 192
            e(f"ds_read_b64_tr_b16 v[{B[kh]+4*gt}:{B[kh]+4*gt+1}], v{a} offset:{off}")
            e(f"ds_read_b64_tr_b16 v[{B[kh]+4*gt+2}:{B[kh]+4*gt+3}], v{a} offset:{off+768}")
    trl = []
    for kh in range(2):
        for gt in range(6):
            a = 16 if gt % 2 == 0 else 17
            off = 64 * (gt // 2) + kh * 32 * 192
            trl.append(f"ds_read_b64_tr_b16 v[{B[kh]+4*gt}:{B[kh]+4*gt+1}], v{a} offset:{off}")
            trl.append(f"ds_read_b64_tr_b16 v[{B[kh]+4*gt+2}:{B[kh]+4*gt+3}], v{a} offset:{off+768}")
    for r in trl[:6]:
        e(r)
    e(f"""v_add_u32 v9, 1024, v9
    s_add_u32 s30, s30, {2*T_STAGE}
    s_cmp_ge_u32 s30, {T_S*T_STAGE}
    s_cselect_b32 s51, {T_S*T_STAGE}, 0
    s_sub_u32 s30, s30, s51
    s_waitcnt lgkmcnt(9)""")
    d0 = dequant_ops(RAW[0], ZS[0], P, A[0])
    ti = 6
    for i, op in enumerate(d0):
        e(op)
        if i % 2 == 1 and ti < 24:
            e(trl[ti]); ti += 1
    assert ti == 24
    e("s_waitcnt lgkmcnt(0)")
    e("s_barrier")
    if OPT['touch']:
        e("s_add_u32 s25, s25, 2")
        tcheck(e, L + "l")
    d1 = dequant_ops(RAW[1], ZS[1], P, A[1])
    k = 0
    for gt in range(6):
        e(f"v_mfma_f32_16x16x32_bf16 v[{ACC+4*gt}:{ACC+4*gt+3}], v[{A[0]}:{A[0]+3}], v[{B[0]+4*gt}:{B[0]+4*gt+3}], v[{ACC+4*gt}:{ACC+4*gt+3}]")
        for op in d1[k:k+7]:
            e(op)
        k += 7
    e("s_nop 1")
    for gt in range(6):
        e(f"v_mfma_f32_16x16x32_bf16 v[{ACC+4*gt}:{ACC+4*gt+3}], v[{A[1]}:{A[1]+3}], v[{B[1]+4*gt}:{B[1]+4*gt+3}], v[{ACC+4*gt}:{ACC+4*gt+3}]")
    e(f"""s_sub_u32 s31, s31, 1
    s_cmp_lg_u32 s31, 0
    s_cbranch_scc1 {L}_loop""")
    stamp(e, 2)
    e("""v_lshlrev_b32 v14, 4, v0
    s_mul_i32 s51, s50, 6144
    v_add_u32 v14, s51, v14
    v_lshlrev_b32 v15, 4, v0
    s_nop 7""")
    if par == 0:
        e("s_barrier")
        for gt in range(6):
            e(f"ds_write_b128 v14, v[{ACC+4*gt}:{ACC+4*gt+3}] offset:{1024*gt}")
        e("s_waitcnt lgkmcnt(0)")
        e("s_barrier")
    else:
        e(f"""s_lshl_b32 s51, s6, 2
        s_add_u32 s51, s51, s50
        s_lshr_b32 s52, s51, 1
        s_and_b32 s51, s51, 1
        s_lshl_b32 s51, s51, 3
        s_mul_i32 s54, s7, 120
        s_add_u32 s54, s54, s52
        s_lshl_b32 s54, s54, 10
        s_add_u32 s54, s54, s51
        s_add_u32 s54, s54, {T_WS}""")
        e("s_barrier")
        for gt in range(6):
            e(f"ds_read_b128 v[{64+4*gt}:{67+4*gt}], v14 offset:{1024*gt}")
        for gt in range(6):
            e(f"s_waitcnt lgkmcnt({5-gt})")
            for r in range(4):
                e(f"v_add_f32 v{ACC+4*gt+r}, v{ACC+4*gt+r}, v{64+4*gt+r}")
            e(f"v_cvt_pk_bf16_f32 v{24+2*gt}, v{ACC+4*gt}, v{ACC+4*gt+1}")
            e(f"v_cvt_pk_bf16_f32 v{25+2*gt}, v{ACC+4*gt+2}, v{ACC+4*gt+3}")
            e(f"buffer_store_dwordx2 v[{24+2*gt}:{25+2*gt}], v15, s[16:19], s54 offen")
            e(f"s_add_u32 s54, s54, 20480")
    stamp_flush(e, 4, 0)
    e("s_endpgm")

def x_loader(e):
    e("""s_sub_u32 s50, s3, 8
    v_and_b32 v60, 15, v0
    v_lshrrev_b32 v61, 4, v0
    s_mov_b32 s52, 1280""")
    for i in range(4):
        e(f"""v_add_u32 v62, {4*i}, v61
        v_mul_lo_u32 v63, v62, s52
        v_or_b32 v62, {((i>>1)&1)<<2}, v61
        v_lshlrev_b32 v62, 1, v62
        v_xor_b32 v62, v60, v62
        v_lshl_add_u32 v{1+i}, v62, 4, v63""")
        if i:
            e(f"v_subrev_u32 v{1+i}, {1024*i}, v{1+i}")
    e(f"""s_mul_i32 s28, s50, 20480
    s_lshl_b32 s51, s6, 8
    s_add_u32 s28, s28, s51
    s_lshl_b32 s53, s50, 12
    s_add_u32 s53, s53, {X_U}""")
    for i in range(4):
        e(f"""v_lshrrev_b32 v62, 3, v0
        v_add_u32 v62, {8*i}, v62
        v_mul_lo_u32 v63, v62, s52
        v_add_u32 v62, {4*i}, v61
        v_and_b32 v62, 7, v62
        v_and_b32 v64, 7, v0
        v_xor_b32 v62, v64, v62
        v_lshl_add_u32 v{5+i}, v62, 4, v63""")
        if i:
            e(f"v_subrev_u32 v{5+i}, {1024*i}, v{5+i}")
    e(f"""s_lshl_b32 s27, s7, 7
    s_lshl_b32 s51, s50, 5
    s_add_u32 s27, s27, s51
    s_mul_i32 s27, s27, 1280
    s_lshl_b32 s54, s50, 12
    s_add_u32 s54, s54, {X_X}""")
    def issue():
        e("s_add_u32 m0, s29, s53")
        e("s_nop 0")
        for i in range(4):
            off = f" offset:{1024*i}" if i else ""
            e(f"buffer_load_dwordx4 v{1+i}, s[8:11], s28 offen{off} lds")
        e("s_add_u32 m0, s29, s54")
        e(f"s_add_u32 s28, s28, {64*1280}")
        for i in range(4):
            off = f" offset:{1024*i}" if i else ""
            e(f"buffer_load_dwordx4 v{5+i}, s[12:15], s27 offen{off} lds")
        e("s_add_u32 s27, s27, 128")
    loader_loop(e, "XL", X_NST, X_S, X_STAGE, 8, issue)

def x_consumer(e):
    L = "XC"
    if OPT['xtouch']:
        for rnd in range(2):
            e(f"""s_lshl_b32 s51, s5, 3
            s_add_u32 s51, s51, s3
            s_add_u32 s51, s51, {42 + 80*rnd}
            s_cmp_ge_u32 s51, 140
            s_cbranch_scc1 {L}_td{rnd}
            s_mul_i32 s52, s51, 147
            s_lshr_b32 s52, s52, 11         ; stage = p/14
            s_mul_i32 s53, s52, 14
            s_sub_u32 s51, s51, s53         ; u
            s_cmp_ge_u32 s51, 4
            s_cbranch_scc1 {L}_tu{rnd}
            s_lshl_b32 s51, s51, 6
            v_add_u32 v62, s51, v0          ; row
            s_mov_b32 s53, 1280
            v_mul_lo_u32 v62, v62, s53
            s_mul_i32 s53, s4, {256*1280}
            s_lshl_b32 s52, s52, 7
            s_add_u32 s53, s53, s52
            buffer_load_dword v{1+rnd}, v62, s[12:15], s53 offen
            s_branch {L}_td{rnd}""")
            e.label(f"{L}_tu{rnd}")
            e(f"""s_sub_u32 s51, s51, 4
            s_lshl_b32 s51, s51, 13
            v_lshlrev_b32 v62, 7, v0
            s_mul_i32 s52, s52, {64*1280}
            s_add_u32 s53, s51, s52
            buffer_load_dword v{1+rnd}, v62, s[8:11], s53 offen""")
            e.label(f"{L}_td{rnd}")
    e("""v_and_b32 v60, 15, v0          ; c
    v_lshrrev_b32 v61, 4, v0        ; q
    s_and_b32 s56, s3, 1
    s_lshr_b32 s57, s3, 1
    v_lshrrev_b32 v62, 2, v60        ; r
    v_and_b32 v63, 1, v61
    v_lshl_add_u32 v63, v63, 2, v62  ; g
    v_lshl_add_u32 v62, v61, 3, v62  ; 8q+r
    v_lshlrev_b32 v62, 8, v62
    v_and_b32 v64, 3, v60
    v_lshl_add_u32 v62, v64, 3, v62
    s_lshl_b32 s51, s56, 2""")
    for a in range(4):
        e(f"""s_add_u32 s58, s51, {a}
        v_xor_b32 v64, s58, v63
        v_lshl_add_u32 v{5+a}, v64, 5, v62""")
        if X_U:
            e(f"v_add_u32 v{5+a}, {X_U}, v{5+a}")
    e(f"""v_lshrrev_b32 v62, 1, v60
    v_xor_b32 v62, v62, v61
    v_lshlrev_b32 v62, 4, v62
    v_lshl_add_u32 v62, v60, 7, v62
    s_lshl_b32 s51, s57, 12
    s_add_u32 s51, s51, {X_X}
    v_add_u32 v9, s51, v62
    v_xor_b32 v10, 64, v9""")
    for i in range(32):
        e(f"v_mov_b32 v{96+i}, 0")
    e("s_mov_b32 s30, 0")
    e(f"s_mov_b32 s31, {X_NST}")
    stamp(e, 1)
    e.label(f"{L}_loop")
    e("s_barrier")
    for a in range(6):
        e(f"v_add_u32 v{11+a}, s30, v{5+a}")
    e(f"""s_add_u32 s30, s30, {X_STAGE}
    s_cmp_ge_u32 s30, {X_S*X_STAGE}
    s_cselect_b32 s30, 0, s30""")
    for kh in range(2):
        base = 32 + 32 * kh
        for a in range(4):
            e(f"ds_read_b64_tr_b16 v[{base+4*a}:{base+4*a+1}], v{11+a} offset:{8192*kh}")
            e(f"ds_read_b64_tr_b16 v[{base+4*a+2}:{base+4*a+3}], v{11+a} offset:{8192*kh+1024}")
        for mt in range(2):
            e(f"ds_read_b128 v[{base+16+4*mt}:{base+19+4*mt}], v{15+kh} offset:{2048*mt}")
    for kh in range(2):
        base = 32 + 32 * kh
        e(f"s_waitcnt lgkmcnt({10 if kh == 0 else 0})")
        for a in range(4):
            for mt in range(2):
                d = 96 + 8 * a + 4 * mt
                e(f"v_mfma_f32_16x16x32_bf16 v[{d}:{d+3}], v[{base+4*a}:{base+4*a+3}], v[{base+16+4*mt}:{base+19+4*mt}], v[{d}:{d+3}]")
    e(f"""s_sub_u32 s31, s31, 1
    s_cmp_lg_u32 s31, 0
    s_cbranch_scc1 {L}_loop""")
    stamp(e, 2)
    e(f"""s_lshl_b32 s51, s7, 3
    s_lshl_b32 s52, s57, 1
    s_add_u32 s51, s51, s52
    s_mul_i32 s51, s51, 20
    s_lshl_b32 s52, s6, 2
    s_add_u32 s51, s51, s52
    s_lshl_b32 s52, s56, 1
    s_add_u32 s51, s51, s52
    s_lshl_b32 s54, s51, 10
    s_add_u32 s54, s54, {XR_WS}
    s_add_u32 s55, s54, 20480
    v_lshlrev_b32 v62, 4, v0
    s_nop 7""")
    for mt in range(2):
        for kb in range(2):
            P = 32 + 8 * mt + 4 * kb
            d0 = 96 + 8 * (2 * kb) + 4 * mt
            d1 = 96 + 8 * (2 * kb + 1) + 4 * mt
            e(f"""v_cvt_pk_bf16_f32 v{P}, v{d0}, v{d0+1}
            v_cvt_pk_bf16_f32 v{P+1}, v{d0+2}, v{d0+3}
            v_cvt_pk_bf16_f32 v{P+2}, v{d1}, v{d1+1}
            v_cvt_pk_bf16_f32 v{P+3}, v{d1+2}, v{d1+3}""")
            so = "s54" if mt == 0 else "s55"
            off = f" offset:{1024*kb}" if kb else ""
            e(f"buffer_store_dwordx4 v[{P}:{P+3}], v62, s[16:19], {so} offen{off}")
    stamp_flush(e, 4, 0)
    e("s_endpgm")

def p1_kernel(e):
    e.raw(".p2align 8")
    e.raw(".type p1_kernel,@function")
    e.label("p1_kernel")
    e("""s_cmp_ge_u32 s2, 240
    s_cbranch_scc1 P1_end""")
    stamp(e, 0)
    e("""s_load_dwordx16 s[32:47], s[0:1], 0
    s_load_dwordx2 s[48:49], s[0:1], 64
    v_lshrrev_b32 v1, 6, v0
    v_and_b32 v0, 63, v0
    s_and_b32 s4, s2, 7
    s_lshr_b32 s5, s2, 3
    v_readfirstlane_b32 s3, v1
    s_waitcnt lgkmcnt(0)""")
    srd(e, 16, 48, WS_BYTES)
    e("""s_cmp_ge_u32 s5, 20
    s_cbranch_scc1 P1_x""")
    e("""s_mul_i32 s7, s5, 52
    s_lshr_b32 s7, s7, 8          ; i/5
    s_mul_i32 s51, s7, 5
    s_sub_u32 s6, s5, s51         ; i%5
    s_and_b32 s51, s4, 1
    s_mul_i32 s51, s51, 5
    s_add_u32 s6, s6, s51
    s_lshr_b32 s51, s4, 1
    s_lshl_b32 s51, s51, 2
    s_add_u32 s7, s7, s51""")
    srd(e, 8, 34, 3932160)
    srd(e, 12, 42, 4718592)
    e("""s_cmp_ge_u32 s3, 8
    s_cbranch_scc1 P1_tl
    s_cmp_ge_u32 s3, 4
    s_cbranch_scc1 P1_tc1""")
    srd(e, 20, 38, 3072)
    srd(e, 24, 36, 3072)
    t_consumer(e, 0)
    e.label("P1_tc1")
    t_consumer(e, 1)
    e.label("P1_tl")
    t_loader(e)
    e.label("P1_x")
    e("""s_sub_u32 s5, s5, 20
    s_cmp_ge_u32 s5, 5
    s_cselect_b32 s51, 1, 0
    s_mul_i32 s52, s51, 5
    s_sub_u32 s6, s5, s52
    s_lshl_b32 s7, s4, 1
    s_add_u32 s7, s7, s51""")
    srd(e, 8, 40, 819200)
    srd(e, 12, 32, 2621440)
    e("""s_cmp_ge_u32 s3, 8
    s_cbranch_scc1 P1_xl""")
    x_consumer(e)
    e.label("P1_xl")
    x_loader(e)
    e.label("P1_end")
    e("s_endpgm")

Y_S = 5
Y_STAGE = 28672
Y_NST = 10
P2_LDS = Y_S * Y_STAGE

def p2_kernel(e):
    CUR_K[0] = 1
    e.raw(".p2align 8")
    e.raw(".type p2_kernel,@function")
    e.label("p2_kernel")
    e("""s_cmp_ge_u32 s2, 256
    s_cbranch_scc1 P2_end""")
    stamp(e, 0)
    e("""s_load_dwordx2 s[44:45], s[0:1], 48
    s_load_dwordx2 s[48:49], s[0:1], 64
    v_lshrrev_b32 v1, 6, v0
    v_and_b32 v0, 63, v0
    s_and_b32 s4, s2, 7
    s_lshr_b32 s5, s2, 3
    v_readfirstlane_b32 s3, v1
    v_lshlrev_b32 v1, 4, v0""")
    e("""s_and_b32 s6, s4, 3
    s_lshl_b32 s6, s6, 2
    s_and_b32 s51, s5, 3
    s_add_u32 s6, s6, s51
    s_lshr_b32 s7, s4, 2
    s_lshl_b32 s7, s7, 3
    s_lshr_b32 s51, s5, 2
    s_add_u32 s7, s7, s51
    s_cmp_ge_u32 s3, 4
    s_cbranch_scc0 P2_c""")
    e(f"""s_sub_u32 s50, s3, 4
    s_and_b32 s51, s50, 1
    s_lshr_b32 s52, s50, 1           ; kk
    s_mul_i32 s53, s52, 14336
    s_mul_i32 s55, s51, 3072
    s_add_u32 s54, s53, 6144
    s_add_u32 s53, s53, s55          ; T lds base
    s_lshl_b32 s55, s51, 12
    s_add_u32 s54, s54, s55          ; xr lds base
    s_mul_i32 s55, s51, 3
    s_mul_i32 s56, s7, 6
    s_add_u32 s55, s55, s56
    s_mul_i32 s55, s55, 20
    s_add_u32 s55, s55, s52
    s_lshl_b32 s28, s55, 10
    s_add_u32 s28, s28, {T_WS}
    s_lshl_b32 s55, s51, 2
    s_lshl_b32 s56, s6, 3
    s_add_u32 s55, s55, s56
    s_mul_i32 s55, s55, 20
    s_add_u32 s55, s55, s52
    s_lshl_b32 s27, s55, 10
    s_add_u32 s27, s27, {XR_WS}""")
    for i in range(1, 4):
        e(f"v_add_u32 v{1+i}, {19456*i}, v1")
    e("s_waitcnt lgkmcnt(0)")
    srd(e, 16, 48, WS_BYTES)
    def issue():
        e("s_add_u32 m0, s29, s53")
        e("s_nop 0")
        for i in range(3):
            off = f" offset:{1024*i}" if i else ""
            e(f"buffer_load_dwordx4 v{1+i}, s[16:19], s28 offen{off} lds")
        e("s_add_u32 m0, s29, s54")
        e("s_add_u32 s28, s28, 2048")
        for i in range(4):
            off = f" offset:{1024*i}" if i else ""
            e(f"buffer_load_dwordx4 v{1+i}, s[16:19], s27 offen{off} lds")
        e("s_add_u32 s27, s27, 2048")
    loader_loop(e, "YL", Y_NST, Y_S, Y_STAGE, 7, issue)
    e.label("P2_c")
    ACC = 64
    FB = [8, 112]
    for i in range(48):
        e(f"v_mov_b32 v{ACC+i}, 0")
    e("""s_lshl_b32 s51, s3, 11
    s_add_u32 s51, s51, 6144
    v_add_u32 v2, s51, v1
    s_waitcnt lgkmcnt(0)""")
    srd(e, 16, 48, WS_BYTES)
    srd(e, 8, 44, 6291456)
    e("s_mov_b32 s30, 0")

    def rlist(kk, b):
        l = []
        for mi in range(2):
            l.append(f"ds_read_b128 v[{b+24+4*mi}:{b+27+4*mi}], v4 offset:{kk*14336 + mi*1024}")
        for gt in range(6):
            l.append(f"ds_read_b128 v[{b+4*gt}:{b+4*gt+3}], v3 offset:{kk*14336 + gt*1024}")
        return l

    def block(b, rl):
        i = 0
        for gt in range(6):
            for mi in range(2):
                d = ACC + (gt * 2 + mi) * 4
                e(f"v_mfma_f32_16x16x32_bf16 v[{d}:{d+3}], v[{b+4*gt}:{b+4*gt+3}], v[{b+24+4*mi}:{b+27+4*mi}], v[{d}:{d+3}]")
                if i < len(rl):
                    e(rl[i]); i += 1

    def newslot():
        e(f"""v_add_u32 v3, s30, v1
        v_add_u32 v4, s30, v2
        s_add_u32 s30, s30, {Y_STAGE}
        s_cmp_ge_u32 s30, {Y_S*Y_STAGE}
        s_cselect_b32 s30, 0, s30""")

    e("s_barrier")
    stamp(e, 1)
    newslot()
    for r in rlist(0, FB[0]):
        e(r)
    e(f"s_mov_b32 s31, {Y_NST-1}")
    e.label("P2_loop")
    e("s_waitcnt lgkmcnt(0)")
    block(FB[0], rlist(1, FB[1]))
    e("s_waitcnt lgkmcnt(0)")
    e("s_barrier")
    newslot()
    block(FB[1], rlist(0, FB[0]))
    e("""s_sub_u32 s31, s31, 1
    s_cmp_lg_u32 s31, 0
    s_cbranch_scc1 P2_loop""")
    e("s_waitcnt lgkmcnt(0)")
    block(FB[0], rlist(1, FB[1]))
    e("s_waitcnt lgkmcnt(0)")
    block(FB[1], [])
    stamp(e, 2)
    e("""v_and_b32 v3, 15, v0
    v_lshrrev_b32 v4, 4, v0
    s_mov_b32 s52, 3072
    v_mul_lo_u32 v3, v3, s52
    v_and_b32 v5, 1, v4
    v_lshrrev_b32 v4, 1, v4
    v_lshlrev_b32 v5, 5, v5
    v_lshl_add_u32 v5, v4, 4, v5
    v_add_u32 v3, v3, v5
    s_lshl_b32 s51, s6, 7
    s_lshl_b32 s52, s3, 5
    s_add_u32 s51, s51, s52
    s_mul_i32 s54, s51, 3072
    s_mul_i32 s52, s7, 192
    s_add_u32 s54, s54, s52
    s_add_u32 s55, s54, 49152
    s_nop 7""")
    for mi in range(2):
        for a in range(3):
            P = 8 + (mi * 3 + a) * 4
            dA = ACC + ((2 * a) * 2 + mi) * 4
            dB = ACC + ((2 * a + 1) * 2 + mi) * 4
            e(f"""v_cvt_pk_bf16_f32 v{P}, v{dA}, v{dA+1}
            v_cvt_pk_bf16_f32 v{P+1}, v{dA+2}, v{dA+3}
            v_cvt_pk_bf16_f32 v{P+2}, v{dB}, v{dB+1}
            v_cvt_pk_bf16_f32 v{P+3}, v{dB+2}, v{dB+3}
            s_nop 1
            v_permlane16_swap_b32 v{P}, v{P+2}
            v_permlane16_swap_b32 v{P+1}, v{P+3}""")
            so = "s54" if mi == 0 else "s55"
            off = f" offset:{64*a}" if a else ""
            e("s_nop 1")
            e(f"buffer_store_dwordx4 v[{P}:{P+3}], v3, s[8:11], {so} offen{off}")
    stamp_flush(e, 4, 1)
    e.label("P2_end")
    e("s_endpgm")

def main(out):
    e = E()
    e.raw(HEADER.rstrip('\n'))
    e.raw(f"; @launch kernel=p1_kernel grid=(240,1,1) block=(768,1,1) lds={P1_LDS}")
    e.raw(f"; @launch kernel=p2_kernel grid=(256,1,1) block=(512,1,1) lds={P2_LDS}")
    e.raw('.amdgcn_target "amdgcn-amd-amdhsa--gfx950"')
    e.raw(".text")
    e.raw(".globl p1_kernel")
    e.raw(".globl p2_kernel")
    p1_kernel(e)
    p2_kernel(e)
    e.raw('.section .rodata,"a"')
    for name, vg, acc in (("p1_kernel", 144, 144), ("p2_kernel", 144, 144)):
        e.raw(".p2align 6")
        e.raw(f""".amdhsa_kernel {name}
  .amdhsa_next_free_vgpr {vg}
  .amdhsa_next_free_sgpr 96
  .amdhsa_accum_offset {acc}
  .amdhsa_group_segment_fixed_size 0
  .amdhsa_kernarg_size 72
  .amdhsa_user_sgpr_count 2
  .amdhsa_user_sgpr_kernarg_segment_ptr 1
  .amdhsa_system_sgpr_workgroup_id_x 1
  .amdhsa_float_denorm_mode_32 3
.end_amdhsa_kernel""")
    open(out, 'w').write(e.text())

if __name__ == '__main__':
    for a in sys.argv[2:]:
        if a == 'diag':
            DIAG = True
        elif '=' in a:
            k, v = a.split('=')
            OPT[k] = int(v)
    main(sys.argv[1] if len(sys.argv) > 1 else 'standalone__weight_only_int_quip__prompt.s')
```

```python
import sys

HEADER = open('standalone__weight_only_int_quip__prompt.s.ref').read().split('; Override launch')[0]

XR_WS = 0
T_WS = 2621440
WS_BYTES = 268435456
OPT = dict(ldprio=0, noload=0, nocomp=0, touch=1, tdelta=12, xdelta=6, nt=0, nttouch=0, xtouch=0, samek=0, dbg=0)

class E:
    def __init__(self):
        self.l = []
    def __call__(self, s):
        for line in s.strip('\n').split('\n'):
            t = line.strip()
            if OPT['noload'] and t.endswith(' lds'): continue
            if OPT['samek'] and (t.startswith('s_add_u32 s28, s28,') or t.startswith('s_add_u32 s27, s27,')): continue
            if OPT['nt'] and t.endswith(' lds') and ('s[8:11]' in t or 's[12:15]' in t): t = t[:-4] + ' nt lds'
            if OPT['nttouch'] and t.startswith('buffer_load_dword v'): t = t + ' nt'
            if OPT['nocomp'] and (t.startswith('ds_read') or t.startswith('v_mfma') or '_dpp' in t or t.startswith('v_cvt')): continue
            self.l.append('    ' + t)
    def label(self, s):
        self.l.append(s + ':')
    def raw(self, s):
        self.l.append(s)
    def text(self):
        return '\n'.join(self.l) + '\n'

DIAG = False
STAMP_WS = 64 << 20
def dbg_entry(e):
    if not OPT['dbg']: return
    e("""s_memrealtime s[90:91]
    s_load_dwordx2 s[92:93], s[0:1], 56
    s_waitcnt lgkmcnt(0)
    s_mov_b32 s88, s92
    s_and_b32 s89, s93, 0xffff
    s_not_b32 s94, s90
    s_mov_b32 s90, 256
    s_mov_b32 s91, 0x00020000""")
DBGN = [0]
def dbg_exit(e, kern):
    if not OPT['dbg']: return
    DBGN[0] += 1
    lab = f"DBGX{DBGN[0]}"
    e(f"""s_and_b32 s95, s3, 3
    s_cmp_lg_u32 s95, 0
    s_cbranch_scc1 {lab}""")
    if kern == 1:
        e(f"""s_cmp_lg_u32 s2, 0
        s_cbranch_scc1 {lab}b
        s_sub_u32 s92, s88, 512
        s_subb_u32 s93, s89, 0
        s_load_dwordx2 s[92:93], s[92:93], 0
        s_waitcnt lgkmcnt(0)
        v_mov_b32 v2, 0
        v_mov_b32 v4, s92
        v_mov_b32 v5, s93
        buffer_store_dwordx2 v[4:5], v2, s[88:91], 0 offen offset:8""")
        e.label(lab + "b")
    dbg_exit2(e)
    e.label(lab)
def dbg_exit2(e):
    e("""s_waitcnt vmcnt(0)
    s_memrealtime s[92:93]
    s_waitcnt lgkmcnt(0)
    v_mov_b32 v2, 0
    v_mov_b32 v4, s94
    v_mov_b32 v5, s92
    s_mov_b64 exec, 1
    buffer_atomic_umax v4, v2, s[88:91], 0 offen
    buffer_atomic_umax v5, v2, s[88:91], 0 offen offset:4
    s_waitcnt vmcnt(0)""")

CUR_K = [0]
def stamp(e, i):
    if i == 0 and OPT['dbg']: dbg_entry(e)
    if not DIAG: return
    e(f"""s_memtime s[{64+4*i}:{65+4*i}]
    s_memrealtime s[{66+4*i}:{67+4*i}]
    s_waitcnt lgkmcnt(0)""")
def stamp_flush(e, n, kern):
    if OPT['dbg']: dbg_exit(e, kern)
    if not DIAG: return
    e(f"""s_waitcnt vmcnt(0)""")
    stamp(e, n - 1)
    e(f"""s_lshl_b32 s60, s2, 4
    s_add_u32 s60, s60, s3
    s_lshl_b32 s60, s60, 7
    s_add_u32 s60, s60, {STAMP_WS + kern * (1 << 20)}
    v_mov_b32 v2, 0
    s_getreg_b32 s61, hwreg(HW_REG_XCC_ID)
    s_getreg_b32 s62, hwreg(HW_REG_HW_ID)
    v_mov_b32 v4, s61
    v_mov_b32 v5, s62
    buffer_store_dwordx2 v[4:5], v2, s[16:19], s60 offen offset:112
    s_waitcnt vmcnt(0)""")
    for i in range(n):
        e(f"""v_mov_b32 v4, s{64+4*i}
        v_mov_b32 v5, s{65+4*i}
        v_mov_b32 v6, s{66+4*i}
        v_mov_b32 v7, s{67+4*i}
        buffer_store_dwordx4 v[4:7], v2, s[16:19], s60 offen offset:{16*i}
        s_waitcnt vmcnt(0)""")

def srd(e, d, lo, nbytes):
    e(f"""s_mov_b32 s{d}, s{lo}
    s_and_b32 s{d+1}, s{lo+1}, 0xffff
    s_mov_b32 s{d+2}, {nbytes}
    s_mov_b32 s{d+3}, 0x00020000""")

T_S = 5
T_STAGE = 28672
T_QW = 0
T_V = 16384
T_ZS = T_S * T_STAGE
T_NST = 24
X_S = 4
X_STAGE = 32768
X_U = 0
X_X = 16384
X_NST = 10
P1_LDS = T_ZS + 12288

def loader_loop(e, L, nst, S, stage_bytes, npieces, issue):
    if OPT['ldprio']:
        e(f"s_setprio {OPT['ldprio']}")
    e("s_mov_b32 s29, 0")
    for s in range(S - 1):
        issue()
        e(f"s_add_u32 s29, s29, {stage_bytes}")
    e(f"s_mov_b32 s31, {nst - S + 1}")
    def rec():
        if DIAG:
            e("""s_memtime s[62:63]
            s_waitcnt lgkmcnt(0)
            v_mov_b32 v21, s62
            v_cmp_eq_u32 vcc, s61, v0
            s_nop 1
            v_cndmask_b32 v20, v20, v21, vcc
            s_add_u32 s61, s61, 1""")
    if DIAG:
        e("s_mov_b32 s61, 0\nv_mov_b32 v20, 0")
        rec()
    e.label(f"{L}_ldloop")
    e(f"s_waitcnt vmcnt({npieces*(S-2)})")
    e("s_barrier")
    rec()
    issue()
    e(f"""s_add_u32 s29, s29, {stage_bytes}
    s_cmp_ge_u32 s29, {S*stage_bytes}
    s_cselect_b32 s29, 0, s29
    s_sub_u32 s31, s31, 1
    s_cmp_lg_u32 s31, 0
    s_cbranch_scc1 {L}_ldloop""")
    for s in range(nst - S + 1, nst):
        e(f"s_waitcnt vmcnt({npieces*(nst-1-s)})")
        e("s_barrier")
        rec()
    if DIAG:
        kern = 1 if L == "YL" else 0
        e(f"""s_lshl_b32 s60, s2, 2
        s_add_u32 s60, s60, s50
        s_lshl_b32 s60, s60, 8
        s_add_u32 s60, s60, {STAMP_WS + (4 + kern) * (1 << 20)}
        v_lshlrev_b32 v21, 2, v0
        buffer_store_dword v20, v21, s[16:19], s60 offen""")
    e("s_endpgm")

def dequant_ops(R, ZS, P, A):
    ops = []
    for i in range(8):
        ops.append(f"v_cvt_f32_i32 v{R+i}, v{R+i}")
    for i in range(8):
        ops.append(f"v_add_f32_dpp v{R+i}, v{ZS}, v{R+i} row_newbcast:{i} row_mask:0xf bank_mask:0xf")
    for i in range(4):
        ops.append(f"v_cvt_pk_bf16_f32 v{P+i}, v{R+2*i}, v{R+2*i+1}")
    for i in range(4):
        ops.append(f"v_lshlrev_b32 v{R+2*i}, 16, v{P+i}")
        ops.append(f"v_and_b32 v{R+2*i+1}, 0xffff0000, v{P+i}")
    for i in range(8):
        ops.append(f"v_mul_f32_dpp v{R+i}, v{ZS}, v{R+i} row_newbcast:{8+i} row_mask:0xf bank_mask:0xf")
    for i in range(4):
        ops.append(f"v_cvt_pk_bf16_f32 v{A+i}, v{R+2*i}, v{R+2*i+1}")
    return ops

def t_loader(e):
    e("""s_sub_u32 s50, s3, 8
    v_and_b32 v60, 15, v0
    v_lshrrev_b32 v61, 4, v0
    s_mov_b32 s52, 6144""")
    for i in range(4):
        e(f"""v_add_u32 v62, {4*i}, v61
        v_mul_lo_u32 v63, v62, s52
        v_xor_b32 v62, v60, v62
        v_lshl_add_u32 v{1+i}, v62, 4, v63""")
        if i:
            e(f"v_subrev_u32 v{1+i}, {1024*i}, v{1+i}")
    e(f"""s_lshl_b32 s28, s6, 6
    s_lshl_b32 s51, s50, 4
    s_add_u32 s28, s28, s51
    s_mul_i32 s28, s28, 6144
    s_lshl_b32 s53, s50, 12
    s_add_u32 s53, s53, {T_QW}
    s_mov_b32 s52, 3072""")
    for j in range(3):
        e(f"""v_add_u32 v62, {64*j}, v0
        v_mul_u32_u24 v63, 171, v62
        v_lshrrev_b32 v63, 11, v63
        v_mul_u32_u24 v64, 12, v63
        v_sub_u32 v62, v62, v64
        v_lshrrev_b32 v64, 3, v63
        v_and_b32 v64, 1, v64
        v_lshlrev_b32 v64, 1, v64
        v_xor_b32 v62, v62, v64
        v_mul_lo_u32 v63, v63, s52
        v_lshl_add_u32 v{5+j}, v62, 4, v63""")
        if j:
            e(f"v_subrev_u32 v{5+j}, {1024*j}, v{5+j}")
    e(f"""s_mul_i32 s27, s50, 49152
    s_mul_i32 s51, s7, 192
    s_add_u32 s27, s27, s51
    s_mul_i32 s54, s50, 3072
    s_add_u32 s54, s54, {T_V}""")
    def issue():
        e("s_add_u32 m0, s29, s53")
        e("s_nop 0")
        for i in range(4):
            off = f" offset:{1024*i}" if i else ""
            e(f"buffer_load_dwordx4 v{1+i}, s[8:11], s28 offen{off} lds")
        e("s_add_u32 m0, s29, s54")
        e("s_add_u32 s28, s28, 256")
        for j in range(3):
            off = f" offset:{1024*j}" if j else ""
            e(f"buffer_load_dwordx4 v{5+j}, s[12:15], s27 offen{off} lds")
        e(f"s_add_u32 s27, s27, {64*3072}")
    loader_loop(e, "TL", T_NST, T_S, T_STAGE, 7, issue)

def tcheck(e, tag):
    e(f"""s_cmp_gt_u32 s26, s25
    s_cbranch_scc1 {tag}_nt
    s_cmp_ge_u32 s26, {T_NST}
    s_cbranch_scc1 {tag}_nt
    buffer_load_dword v2, v3, s[52:55], s27 offen
    s_add_u32 s26, s26, 10
    s_add_u32 s27, s27, s28""")
    e.label(f"{tag}_nt")

def t_consumer(e, par):
    L = f"TC{par}"
    e("""s_and_b32 s50, s3, 3
    v_and_b32 v60, 15, v0          ; c
    v_lshrrev_b32 v61, 4, v0        ; q""")
    if par == 0:
        e(f"""s_cmp_ge_u32 s3, 3
        s_cbranch_scc1 {L}_nozs
        s_lshl_b32 s51, s3, 10
        v_lshlrev_b32 v62, 4, v0
        v_add_u32 v62, s51, v62
        buffer_load_dwordx4 v[64:67], v62, s[20:23], 0 offen
        buffer_load_dwordx4 v[68:71], v62, s[24:27], 0 offen
        s_waitcnt vmcnt(0)""")
        for i in range(4):
            e(f"""v_lshlrev_b32 v{16+2*i}, 16, v{64+i}
            v_and_b32 v{17+2*i}, 0xffff0000, v{64+i}
            v_lshlrev_b32 v{24+2*i}, 16, v{68+i}
            v_and_b32 v{25+2*i}, 0xffff0000, v{68+i}""")
        for i in range(8):
            e(f"v_xor_b32 v{16+i}, 0x80000000, v{16+i}")
        e(f"""s_lshl_b32 s51, s3, 12
        v_lshlrev_b32 v62, 6, v0
        v_add_u32 v62, s51, v62
        v_add_u32 v62, {T_ZS}, v62
        ds_write_b128 v62, v[16:19]
        ds_write_b128 v62, v[20:23] offset:16
        ds_write_b128 v62, v[24:27] offset:32
        ds_write_b128 v62, v[28:31] offset:48
        s_waitcnt lgkmcnt(0)""")
        e.label(f"{L}_nozs")
    if OPT['touch']:
        e(f"""s_lshl_b32 s51, s5, 3
        s_add_u32 s51, s51, s3
        s_lshr_b32 s26, s51, 4          ; sigma0
        s_and_b32 s51, s51, 15          ; u
        s_cmp_ge_u32 s51, 10
        s_cbranch_scc1 {L}_tv
        s_lshl_b32 s51, s51, 6
        v_add_u32 v62, s51, v0          ; t
        v_lshrrev_b32 v63, 1, v62       ; row
        v_and_b32 v62, 1, v62
        s_mov_b32 s53, 6144
        v_mul_lo_u32 v63, v63, s53
        v_lshl_add_u32 v3, v62, 7, v63
        s_and_b32 s27, s4, 1
        s_mul_i32 s27, s27, {320*6144}
        s_lshl_b32 s52, s26, 8
        s_add_u32 s27, s27, s52
        s_mov_b32 s28, 2560
        s_mov_b32 s52, s34
        s_and_b32 s53, s35, 0xffff
        s_mov_b32 s54, 3932160
        s_mov_b32 s55, 0x00020000
        s_branch {L}_td""")
        e.label(f"{L}_tv")
        e(f"""s_sub_u32 s51, s51, 10
        s_lshl_b32 s51, s51, 6
        v_add_u32 v62, s51, v0          ; t in 0..383
        v_mul_u32_u24 v63, 171, v62
        v_lshrrev_b32 v63, 10, v63      ; row = t/6
        v_mul_u32_u24 v64, 6, v63
        v_sub_u32 v62, v62, v64
        s_mov_b32 s53, 3072
        v_mul_lo_u32 v63, v63, s53
        v_lshl_add_u32 v3, v62, 7, v63
        s_lshr_b32 s27, s4, 1
        s_mul_i32 s27, s27, 768
        s_mul_i32 s52, s26, {64*3072}
        s_add_u32 s27, s27, s52
        s_mov_b32 s28, {640*3072}
        s_mov_b32 s52, s42
        s_and_b32 s53, s43, 0xffff
        s_mov_b32 s54, 4718592
        s_mov_b32 s55, 0x00020000""")
        e.label(f"{L}_td")
        e(f"""s_cmp_ge_u32 s26, {T_S-1}
        s_cbranch_scc1 {L}_t0
        s_add_u32 s26, s26, 10
        s_add_u32 s27, s27, s28""")
        e.label(f"{L}_t0")
        e(f"s_mov_b32 s25, {OPT['tdelta'] + par}      ; s + delta")
        tcheck(e, L + "p0")
        tcheck(e, L + "p1")
    e(f"""v_lshlrev_b32 v62, 1, v61
    v_xor_b32 v62, v62, v60
    v_lshlrev_b32 v62, 4, v62
    v_lshl_add_u32 v62, v60, 8, v62
    s_lshl_b32 s51, s50, 12
    s_add_u32 s51, s51, {T_QW}
    v_add_u32 v5, s51, v62
    v_xor_b32 v6, 16, v5
    v_xor_b32 v7, 128, v5
    v_xor_b32 v8, 144, v5
    v_lshlrev_b32 v9, 2, v0
    v_add_u32 v9, {T_ZS + 512*par}, v9""")
    e(f"""v_lshrrev_b32 v62, 2, v60        ; r
    v_lshl_add_u32 v62, v61, 3, v62  ; 8q + r
    v_mul_u32_u24 v62, 192, v62
    v_and_b32 v63, 3, v60
    v_lshl_add_u32 v62, v63, 3, v62
    v_add_u32 v62, {T_V}, v62
    v_and_b32 v63, 1, v61
    v_lshl_add_u32 v10, v63, 5, v62
    v_xor_b32 v63, 1, v63
    v_lshl_add_u32 v11, v63, 5, v62""")
    ACC = 120
    RAW = [24, 32]
    ZS = [40, 41]
    P = 44
    A = [48, 52]
    B = [64, 88]
    for i in range(24):
        e(f"v_mov_b32 v{ACC+i}, 0")
    e(f"s_mov_b32 s30, {T_STAGE*par}")
    e("s_mov_b32 s31, 12")
    stamp(e, 1)
    if par == 1:
        e("s_barrier")
    e.label(f"{L}_loop")
    e("s_barrier")
    for i in range(4):
        e(f"v_add_u32 v{12+i}, s30, v{5+i}")
    e("""v_add_u32 v16, s30, v10
    v_add_u32 v17, s30, v11""")
    e(f"""ds_read_b128 v[{RAW[0]}:{RAW[0]+3}], v12
    ds_read_b128 v[{RAW[0]+4}:{RAW[0]+7}], v13
    ds_read_b32 v{ZS[0]}, v9
    ds_read_b128 v[{RAW[1]}:{RAW[1]+3}], v14
    ds_read_b128 v[{RAW[1]+4}:{RAW[1]+7}], v15
    ds_read_b32 v{ZS[1]}, v9 offset:256""")
    def trs(kh):
        for gt in range(6):
            a = 16 if gt % 2 == 0 else 17
            off = 64 * (gt // 2) + kh * 32 * 192
            e(f"ds_read_b64_tr_b16 v[{B[kh]+4*gt}:{B[kh]+4*gt+1}], v{a} offset:{off}")
            e(f"ds_read_b64_tr_b16 v[{B[kh]+4*gt+2}:{B[kh]+4*gt+3}], v{a} offset:{off+768}")
    trl = []
    for kh in range(2):
        for gt in range(6):
            a = 16 if gt % 2 == 0 else 17
            off = 64 * (gt // 2) + kh * 32 * 192
            trl.append(f"ds_read_b64_tr_b16 v[{B[kh]+4*gt}:{B[kh]+4*gt+1}], v{a} offset:{off}")
            trl.append(f"ds_read_b64_tr_b16 v[{B[kh]+4*gt+2}:{B[kh]+4*gt+3}], v{a} offset:{off+768}")
    for r in trl[:6]:
        e(r)
    e(f"""v_add_u32 v9, 1024, v9
    s_add_u32 s30, s30, {2*T_STAGE}
    s_cmp_ge_u32 s30, {T_S*T_STAGE}
    s_cselect_b32 s51, {T_S*T_STAGE}, 0
    s_sub_u32 s30, s30, s51
    s_waitcnt lgkmcnt(9)""")
    d0 = dequant_ops(RAW[0], ZS[0], P, A[0])
    ti = 6
    for i, op in enumerate(d0):
        e(op)
        if i % 2 == 1 and ti < 24:
            e(trl[ti]); ti += 1
    assert ti == 24
    e("s_waitcnt lgkmcnt(0)")
    e("s_barrier")
    if OPT['touch']:
        e("s_add_u32 s25, s25, 2")
        tcheck(e, L + "l")
    d1 = dequant_ops(RAW[1], ZS[1], P, A[1])
    k = 0
    for gt in range(6):
        e(f"v_mfma_f32_16x16x32_bf16 v[{ACC+4*gt}:{ACC+4*gt+3}], v[{A[0]}:{A[0]+3}], v[{B[0]+4*gt}:{B[0]+4*gt+3}], v[{ACC+4*gt}:{ACC+4*gt+3}]")
        for op in d1[k:k+7]:
            e(op)
        k += 7
    e("s_nop 1")
    for gt in range(6):
        e(f"v_mfma_f32_16x16x32_bf16 v[{ACC+4*gt}:{ACC+4*gt+3}], v[{A[1]}:{A[1]+3}], v[{B[1]+4*gt}:{B[1]+4*gt+3}], v[{ACC+4*gt}:{ACC+4*gt+3}]")
    e(f"""s_sub_u32 s31, s31, 1
    s_cmp_lg_u32 s31, 0
    s_cbranch_scc1 {L}_loop""")
    stamp(e, 2)
    e("""v_lshlrev_b32 v14, 4, v0
    s_mul_i32 s51, s50, 6144
    v_add_u32 v14, s51, v14
    v_lshlrev_b32 v15, 4, v0
    s_nop 7""")
    if par == 0:
        e("s_barrier")
        for gt in range(6):
            e(f"ds_write_b128 v14, v[{ACC+4*gt}:{ACC+4*gt+3}] offset:{1024*gt}")
        e("s_waitcnt lgkmcnt(0)")
        e("s_barrier")
    else:
        e(f"""s_lshl_b32 s51, s6, 2
        s_add_u32 s51, s51, s50
        s_lshr_b32 s52, s51, 1
        s_and_b32 s51, s51, 1
        s_lshl_b32 s51, s51, 3
        s_mul_i32 s54, s7, 120
        s_add_u32 s54, s54, s52
        s_lshl_b32 s54, s54, 10
        s_add_u32 s54, s54, s51
        s_add_u32 s54, s54, {T_WS}""")
        e("s_barrier")
        for gt in range(6):
            e(f"ds_read_b128 v[{64+4*gt}:{67+4*gt}], v14 offset:{1024*gt}")
        for gt in range(6):
            e(f"s_waitcnt lgkmcnt({5-gt})")
            for r in range(4):
                e(f"v_add_f32 v{ACC+4*gt+r}, v{ACC+4*gt+r}, v{64+4*gt+r}")
            e(f"v_cvt_pk_bf16_f32 v{24+2*gt}, v{ACC+4*gt}, v{ACC+4*gt+1}")
            e(f"v_cvt_pk_bf16_f32 v{25+2*gt}, v{ACC+4*gt+2}, v{ACC+4*gt+3}")
            e(f"buffer_store_dwordx2 v[{24+2*gt}:{25+2*gt}], v15, s[16:19], s54 offen")
            e(f"s_add_u32 s54, s54, 20480")
    stamp_flush(e, 4, 0)
    e("s_endpgm")

def x_loader(e):
    e("""s_sub_u32 s50, s3, 8
    v_and_b32 v60, 15, v0
    v_lshrrev_b32 v61, 4, v0
    s_mov_b32 s52, 1280""")
    for i in range(4):
        e(f"""v_add_u32 v62, {4*i}, v61
        v_mul_lo_u32 v63, v62, s52
        v_or_b32 v62, {((i>>1)&1)<<2}, v61
        v_lshlrev_b32 v62, 1, v62
        v_xor_b32 v62, v60, v62
        v_lshl_add_u32 v{1+i}, v62, 4, v63""")
        if i:
            e(f"v_subrev_u32 v{1+i}, {1024*i}, v{1+i}")
    e(f"""s_mul_i32 s28, s50, 20480
    s_lshl_b32 s51, s6, 8
    s_add_u32 s28, s28, s51
    s_lshl_b32 s53, s50, 12
    s_add_u32 s53, s53, {X_U}""")
    for i in range(4):
        e(f"""v_lshrrev_b32 v62, 3, v0
        v_add_u32 v62, {8*i}, v62
        v_mul_lo_u32 v63, v62, s52
        v_add_u32 v62, {4*i}, v61
        v_and_b32 v62, 7, v62
        v_and_b32 v64, 7, v0
        v_xor_b32 v62, v64, v62
        v_lshl_add_u32 v{5+i}, v62, 4, v63""")
        if i:
            e(f"v_subrev_u32 v{5+i}, {1024*i}, v{5+i}")
    e(f"""s_lshl_b32 s27, s7, 7
    s_lshl_b32 s51, s50, 5
    s_add_u32 s27, s27, s51
    s_mul_i32 s27, s27, 1280
    s_lshl_b32 s54, s50, 12
    s_add_u32 s54, s54, {X_X}""")
    def issue():
        e("s_add_u32 m0, s29, s53")
        e("s_nop 0")
        for i in range(4):
            off = f" offset:{1024*i}" if i else ""
            e(f"buffer_load_dwordx4 v{1+i}, s[8:11], s28 offen{off} lds")
        e("s_add_u32 m0, s29, s54")
        e(f"s_add_u32 s28, s28, {64*1280}")
        for i in range(4):
            off = f" offset:{1024*i}" if i else ""
            e(f"buffer_load_dwordx4 v{5+i}, s[12:15], s27 offen{off} lds")
        e("s_add_u32 s27, s27, 128")
    loader_loop(e, "XL", X_NST, X_S, X_STAGE, 8, issue)

def x_consumer(e):
    L = "XC"
    if OPT['xtouch']:
        for rnd in range(2):
            e(f"""s_lshl_b32 s51, s5, 3
            s_add_u32 s51, s51, s3
            s_add_u32 s51, s51, {42 + 80*rnd}
            s_cmp_ge_u32 s51, 140
            s_cbranch_scc1 {L}_td{rnd}
            s_mul_i32 s52, s51, 147
            s_lshr_b32 s52, s52, 11         ; stage = p/14
            s_mul_i32 s53, s52, 14
            s_sub_u32 s51, s51, s53         ; u
            s_cmp_ge_u32 s51, 4
            s_cbranch_scc1 {L}_tu{rnd}
            s_lshl_b32 s51, s51, 6
            v_add_u32 v62, s51, v0          ; row
            s_mov_b32 s53, 1280
            v_mul_lo_u32 v62, v62, s53
            s_mul_i32 s53, s4, {256*1280}
            s_lshl_b32 s52, s52, 7
            s_add_u32 s53, s53, s52
            buffer_load_dword v{1+rnd}, v62, s[12:15], s53 offen
            s_branch {L}_td{rnd}""")
            e.label(f"{L}_tu{rnd}")
            e(f"""s_sub_u32 s51, s51, 4
            s_lshl_b32 s51, s51, 13
            v_lshlrev_b32 v62, 7, v0
            s_mul_i32 s52, s52, {64*1280}
            s_add_u32 s53, s51, s52
            buffer_load_dword v{1+rnd}, v62, s[8:11], s53 offen""")
            e.label(f"{L}_td{rnd}")
    e("""v_and_b32 v60, 15, v0          ; c
    v_lshrrev_b32 v61, 4, v0        ; q
    s_and_b32 s56, s3, 1
    s_lshr_b32 s57, s3, 1
    v_lshrrev_b32 v62, 2, v60        ; r
    v_and_b32 v63, 1, v61
    v_lshl_add_u32 v63, v63, 2, v62  ; g
    v_lshl_add_u32 v62, v61, 3, v62  ; 8q+r
    v_lshlrev_b32 v62, 8, v62
    v_and_b32 v64, 3, v60
    v_lshl_add_u32 v62, v64, 3, v62
    s_lshl_b32 s51, s56, 2""")
    for a in range(4):
        e(f"""s_add_u32 s58, s51, {a}
        v_xor_b32 v64, s58, v63
        v_lshl_add_u32 v{5+a}, v64, 5, v62""")
        if X_U:
            e(f"v_add_u32 v{5+a}, {X_U}, v{5+a}")
    e(f"""v_lshrrev_b32 v62, 1, v60
    v_xor_b32 v62, v62, v61
    v_lshlrev_b32 v62, 4, v62
    v_lshl_add_u32 v62, v60, 7, v62
    s_lshl_b32 s51, s57, 12
    s_add_u32 s51, s51, {X_X}
    v_add_u32 v9, s51, v62
    v_xor_b32 v10, 64, v9""")
    for i in range(32):
        e(f"v_mov_b32 v{96+i}, 0")
    e("s_mov_b32 s30, 0")
    e(f"s_mov_b32 s31, {X_NST}")
    stamp(e, 1)
    e.label(f"{L}_loop")
    e("s_barrier")
    for a in range(6):
        e(f"v_add_u32 v{11+a}, s30, v{5+a}")
    e(f"""s_add_u32 s30, s30, {X_STAGE}
    s_cmp_ge_u32 s30, {X_S*X_STAGE}
    s_cselect_b32 s30, 0, s30""")
    for kh in range(2):
        base = 32 + 32 * kh
        for a in range(4):
            e(f"ds_read_b64_tr_b16 v[{base+4*a}:{base+4*a+1}], v{11+a} offset:{8192*kh}")
            e(f"ds_read_b64_tr_b16 v[{base+4*a+2}:{base+4*a+3}], v{11+a} offset:{8192*kh+1024}")
        for mt in range(2):
            e(f"ds_read_b128 v[{base+16+4*mt}:{base+19+4*mt}], v{15+kh} offset:{2048*mt}")
    for kh in range(2):
        base = 32 + 32 * kh
        e(f"s_waitcnt lgkmcnt({10 if kh == 0 else 0})")
        for a in range(4):
            for mt in range(2):
                d = 96 + 8 * a + 4 * mt
                e(f"v_mfma_f32_16x16x32_bf16 v[{d}:{d+3}], v[{base+4*a}:{base+4*a+3}], v[{base+16+4*mt}:{base+19+4*mt}], v[{d}:{d+3}]")
    e(f"""s_sub_u32 s31, s31, 1
    s_cmp_lg_u32 s31, 0
    s_cbranch_scc1 {L}_loop""")
    stamp(e, 2)
    e(f"""s_lshl_b32 s51, s7, 3
    s_lshl_b32 s52, s57, 1
    s_add_u32 s51, s51, s52
    s_mul_i32 s51, s51, 20
    s_lshl_b32 s52, s6, 2
    s_add_u32 s51, s51, s52
    s_lshl_b32 s52, s56, 1
    s_add_u32 s51, s51, s52
    s_lshl_b32 s54, s51, 10
    s_add_u32 s54, s54, {XR_WS}
    s_add_u32 s55, s54, 20480
    v_lshlrev_b32 v62, 4, v0
    s_nop 7""")
    for mt in range(2):
        for kb in range(2):
            P = 32 + 8 * mt + 4 * kb
            d0 = 96 + 8 * (2 * kb) + 4 * mt
            d1 = 96 + 8 * (2 * kb + 1) + 4 * mt
            e(f"""v_cvt_pk_bf16_f32 v{P}, v{d0}, v{d0+1}
            v_cvt_pk_bf16_f32 v{P+1}, v{d0+2}, v{d0+3}
            v_cvt_pk_bf16_f32 v{P+2}, v{d1}, v{d1+1}
            v_cvt_pk_bf16_f32 v{P+3}, v{d1+2}, v{d1+3}""")
            so = "s54" if mt == 0 else "s55"
            off = f" offset:{1024*kb}" if kb else ""
            e(f"buffer_store_dwordx4 v[{P}:{P+3}], v62, s[16:19], {so} offen{off}")
    stamp_flush(e, 4, 0)
    e("s_endpgm")

def p1_kernel(e):
    e.raw(".p2align 8")
    e.raw(".type p1_kernel,@function")
    e.label("p1_kernel")
    e("""s_cmp_ge_u32 s2, 240
    s_cbranch_scc1 P1_end""")
    stamp(e, 0)
    e("""s_load_dwordx16 s[32:47], s[0:1], 0
    s_load_dwordx2 s[48:49], s[0:1], 64
    v_lshrrev_b32 v1, 6, v0
    v_and_b32 v0, 63, v0
    s_and_b32 s4, s2, 7
    s_lshr_b32 s5, s2, 3
    v_readfirstlane_b32 s3, v1
    s_waitcnt lgkmcnt(0)""")
    srd(e, 16, 48, WS_BYTES)
    e("""s_cmp_ge_u32 s5, 20
    s_cbranch_scc1 P1_x""")
    e("""s_mul_i32 s7, s5, 52
    s_lshr_b32 s7, s7, 8          ; i/5
    s_mul_i32 s51, s7, 5
    s_sub_u32 s6, s5, s51         ; i%5
    s_and_b32 s51, s4, 1
    s_mul_i32 s51, s51, 5
    s_add_u32 s6, s6, s51
    s_lshr_b32 s51, s4, 1
    s_lshl_b32 s51, s51, 2
    s_add_u32 s7, s7, s51""")
    srd(e, 8, 34, 3932160)
    srd(e, 12, 42, 4718592)
    e("""s_cmp_ge_u32 s3, 8
    s_cbranch_scc1 P1_tl
    s_cmp_ge_u32 s3, 4
    s_cbranch_scc1 P1_tc1""")
    srd(e, 20, 38, 3072)
    srd(e, 24, 36, 3072)
    t_consumer(e, 0)
    e.label("P1_tc1")
    t_consumer(e, 1)
    e.label("P1_tl")
    t_loader(e)
    e.label("P1_x")
    e("""s_sub_u32 s5, s5, 20
    s_cmp_ge_u32 s5, 5
    s_cselect_b32 s51, 1, 0
    s_mul_i32 s52, s51, 5
    s_sub_u32 s6, s5, s52
    s_lshl_b32 s7, s4, 1
    s_add_u32 s7, s7, s51""")
    srd(e, 8, 40, 819200)
    srd(e, 12, 32, 2621440)
    e("""s_cmp_ge_u32 s3, 8
    s_cbranch_scc1 P1_xl""")
    x_consumer(e)
    e.label("P1_xl")
    x_loader(e)
    e.label("P1_end")
    e("s_endpgm")

Y_S = 5
Y_STAGE = 28672
Y_NST = 10
P2_LDS = Y_S * Y_STAGE

def p2_kernel(e):
    CUR_K[0] = 1
    e.raw(".p2align 8")
    e.raw(".type p2_kernel,@function")
    e.label("p2_kernel")
    e("""s_cmp_ge_u32 s2, 256
    s_cbranch_scc1 P2_end""")
    stamp(e, 0)
    e("""s_load_dwordx2 s[44:45], s[0:1], 48
    s_load_dwordx2 s[48:49], s[0:1], 64
    v_lshrrev_b32 v1, 6, v0
    v_and_b32 v0, 63, v0
    s_and_b32 s4, s2, 7
    s_lshr_b32 s5, s2, 3
    v_readfirstlane_b32 s3, v1
    v_lshlrev_b32 v1, 4, v0""")
    e("""s_and_b32 s6, s4, 3
    s_lshl_b32 s6, s6, 2
    s_and_b32 s51, s5, 3
    s_add_u32 s6, s6, s51
    s_lshr_b32 s7, s4, 2
    s_lshl_b32 s7, s7, 3
    s_lshr_b32 s51, s5, 2
    s_add_u32 s7, s7, s51
    s_cmp_ge_u32 s3, 4
    s_cbranch_scc0 P2_c""")
    e(f"""s_sub_u32 s50, s3, 4
    s_and_b32 s51, s50, 1
    s_lshr_b32 s52, s50, 1           ; kk
    s_mul_i32 s53, s52, 14336
    s_mul_i32 s55, s51, 3072
    s_add_u32 s54, s53, 6144
    s_add_u32 s53, s53, s55          ; T lds base
    s_lshl_b32 s55, s51, 12
    s_add_u32 s54, s54, s55          ; xr lds base
    s_mul_i32 s55, s51, 3
    s_mul_i32 s56, s7, 6
    s_add_u32 s55, s55, s56
    s_mul_i32 s55, s55, 20
    s_add_u32 s55, s55, s52
    s_lshl_b32 s28, s55, 10
    s_add_u32 s28, s28, {T_WS}
    s_lshl_b32 s55, s51, 2
    s_lshl_b32 s56, s6, 3
    s_add_u32 s55, s55, s56
    s_mul_i32 s55, s55, 20
    s_add_u32 s55, s55, s52
    s_lshl_b32 s27, s55, 10
    s_add_u32 s27, s27, {XR_WS}""")
    for i in range(1, 4):
        e(f"v_add_u32 v{1+i}, {19456*i}, v1")
    e("s_waitcnt lgkmcnt(0)")
    srd(e, 16, 48, WS_BYTES)
    def issue():
        e("s_add_u32 m0, s29, s53")
        e("s_nop 0")
        for i in range(3):
            off = f" offset:{1024*i}" if i else ""
            e(f"buffer_load_dwordx4 v{1+i}, s[16:19], s28 offen{off} lds")
        e("s_add_u32 m0, s29, s54")
        e("s_add_u32 s28, s28, 2048")
        for i in range(4):
            off = f" offset:{1024*i}" if i else ""
            e(f"buffer_load_dwordx4 v{1+i}, s[16:19], s27 offen{off} lds")
        e("s_add_u32 s27, s27, 2048")
    loader_loop(e, "YL", Y_NST, Y_S, Y_STAGE, 7, issue)
    e.label("P2_c")
    ACC = 64
    FB = [8, 112]
    for i in range(48):
        e(f"v_mov_b32 v{ACC+i}, 0")
    e("""s_lshl_b32 s51, s3, 11
    s_add_u32 s51, s51, 6144
    v_add_u32 v2, s51, v1
    s_waitcnt lgkmcnt(0)""")
    srd(e, 16, 48, WS_BYTES)
    srd(e, 8, 44, 6291456)
    e("s_mov_b32 s30, 0")

    def rlist(kk, b):
        l = []
        for mi in range(2):
            l.append(f"ds_read_b128 v[{b+24+4*mi}:{b+27+4*mi}], v4 offset:{kk*14336 + mi*1024}")
        for gt in range(6):
            l.append(f"ds_read_b128 v[{b+4*gt}:{b+4*gt+3}], v3 offset:{kk*14336 + gt*1024}")
        return l

    def block(b, rl):
        i = 0
        for gt in range(6):
            for mi in range(2):
                d = ACC + (gt * 2 + mi) * 4
                e(f"v_mfma_f32_16x16x32_bf16 v[{d}:{d+3}], v[{b+4*gt}:{b+4*gt+3}], v[{b+24+4*mi}:{b+27+4*mi}], v[{d}:{d+3}]")
                if i < len(rl):
                    e(rl[i]); i += 1

    def newslot():
        e(f"""v_add_u32 v3, s30, v1
        v_add_u32 v4, s30, v2
        s_add_u32 s30, s30, {Y_STAGE}
        s_cmp_ge_u32 s30, {Y_S*Y_STAGE}
        s_cselect_b32 s30, 0, s30""")

    e("s_barrier")
    stamp(e, 1)
    newslot()
    for r in rlist(0, FB[0]):
        e(r)
    e(f"s_mov_b32 s31, {Y_NST-1}")
    e.label("P2_loop")
    e("s_waitcnt lgkmcnt(0)")
    block(FB[0], rlist(1, FB[1]))
    e("s_waitcnt lgkmcnt(0)")
    e("s_barrier")
    newslot()
    block(FB[1], rlist(0, FB[0]))
    e("""s_sub_u32 s31, s31, 1
    s_cmp_lg_u32 s31, 0
    s_cbranch_scc1 P2_loop""")
    e("s_waitcnt lgkmcnt(0)")
    block(FB[0], rlist(1, FB[1]))
    e("s_waitcnt lgkmcnt(0)")
    block(FB[1], [])
    stamp(e, 2)
    e("""v_and_b32 v3, 15, v0
    v_lshrrev_b32 v4, 4, v0
    s_mov_b32 s52, 3072
    v_mul_lo_u32 v3, v3, s52
    v_and_b32 v5, 1, v4
    v_lshrrev_b32 v4, 1, v4
    v_lshlrev_b32 v5, 5, v5
    v_lshl_add_u32 v5, v4, 4, v5
    v_add_u32 v3, v3, v5
    s_lshl_b32 s51, s6, 7
    s_lshl_b32 s52, s3, 5
    s_add_u32 s51, s51, s52
    s_mul_i32 s54, s51, 3072
    s_mul_i32 s52, s7, 192
    s_add_u32 s54, s54, s52
    s_add_u32 s55, s54, 49152
    s_nop 7""")
    for mi in range(2):
        for a in range(3):
            P = 8 + (mi * 3 + a) * 4
            dA = ACC + ((2 * a) * 2 + mi) * 4
            dB = ACC + ((2 * a + 1) * 2 + mi) * 4
            e(f"""v_cvt_pk_bf16_f32 v{P}, v{dA}, v{dA+1}
            v_cvt_pk_bf16_f32 v{P+1}, v{dA+2}, v{dA+3}
            v_cvt_pk_bf16_f32 v{P+2}, v{dB}, v{dB+1}
            v_cvt_pk_bf16_f32 v{P+3}, v{dB+2}, v{dB+3}
            s_nop 1
            v_permlane16_swap_b32 v{P}, v{P+2}
            v_permlane16_swap_b32 v{P+1}, v{P+3}""")
            so = "s54" if mi == 0 else "s55"
            off = f" offset:{64*a}" if a else ""
            e("s_nop 1")
            e(f"buffer_store_dwordx4 v[{P}:{P+3}], v3, s[8:11], {so} offen{off}")
    stamp_flush(e, 4, 1)
    e.label("P2_end")
    e("s_endpgm")

def main(out):
    e = E()
    e.raw(HEADER.rstrip('\n'))
    e.raw(f"; @launch kernel=p1_kernel grid=(240,1,1) block=(768,1,1) lds={P1_LDS}")
    e.raw(f"; @launch kernel=p2_kernel grid=(256,1,1) block=(512,1,1) lds={P2_LDS}")
    e.raw('.amdgcn_target "amdgcn-amd-amdhsa--gfx950"')
    e.raw(".text")
    e.raw(".globl p1_kernel")
    e.raw(".globl p2_kernel")
    p1_kernel(e)
    p2_kernel(e)
    e.raw('.section .rodata,"a"')
    for name, vg, acc in (("p1_kernel", 144, 144), ("p2_kernel", 144, 144)):
        e.raw(".p2align 6")
        e.raw(f""".amdhsa_kernel {name}
  .amdhsa_next_free_vgpr {vg}
  .amdhsa_next_free_sgpr 96
  .amdhsa_accum_offset {acc}
  .amdhsa_group_segment_fixed_size 0
  .amdhsa_kernarg_size 72
  .amdhsa_user_sgpr_count 2
  .amdhsa_user_sgpr_kernarg_segment_ptr 1
  .amdhsa_system_sgpr_workgroup_id_x 1
  .amdhsa_float_denorm_mode_32 3
.end_amdhsa_kernel""")
    open(out, 'w').write(e.text())

if __name__ == '__main__':
    for a in sys.argv[2:]:
        if a == 'diag':
            DIAG = True
        elif '=' in a:
            k, v = a.split('=')
            OPT[k] = int(v)
    main(sys.argv[1] if len(sys.argv) > 1 else 'standalone__weight_only_int_quip__prompt.s')
```

```python
import sys

HEADER = open('standalone__weight_only_int_quip__prompt.s.ref').read().split('; Override launch')[0]

XR_WS = 0
T_WS = 2621440
WS_BYTES = 268435456
OPT = dict(ldprio=0, noload=0, nocomp=0, touch=1, tdelta=12, xdelta=6, nt=0, nttouch=0, xtouch=0, samek=0, dbg=0, drop=0, split=16, zdpp=1, sdpp=1, rdfirst=1, inner=0, tmode=1, protouch=1, p0=8, xfirst=1, tlead=4)

class E:
    def __init__(self):
        self.l = []
    def __call__(self, s):
        for line in s.strip('\n').split('\n'):
            t = line.strip()
            if OPT['noload'] and t.endswith(' lds'): continue
            if (OPT['drop'] & 1) and t.startswith('ds_read_b64_tr'): continue
            if (OPT['drop'] & 2) and t.endswith('; DQ'): continue
            if (OPT['drop'] & 8) and (t.startswith('ds_read_b128') or t.startswith('ds_read_b32')): continue
            if (OPT['drop'] & 4) and t.startswith('v_mfma'): continue
            if OPT['samek'] and (t.startswith('s_add_u32 s28, s28,') or t.startswith('s_add_u32 s27, s27,')): continue
            if OPT['nt'] and t.endswith(' lds') and ('s[8:11]' in t or 's[12:15]' in t): t = t[:-4] + ' nt lds'
            if OPT['nttouch'] and t.startswith('buffer_load_dword v'): t = t + ' nt'
            if OPT['nocomp'] and (t.startswith('ds_read') or t.startswith('v_mfma') or '_dpp' in t or t.startswith('v_cvt')): continue
            self.l.append('    ' + t)
    def label(self, s):
        self.l.append(s + ':')
    def raw(self, s):
        self.l.append(s)
    def text(self):
        return '\n'.join(self.l) + '\n'

DIAG = False
STAMP_WS = 64 << 20
def dbg_entry(e):
    if not OPT['dbg']: return
    e("""s_memrealtime s[90:91]
    s_load_dwordx2 s[92:93], s[0:1], 56
    s_waitcnt lgkmcnt(0)
    s_mov_b32 s88, s92
    s_and_b32 s89, s93, 0xffff
    s_not_b32 s94, s90
    s_mov_b32 s90, 256
    s_mov_b32 s91, 0x00020000""")
DBGN = [0]
def dbg_exit(e, kern):
    if not OPT['dbg']: return
    DBGN[0] += 1
    lab = f"DBGX{DBGN[0]}"
    e(f"""s_and_b32 s95, s3, 3
    s_cmp_lg_u32 s95, 0
    s_cbranch_scc1 {lab}""")
    if kern == 1:
        e(f"""s_cmp_lg_u32 s2, 0
        s_cbranch_scc1 {lab}b
        s_sub_u32 s92, s88, 512
        s_subb_u32 s93, s89, 0
        s_load_dwordx2 s[92:93], s[92:93], 0
        s_waitcnt lgkmcnt(0)
        v_mov_b32 v2, 0
        v_mov_b32 v4, s92
        v_mov_b32 v5, s93
        buffer_store_dwordx2 v[4:5], v2, s[88:91], 0 offen offset:8""")
        e.label(lab + "b")
    dbg_exit2(e)
    e.label(lab)
def dbg_exit2(e):
    e("""s_waitcnt vmcnt(0)
    s_memrealtime s[92:93]
    s_waitcnt lgkmcnt(0)
    v_mov_b32 v2, 0
    v_mov_b32 v4, s94
    v_mov_b32 v5, s92
    s_mov_b64 exec, 1
    buffer_atomic_umax v4, v2, s[88:91], 0 offen
    buffer_atomic_umax v5, v2, s[88:91], 0 offen offset:4
    s_waitcnt vmcnt(0)""")

CUR_K = [0]
def stamp(e, i):
    if i == 0 and OPT['dbg']: dbg_entry(e)
    if not DIAG: return
    e(f"""s_memtime s[{64+4*i}:{65+4*i}]
    s_memrealtime s[{66+4*i}:{67+4*i}]
    s_waitcnt lgkmcnt(0)""")
def stamp_flush(e, n, kern):
    if OPT['dbg']: dbg_exit(e, kern)
    if not DIAG: return
    e(f"""s_waitcnt vmcnt(0)""")
    stamp(e, n - 1)
    e(f"""s_lshl_b32 s60, s2, 4
    s_add_u32 s60, s60, s3
    s_lshl_b32 s60, s60, 7
    s_add_u32 s60, s60, {STAMP_WS + kern * (1 << 20)}
    v_mov_b32 v2, 0
    s_getreg_b32 s61, hwreg(HW_REG_XCC_ID)
    s_getreg_b32 s62, hwreg(HW_REG_HW_ID)
    v_mov_b32 v4, s61
    v_mov_b32 v5, s62
    buffer_store_dwordx2 v[4:5], v2, s[16:19], s60 offen offset:112
    s_waitcnt vmcnt(0)
    v_mov_b32 v4, s84
    v_mov_b32 v5, s85
    buffer_store_dwordx2 v[4:5], v2, s[16:19], s60 offen offset:96
    s_waitcnt vmcnt(0)""")
    for i in range(n):
        e(f"""v_mov_b32 v4, s{64+4*i}
        v_mov_b32 v5, s{65+4*i}
        v_mov_b32 v6, s{66+4*i}
        v_mov_b32 v7, s{67+4*i}
        buffer_store_dwordx4 v[4:7], v2, s[16:19], s60 offen offset:{16*i}
        s_waitcnt vmcnt(0)""")

def srd(e, d, lo, nbytes):
    e(f"""s_mov_b32 s{d}, s{lo}
    s_and_b32 s{d+1}, s{lo+1}, 0xffff
    s_mov_b32 s{d+2}, {nbytes}
    s_mov_b32 s{d+3}, 0x00020000""")

T_S = 5
T_STAGE = 28672
T_QW = 0
T_V = 16384
T_ZS = T_S * T_STAGE
T_NST = 24
X_S = 4
X_STAGE = 32768
X_U = 0
X_X = 16384
X_NST = 10
P1_LDS = T_ZS + 12288

def loader_loop(e, L, nst, RING, stage_bytes, npieces, issue, lead=None):
    S = (lead + 1) if lead else RING
    if OPT['ldprio']:
        e(f"s_setprio {OPT['ldprio']}")
    def rec():
        if DIAG:
            e("""s_memtime s[62:63]
            s_waitcnt lgkmcnt(0)
            v_mov_b32 v21, s62
            v_cmp_eq_u32 vcc, s61, v0
            s_nop 1
            v_cndmask_b32 v20, v20, v21, vcc
            s_add_u32 s61, s61, 1""")
    def adv():
        e(f"""s_add_u32 s29, s29, {stage_bytes}
        s_cmp_ge_u32 s29, {RING*stage_bytes}
        s_cselect_b32 s29, 0, s29""")
    e("s_mov_b32 s29, 0")
    if DIAG:
        e("s_mov_b32 s61, 0\nv_mov_b32 v20, 0")
        rec()
    issued = 0
    first = min(2, S - 1)
    for _ in range(first):
        issue(); adv(); issued += 1
    s = 0
    while issued < s + S - 1:
        e(f"s_waitcnt vmcnt({npieces*(issued-1-s)})")
        e("s_barrier")
        rec()
        for _ in range(2):
            if issued < s + S:
                issue(); adv(); issued += 1
        s += 1
    nloop = nst - issued
    e(f"s_mov_b32 s31, {nloop}")
    e.label(f"{L}_ldloop")
    e(f"s_waitcnt vmcnt({npieces*(S-2)})")
    e("s_barrier")
    rec()
    issue()
    adv()
    e(f"""s_sub_u32 s31, s31, 1
    s_cmp_lg_u32 s31, 0
    s_cbranch_scc1 {L}_ldloop""")
    s += nloop
    for ss in range(s, nst):
        e(f"s_waitcnt vmcnt({npieces*(nst-1-ss)})")
        e("s_barrier")
        rec()
    if DIAG:
        kern = 1 if L == "YL" else 0
        e(f"""s_lshl_b32 s60, s2, 2
        s_add_u32 s60, s60, s50
        s_lshl_b32 s60, s60, 8
        s_add_u32 s60, s60, {STAMP_WS + (4 + kern) * (1 << 20)}
        v_lshlrev_b32 v21, 2, v0
        buffer_store_dword v20, v21, s[16:19], s60 offen""")
    e("s_endpgm")

def dequant_ops(R, ZD, NZ, SC, P, A):
    ops = []
    for i in range(8):
        ops.append(f"v_cvt_f32_i32 v{R+i}, v{R+i}")
    for i in range(8):
        if OPT['zdpp']:
            ops.append(f"v_add_f32_dpp v{R+i}, v{ZD}, v{R+i} row_newbcast:{i} row_mask:0xf bank_mask:0xf")
        else:
            ops.append(f"v_add_f32 v{R+i}, v{NZ+i}, v{R+i}")
    for i in range(4):
        ops.append(f"v_cvt_pk_bf16_f32 v{P+i}, v{R+2*i}, v{R+2*i+1}")
    for i in range(4):
        ops.append(f"v_lshlrev_b32 v{R+2*i}, 16, v{P+i}")
        ops.append(f"v_and_b32 v{R+2*i+1}, 0xffff0000, v{P+i}")
    for i in range(8):
        if OPT['sdpp']:
            ops.append(f"v_mul_f32_dpp v{R+i}, v{ZD}, v{R+i} row_newbcast:{8+i} row_mask:0xf bank_mask:0xf")
        else:
            ops.append(f"v_mul_f32 v{R+i}, v{SC+i}, v{R+i}")
    for i in range(4):
        ops.append(f"v_cvt_pk_bf16_f32 v{A+i}, v{R+2*i}, v{R+2*i+1}")
    return [o + ' ; DQ' for o in ops]

def t_loader(e):
    e("""s_sub_u32 s50, s3, 8
    v_and_b32 v60, 15, v0
    v_lshrrev_b32 v61, 4, v0
    s_mov_b32 s52, 6144""")
    for i in range(4):
        e(f"""v_add_u32 v62, {4*i}, v61
        v_mul_lo_u32 v63, v62, s52
        v_xor_b32 v62, v60, v62
        v_lshl_add_u32 v{1+i}, v62, 4, v63""")
        if i:
            e(f"v_subrev_u32 v{1+i}, {1024*i}, v{1+i}")
    e(f"""s_lshl_b32 s28, s6, 6
    s_lshl_b32 s51, s50, 4
    s_add_u32 s28, s28, s51
    s_mul_i32 s28, s28, 6144
    s_lshl_b32 s53, s50, 12
    s_add_u32 s53, s53, {T_QW}
    s_mov_b32 s52, 3072""")
    for j in range(3):
        e(f"""v_add_u32 v62, {64*j}, v0
        v_mul_u32_u24 v63, 171, v62
        v_lshrrev_b32 v63, 11, v63
        v_mul_u32_u24 v64, 12, v63
        v_sub_u32 v62, v62, v64
        v_lshrrev_b32 v64, 3, v63
        v_and_b32 v64, 1, v64
        v_lshlrev_b32 v64, 1, v64
        v_xor_b32 v62, v62, v64
        v_mul_lo_u32 v63, v63, s52
        v_lshl_add_u32 v{5+j}, v62, 4, v63""")
        if j:
            e(f"v_subrev_u32 v{5+j}, {1024*j}, v{5+j}")
    e(f"""s_mul_i32 s27, s50, 49152
    s_mul_i32 s51, s7, 192
    s_add_u32 s27, s27, s51
    s_mul_i32 s54, s50, 3072
    s_add_u32 s54, s54, {T_V}""")
    def issue():
        e("s_add_u32 m0, s29, s53")
        e("s_nop 0")
        for i in range(4):
            off = f" offset:{1024*i}" if i else ""
            e(f"buffer_load_dwordx4 v{1+i}, s[8:11], s28 offen{off} lds")
        e("s_add_u32 m0, s29, s54")
        e("s_add_u32 s28, s28, 256")
        for j in range(3):
            off = f" offset:{1024*j}" if j else ""
            e(f"buffer_load_dwordx4 v{5+j}, s[12:15], s27 offen{off} lds")
        e(f"s_add_u32 s27, s27, {64*3072}")
    loader_loop(e, "TL", T_NST, T_S, T_STAGE, 7, issue, lead=OPT["tlead"])

def touch_setup(e, tag, vo, t):
    e(f"""s_cmp_ge_u32 s51, 10
    s_cbranch_scc1 {tag}_tv
    s_lshl_b32 s51, s51, 6
    v_add_u32 v{t}, s51, v0
    v_lshrrev_b32 v{t+1}, 1, v{t}
    v_and_b32 v{t}, 1, v{t}
    s_mov_b32 s53, 6144
    v_mul_lo_u32 v{t+1}, v{t+1}, s53
    v_lshl_add_u32 v{vo}, v{t}, 7, v{t+1}
    s_and_b32 s27, s4, 1
    s_mul_i32 s27, s27, {320*6144}
    s_lshl_b32 s52, s26, 8
    s_add_u32 s27, s27, s52
    s_mov_b32 s52, s34
    s_and_b32 s53, s35, 0xffff
    s_mov_b32 s54, 3932160
    s_mov_b32 s55, 0x00020000
    s_branch {tag}_td""")
    e.label(f"{tag}_tv")
    e(f"""s_sub_u32 s51, s51, 10
    s_lshl_b32 s51, s51, 6
    v_add_u32 v{t}, s51, v0
    v_mul_u32_u24 v{t+1}, 171, v{t}
    v_lshrrev_b32 v{t+1}, 10, v{t+1}
    v_mul_u32_u24 v{t+2}, 6, v{t+1}
    v_sub_u32 v{t}, v{t}, v{t+2}
    s_mov_b32 s53, 3072
    v_mul_lo_u32 v{t+1}, v{t+1}, s53
    v_lshl_add_u32 v{vo}, v{t}, 7, v{t+1}
    s_lshr_b32 s27, s4, 1
    s_mul_i32 s27, s27, 768
    s_mul_i32 s52, s26, {64*3072}
    s_add_u32 s27, s27, s52
    s_mov_b32 s52, s42
    s_and_b32 s53, s43, 0xffff
    s_mov_b32 s54, 4718592
    s_mov_b32 s55, 0x00020000""")
    e.label(f"{tag}_td")

def idle_toucher(e):
    e("""s_cmp_lg_u32 s3, 0
    s_cbranch_scc1 P1_end
    s_sub_u32 s24, s5, 30""")
    e.label("IT_loop")
    e("""s_mul_i32 s26, s24, 171
    s_lshr_b32 s26, s26, 9
    s_mul_i32 s51, s26, 3
    s_sub_u32 s51, s24, s51
    s_add_u32 s51, s51, 13
    s_add_u32 s26, s26, """ + str(OPT['p0'] or 4))
    touch_setup(e, "IT", 3, 20)
    e("""buffer_load_dword v2, v3, s[52:55], s27 offen
    s_add_u32 s24, s24, 2
    s_cmp_lt_u32 s24, """ + str(3 * (24 - (OPT['p0'] or 4))) + """
    s_cbranch_scc1 IT_loop
    s_endpgm""")

def tcheck(e, tag, step=None):
    if step is None:
        step = 100 if OPT['tmode'] == 1 else 10
    e(f"""s_cmp_gt_u32 s26, s25
    s_cbranch_scc1 {tag}_nt
    s_cmp_ge_u32 s26, {T_NST}
    s_cbranch_scc1 {tag}_nt
    buffer_load_dword v2, v3, s[52:55], s27 offen
    s_add_u32 s26, s26, {step}
    s_add_u32 s27, s27, s28""")
    e.label(f"{tag}_nt")

def t_consumer(e, par):
    L = f"TC{par}"
    e("""s_and_b32 s50, s3, 3
    v_and_b32 v60, 15, v0          ; c
    v_lshrrev_b32 v61, 4, v0        ; q""")
    if par == 0:
        e(f"""s_cmp_ge_u32 s3, 3
        s_cbranch_scc1 {L}_nozs
        s_lshl_b32 s51, s3, 10
        v_lshlrev_b32 v62, 4, v0
        v_add_u32 v62, s51, v62
        buffer_load_dwordx4 v[64:67], v62, s[20:23], 0 offen
        buffer_load_dwordx4 v[68:71], v62, s[24:27], 0 offen
        s_waitcnt vmcnt(0)""")
        for i in range(4):
            e(f"""v_lshlrev_b32 v{16+2*i}, 16, v{64+i}
            v_and_b32 v{17+2*i}, 0xffff0000, v{64+i}
            v_lshlrev_b32 v{24+2*i}, 16, v{68+i}
            v_and_b32 v{25+2*i}, 0xffff0000, v{68+i}""")
        for i in range(8):
            e(f"v_xor_b32 v{16+i}, 0x80000000, v{16+i}")
        e(f"""s_lshl_b32 s51, s3, 12
        v_lshlrev_b32 v62, 6, v0
        v_add_u32 v62, s51, v62
        v_add_u32 v62, {T_ZS}, v62
        ds_write_b128 v62, v[16:19]
        ds_write_b128 v62, v[20:23] offset:16
        ds_write_b128 v62, v[24:27] offset:32
        ds_write_b128 v62, v[28:31] offset:48
        s_waitcnt lgkmcnt(0)""")
        e.label(f"{L}_nozs")
    if OPT['touch'] and OPT['tmode'] == 1:
        e(f"""s_add_u32 s26, s5, {OPT['p0'] or 4}
        s_mov_b32 s51, s3""")
        touch_setup(e, L, 3, 62)
        e(f"""s_mov_b32 s28, 0
        s_mov_b32 s25, {OPT['tdelta'] + par}""")
        if OPT['protouch']:
            tcheck(e, L + "p0", 100)
    elif OPT['touch']:
            e(f"""s_lshl_b32 s51, s5, 3
            s_add_u32 s51, s51, s3
            s_lshr_b32 s26, s51, 4          ; sigma0
            s_and_b32 s51, s51, 15          ; u
            s_cmp_ge_u32 s51, 10
            s_cbranch_scc1 {L}_tv
            s_lshl_b32 s51, s51, 6
            v_add_u32 v62, s51, v0          ; t
            v_lshrrev_b32 v63, 1, v62       ; row
            v_and_b32 v62, 1, v62
            s_mov_b32 s53, 6144
            v_mul_lo_u32 v63, v63, s53
            v_lshl_add_u32 v3, v62, 7, v63
            s_and_b32 s27, s4, 1
            s_mul_i32 s27, s27, {320*6144}
            s_lshl_b32 s52, s26, 8
            s_add_u32 s27, s27, s52
            s_mov_b32 s28, 2560
            s_mov_b32 s52, s34
            s_and_b32 s53, s35, 0xffff
            s_mov_b32 s54, 3932160
            s_mov_b32 s55, 0x00020000
            s_branch {L}_td""")
            e.label(f"{L}_tv")
            e(f"""s_sub_u32 s51, s51, 10
            s_lshl_b32 s51, s51, 6
            v_add_u32 v62, s51, v0          ; t in 0..383
            v_mul_u32_u24 v63, 171, v62
            v_lshrrev_b32 v63, 10, v63      ; row = t/6
            v_mul_u32_u24 v64, 6, v63
            v_sub_u32 v62, v62, v64
            s_mov_b32 s53, 3072
            v_mul_lo_u32 v63, v63, s53
            v_lshl_add_u32 v3, v62, 7, v63
            s_lshr_b32 s27, s4, 1
            s_mul_i32 s27, s27, 768
            s_mul_i32 s52, s26, {64*3072}
            s_add_u32 s27, s27, s52
            s_mov_b32 s28, {640*3072}
            s_mov_b32 s52, s42
            s_and_b32 s53, s43, 0xffff
            s_mov_b32 s54, 4718592
            s_mov_b32 s55, 0x00020000""")
            e.label(f"{L}_td")
            e(f"""s_cmp_ge_u32 s26, {T_S-1}
            s_cbranch_scc1 {L}_t0
            s_add_u32 s26, s26, 10
            s_add_u32 s27, s27, s28""")
            e.label(f"{L}_t0")
            e(f"s_mov_b32 s25, {OPT['tdelta'] + par}      ; s + delta")
            tcheck(e, L + "p0")
            tcheck(e, L + "p1")
    e(f"""s_and_b32 s56, s3, 1            ; eh
    s_lshr_b32 s57, s3, 1
    s_and_b32 s57, s57, 1           ; kh
    s_lshl_b32 s51, s57, 3
    v_lshlrev_b32 v62, 1, v61
    v_add_u32 v62, s51, v62
    v_xor_b32 v62, v62, v60
    v_lshlrev_b32 v62, 4, v62
    v_lshl_add_u32 v62, v60, 8, v62
    s_lshl_b32 s51, s56, 13
    s_add_u32 s51, s51, {T_QW}
    v_add_u32 v5, s51, v62
    v_xor_b32 v6, 16, v5
    v_lshlrev_b32 v4, 2, v0
    s_lshl_b32 s51, s57, 8
    s_add_u32 s51, s51, {T_ZS + 512*par}
    v_add_u32 v4, s51, v4
    v_lshlrev_b32 v9, 6, v61
    v_add_u32 v9, s51, v9""")
    e(f"""v_lshrrev_b32 v62, 2, v60        ; r
    v_lshl_add_u32 v62, v61, 3, v62  ; 8q + r
    v_mul_u32_u24 v62, 192, v62
    v_and_b32 v63, 3, v60
    v_lshl_add_u32 v62, v63, 3, v62
    s_mul_i32 s51, s57, {32*192}
    s_add_u32 s51, s51, {T_V}
    v_add_u32 v62, s51, v62
    v_and_b32 v63, 1, v61
    v_lshl_add_u32 v10, v63, 5, v62
    v_xor_b32 v63, 1, v63
    v_lshl_add_u32 v11, v63, 5, v62""")
    RAW0 = 18
    RAW1 = [26, 34]
    ZD = [42, 43]
    P = 44
    A = 48
    B = [52, 76]
    ACC = 100
    NZ, SC = 148, 156
    REGZS = not OPT['zdpp']
    if REGZS:
        for i in range(16):
            e(f"v_mov_b32 v{NZ+i}, 0")
    for i in range(48):
        e(f"v_mov_b32 v{ACC+i}, 0")
    for i in range(24):
        e(f"v_mov_b32 v{B[1]+i}, 0")
    for i in range(8):
        e(f"v_mov_b32 v{RAW1[1]+i}, 0")
    e(f"v_mov_b32 v{ZD[1]}, 0")
    e(f"s_mov_b32 s30, {T_STAGE*par}")
    e("s_mov_b32 s31, 6")
    stamp(e, 1)
    if par == 1:
        e("s_barrier")
    def tmr(reg):
        if DIAG and OPT['inner']:
            e(f"""s_memtime s[{reg}:{reg+1}]
            s_waitcnt lgkmcnt(0)""")
    def rlist(X):
        rd = [f"ds_read_b128 v[{RAW0}:{RAW0+3}], v12",
              f"ds_read_b128 v[{RAW0+4}:{RAW0+7}], v13",
              f"ds_read_b128 v[{RAW1[X]}:{RAW1[X]+3}], v12 offset:4096",
              f"ds_read_b128 v[{RAW1[X]+4}:{RAW1[X]+7}], v13 offset:4096"]
        if not REGZS:
            rd.append(f"ds_read_b32 v{ZD[X]}, v4")
        for gt in range(6):
            a_ = 16 if gt % 2 == 0 else 17
            off = 64 * (gt // 2)
            rd.append(f"ds_read_b64_tr_b16 v[{B[X]+4*gt}:{B[X]+4*gt+1}], v{a_} offset:{off}")
            rd.append(f"ds_read_b64_tr_b16 v[{B[X]+4*gt+2}:{B[X]+4*gt+3}], v{a_} offset:{off+768}")
        return rd
    def comp(f, X):
        R = RAW0 if f == 0 else RAW1[X]
        return dequant_ops(R, ZD[X], NZ, SC, P, A) + ["s_nop 1"] + \
            [f"v_mfma_f32_16x16x32_bf16 v[{ACC+24*f+4*gt}:{ACC+24*f+4*gt+3}], v[{A}:{A+3}], v[{B[X]+4*gt}:{B[X]+4*gt+3}], v[{ACC+24*f+4*gt}:{ACC+24*f+4*gt+3}]" for gt in range(6)]
    def mix(rd, cp):
        if OPT['rdfirst']:
            for r in rd: e(r)
            for op in cp: e(op)
            return
        i = 0
        for j, op in enumerate(cp):
            if i < len(rd) and j % 2 == 0:
                e(rd[i]); i += 1
            e(op)
        assert i == len(rd)
    if DIAG:
        e("s_mov_b32 s84, 0\ns_mov_b32 s85, 0")
    def unit(X, tag):
        e("s_barrier")
        tmr(80)
        e("""v_add_u32 v12, s30, v5
        v_add_u32 v13, s30, v6
        v_add_u32 v16, s30, v10
        v_add_u32 v17, s30, v11""")
        cp = comp(1, 1 - X)
        if REGZS:
            zr = [f"ds_read_b128 v[{NZ+4*i}:{NZ+4*i+3}], v9 offset:{16*i}" for i in range(4)]
            cp = cp[:40] + zr + cp[40:]
        mix(rlist(X), cp)
        e(f"""v_add_u32 v4, 1024, v4
        v_add_u32 v9, 1024, v9
        s_add_u32 s30, s30, {2*T_STAGE}
        s_cmp_ge_u32 s30, {T_S*T_STAGE}
        s_cselect_b32 s51, {T_S*T_STAGE}, 0
        s_sub_u32 s30, s30, s51
        s_waitcnt lgkmcnt(0)""")
        tmr(82)
        if DIAG:
            e("s_sub_u32 s82, s82, s80\ns_add_u32 s84, s84, s82")
        e("s_barrier")
        tmr(80)
        if OPT['touch']:
            e("s_add_u32 s25, s25, 2")
            tcheck(e, L + tag)
        for op in comp(0, X):
            e(op)
        tmr(82)
        if DIAG:
            e("s_sub_u32 s82, s82, s80\ns_add_u32 s85, s85, s82")
    e.label(f"{L}_loop")
    unit(0, "la")
    unit(1, "lb")
    e(f"""s_sub_u32 s31, s31, 1
    s_cmp_lg_u32 s31, 0
    s_cbranch_scc1 {L}_loop""")
    if par == 0:
        e("s_barrier")
    for op in comp(1, 1):
        e(op)
    stamp(e, 2)
    e(f"""s_mul_i32 s51, s56, 49152
    s_mul_i32 s52, s57, 12288
    s_add_u32 s51, s51, s52
    s_add_u32 s51, s51, {24576*par}
    v_lshlrev_b32 v15, 4, v0
    v_add_u32 v14, s51, v15
    s_mul_i32 s51, s56, 49152
    v_add_u32 v13, s51, v15
    s_nop 7""")
    for kh_ in range(2):
        j = kh_ + 2 * par
        if kh_ == 0:
            e(f"""s_cmp_eq_u32 s57, 1
            s_cbranch_scc1 {L}_ep1""")
        else:
            e.label(f"{L}_ep1")
        for f in range(2):
            for gt in range(6):
                if gt // 2 != j:
                    e(f"ds_write_b128 v14, v[{ACC+24*f+4*gt}:{ACC+24*f+4*gt+3}] offset:{(f*6+gt)*1024}")
        if j < 3:
            e(f"""s_lshl_b32 s51, s6, 1
            s_add_u32 s51, s51, s56
            s_mul_i32 s54, s7, 120
            s_add_u32 s54, s54, s51
            s_add_u32 s54, s54, {40*j}
            s_lshl_b32 s54, s54, 10
            s_add_u32 s54, s54, {T_WS}
            s_add_u32 s55, s54, 20480""")
        e("s_waitcnt lgkmcnt(0)")
        e("s_barrier")
        if j < 3:
            srcs = [x for x in range(4) if x != j]
            n = 0
            for g2 in range(2):
                gt = 2 * j + g2
                for f in range(2):
                    for si, x in enumerate(srcs):
                        r = 20 + ((g2 * 2 + f) * 3 + si) * 4
                        e(f"ds_read_b128 v[{r}:{r+3}], v13 offset:{x*12288 + (f*6+gt)*1024}")
            for g2 in range(2):
                gt = 2 * j + g2
                for f in range(2):
                    e(f"s_waitcnt lgkmcnt({12 - 3*(g2*2+f+1)})")
                    d = ACC + 24 * f + 4 * gt
                    for si in range(3):
                        r = 20 + ((g2 * 2 + f) * 3 + si) * 4
                        for i in range(4):
                            e(f"v_add_f32 v{d+i}, v{d+i}, v{r+i}")
                    e(f"v_cvt_pk_bf16_f32 v{72+4*g2+2*f}, v{d}, v{d+1}")
                    e(f"v_cvt_pk_bf16_f32 v{73+4*g2+2*f}, v{d+2}, v{d+3}")
                e(f"buffer_store_dwordx4 v[{72+4*g2}:{75+4*g2}], v15, s[16:19], s{54+g2} offen")
        if kh_ == 0:
            stamp_flush(e, 4, 0)
            e("s_endpgm")
    stamp_flush(e, 4, 0)
    e("s_endpgm")

def x_loader(e):
    e("""s_sub_u32 s50, s3, 8
    v_and_b32 v60, 15, v0
    v_lshrrev_b32 v61, 4, v0
    s_mov_b32 s52, 1280""")
    for i in range(4):
        e(f"""v_add_u32 v62, {4*i}, v61
        v_mul_lo_u32 v63, v62, s52
        v_or_b32 v62, {((i>>1)&1)<<2}, v61
        v_lshlrev_b32 v62, 1, v62
        v_xor_b32 v62, v60, v62
        v_lshl_add_u32 v{1+i}, v62, 4, v63""")
        if i:
            e(f"v_subrev_u32 v{1+i}, {1024*i}, v{1+i}")
    e(f"""s_mul_i32 s28, s50, 20480
    s_lshl_b32 s51, s6, 8
    s_add_u32 s28, s28, s51
    s_lshl_b32 s53, s50, 12
    s_add_u32 s53, s53, {X_U}""")
    for i in range(4):
        e(f"""v_lshrrev_b32 v62, 3, v0
        v_add_u32 v62, {8*i}, v62
        v_mul_lo_u32 v63, v62, s52
        v_add_u32 v62, {4*i}, v61
        v_and_b32 v62, 7, v62
        v_and_b32 v64, 7, v0
        v_xor_b32 v62, v64, v62
        v_lshl_add_u32 v{5+i}, v62, 4, v63""")
        if i:
            e(f"v_subrev_u32 v{5+i}, {1024*i}, v{5+i}")
    e(f"""s_lshl_b32 s27, s7, 7
    s_lshl_b32 s51, s50, 5
    s_add_u32 s27, s27, s51
    s_mul_i32 s27, s27, 1280
    s_lshl_b32 s54, s50, 12
    s_add_u32 s54, s54, {X_X}""")
    def issue():
        e("s_add_u32 m0, s29, s53")
        e("s_nop 0")
        for i in range(4):
            off = f" offset:{1024*i}" if i else ""
            e(f"buffer_load_dwordx4 v{1+i}, s[8:11], s28 offen{off} lds")
        e("s_add_u32 m0, s29, s54")
        e(f"s_add_u32 s28, s28, {64*1280}")
        for i in range(4):
            off = f" offset:{1024*i}" if i else ""
            e(f"buffer_load_dwordx4 v{5+i}, s[12:15], s27 offen{off} lds")
        e("s_add_u32 s27, s27, 128")
    loader_loop(e, "XL", X_NST, X_S, X_STAGE, 8, issue)

def x_consumer(e):
    L = "XC"
    if OPT['xtouch']:
        for rnd in range(2):
            e(f"""s_lshl_b32 s51, s5, 3
            s_add_u32 s51, s51, s3
            s_add_u32 s51, s51, {14*OPT['xfirst'] + 80*rnd}
            s_cmp_ge_u32 s51, 140
            s_cbranch_scc1 {L}_td{rnd}
            s_mul_i32 s52, s51, 147
            s_lshr_b32 s52, s52, 11         ; stage = p/14
            s_mul_i32 s53, s52, 14
            s_sub_u32 s51, s51, s53         ; u
            s_cmp_ge_u32 s51, 4
            s_cbranch_scc1 {L}_tu{rnd}
            s_lshl_b32 s51, s51, 6
            v_add_u32 v62, s51, v0          ; row
            s_mov_b32 s53, 1280
            v_mul_lo_u32 v62, v62, s53
            s_mul_i32 s53, s4, {256*1280}
            s_lshl_b32 s52, s52, 7
            s_add_u32 s53, s53, s52
            buffer_load_dword v{1+rnd}, v62, s[12:15], s53 offen
            s_branch {L}_td{rnd}""")
            e.label(f"{L}_tu{rnd}")
            e(f"""s_sub_u32 s51, s51, 4
            s_lshl_b32 s51, s51, 13
            v_lshlrev_b32 v62, 7, v0
            s_mul_i32 s52, s52, {64*1280}
            s_add_u32 s53, s51, s52
            buffer_load_dword v{1+rnd}, v62, s[8:11], s53 offen""")
            e.label(f"{L}_td{rnd}")
    e("""v_and_b32 v60, 15, v0          ; c
    v_lshrrev_b32 v61, 4, v0        ; q
    s_and_b32 s56, s3, 1
    s_lshr_b32 s57, s3, 1
    v_lshrrev_b32 v62, 2, v60        ; r
    v_and_b32 v63, 1, v61
    v_lshl_add_u32 v63, v63, 2, v62  ; g
    v_lshl_add_u32 v62, v61, 3, v62  ; 8q+r
    v_lshlrev_b32 v62, 8, v62
    v_and_b32 v64, 3, v60
    v_lshl_add_u32 v62, v64, 3, v62
    s_lshl_b32 s51, s56, 2""")
    for a in range(4):
        e(f"""s_add_u32 s58, s51, {a}
        v_xor_b32 v64, s58, v63
        v_lshl_add_u32 v{5+a}, v64, 5, v62""")
        if X_U:
            e(f"v_add_u32 v{5+a}, {X_U}, v{5+a}")
    e(f"""v_lshrrev_b32 v62, 1, v60
    v_xor_b32 v62, v62, v61
    v_lshlrev_b32 v62, 4, v62
    v_lshl_add_u32 v62, v60, 7, v62
    s_lshl_b32 s51, s57, 12
    s_add_u32 s51, s51, {X_X}
    v_add_u32 v9, s51, v62
    v_xor_b32 v10, 64, v9""")
    for i in range(32):
        e(f"v_mov_b32 v{96+i}, 0")
    e("s_mov_b32 s30, 0")
    e(f"s_mov_b32 s31, {X_NST}")
    stamp(e, 1)
    e("s_mov_b32 s24, s5")
    e("s_mov_b32 s25, 0")
    e.label(f"{L}_loop")
    e("s_barrier")
    if OPT['touch'] and OPT['tmode'] == 1:
        e(f"""s_and_b32 s51, s25, 7
        s_cmp_lg_u32 s51, s3
        s_cbranch_scc1 {L}_nt
        s_mul_i32 s26, s24, 205
        s_lshr_b32 s26, s26, 10
        s_mul_i32 s51, s26, 5
        s_sub_u32 s51, s24, s51
        s_add_u32 s51, s51, 8
        s_add_u32 s26, s26, {OPT['p0'] or 4}
        s_cmp_ge_u32 s26, 24
        s_cbranch_scc1 {L}_nt""")
        touch_setup(e, L + "x", 3, 20)
        e("buffer_load_dword v2, v3, s[52:55], s27 offen")
        e.label(f"{L}_nt")
        e("""s_add_u32 s24, s24, 10
        s_add_u32 s25, s25, 1""")
    for a in range(6):
        e(f"v_add_u32 v{11+a}, s30, v{5+a}")
    e(f"""s_add_u32 s30, s30, {X_STAGE}
    s_cmp_ge_u32 s30, {X_S*X_STAGE}
    s_cselect_b32 s30, 0, s30""")
    for kh in range(2):
        base = 32 + 32 * kh
        for a in range(4):
            e(f"ds_read_b64_tr_b16 v[{base+4*a}:{base+4*a+1}], v{11+a} offset:{8192*kh}")
            e(f"ds_read_b64_tr_b16 v[{base+4*a+2}:{base+4*a+3}], v{11+a} offset:{8192*kh+1024}")
        for mt in range(2):
            e(f"ds_read_b128 v[{base+16+4*mt}:{base+19+4*mt}], v{15+kh} offset:{2048*mt}")
    for kh in range(2):
        base = 32 + 32 * kh
        e(f"s_waitcnt lgkmcnt({10 if kh == 0 else 0})")
        for a in range(4):
            for mt in range(2):
                d = 96 + 8 * a + 4 * mt
                e(f"v_mfma_f32_16x16x32_bf16 v[{d}:{d+3}], v[{base+4*a}:{base+4*a+3}], v[{base+16+4*mt}:{base+19+4*mt}], v[{d}:{d+3}]")
    e(f"""s_sub_u32 s31, s31, 1
    s_cmp_lg_u32 s31, 0
    s_cbranch_scc1 {L}_loop""")
    stamp(e, 2)
    e(f"""s_lshl_b32 s51, s7, 3
    s_lshl_b32 s52, s57, 1
    s_add_u32 s51, s51, s52
    s_mul_i32 s51, s51, 20
    s_lshl_b32 s52, s6, 2
    s_add_u32 s51, s51, s52
    s_lshl_b32 s52, s56, 1
    s_add_u32 s51, s51, s52
    s_lshl_b32 s54, s51, 10
    s_add_u32 s54, s54, {XR_WS}
    s_add_u32 s55, s54, 20480
    v_lshlrev_b32 v62, 4, v0
    s_nop 7""")
    for mt in range(2):
        for kb in range(2):
            P = 32 + 8 * mt + 4 * kb
            d0 = 96 + 8 * (2 * kb) + 4 * mt
            d1 = 96 + 8 * (2 * kb + 1) + 4 * mt
            e(f"""v_cvt_pk_bf16_f32 v{P}, v{d0}, v{d0+1}
            v_cvt_pk_bf16_f32 v{P+1}, v{d0+2}, v{d0+3}
            v_cvt_pk_bf16_f32 v{P+2}, v{d1}, v{d1+1}
            v_cvt_pk_bf16_f32 v{P+3}, v{d1+2}, v{d1+3}""")
            so = "s54" if mt == 0 else "s55"
            off = f" offset:{1024*kb}" if kb else ""
            e(f"buffer_store_dwordx4 v[{P}:{P+3}], v62, s[16:19], {so} offen{off}")
    stamp_flush(e, 4, 0)
    e("s_endpgm")

def p1_kernel(e):
    e.raw(".p2align 8")
    e.raw(".type p1_kernel,@function")
    e.label("p1_kernel")
    e(f"""s_cmp_ge_u32 s2, {256 if OPT['touch'] and OPT['tmode'] == 1 else 240}
    s_cbranch_scc1 P1_end""")
    stamp(e, 0)
    e("""s_load_dwordx16 s[32:47], s[0:1], 0
    s_load_dwordx2 s[48:49], s[0:1], 64
    v_lshrrev_b32 v1, 6, v0
    v_and_b32 v0, 63, v0
    s_and_b32 s4, s2, 7
    s_lshr_b32 s5, s2, 3
    v_readfirstlane_b32 s3, v1
    s_waitcnt lgkmcnt(0)""")
    srd(e, 16, 48, WS_BYTES)
    P0 = OPT['p0']
    if OPT['touch'] and OPT['tmode'] == 1 and P0:
        e(f"""s_cmp_lt_u32 s3, 4
        s_cbranch_scc1 P0_done
        s_cmp_ge_u32 s3, {4 + P0 // 2}
        s_cbranch_scc1 P0_done
        s_sub_u32 s51, s3, 4
        s_lshl_b32 s51, s51, 5
        s_add_u32 s51, s51, s5
        s_lshr_b32 s26, s51, 4
        s_and_b32 s51, s51, 15""")
        touch_setup(e, "P0", 3, 20)
        e("buffer_load_dword v2, v3, s[52:55], s27 offen")
        e.label("P0_done")
    e("""s_cmp_ge_u32 s5, 30
    s_cbranch_scc1 P1_i
    s_cmp_ge_u32 s5, 20
    s_cbranch_scc1 P1_x""")
    e("""s_mul_i32 s7, s5, 52
    s_lshr_b32 s7, s7, 8          ; i/5
    s_mul_i32 s51, s7, 5
    s_sub_u32 s6, s5, s51         ; i%5
    s_and_b32 s51, s4, 1
    s_mul_i32 s51, s51, 5
    s_add_u32 s6, s6, s51
    s_lshr_b32 s51, s4, 1
    s_lshl_b32 s51, s51, 2
    s_add_u32 s7, s7, s51""")
    srd(e, 8, 34, 3932160)
    srd(e, 12, 42, 4718592)
    e("""s_cmp_ge_u32 s3, 8
    s_cbranch_scc1 P1_tl
    s_cmp_ge_u32 s3, 4
    s_cbranch_scc1 P1_tc1""")
    srd(e, 20, 38, 3072)
    srd(e, 24, 36, 3072)
    t_consumer(e, 0)
    e.label("P1_tc1")
    t_consumer(e, 1)
    e.label("P1_tl")
    t_loader(e)
    e.label("P1_x")
    e("""s_sub_u32 s5, s5, 20
    s_cmp_ge_u32 s5, 5
    s_cselect_b32 s51, 1, 0
    s_mul_i32 s52, s51, 5
    s_sub_u32 s6, s5, s52
    s_lshl_b32 s7, s4, 1
    s_add_u32 s7, s7, s51""")
    srd(e, 8, 40, 819200)
    srd(e, 12, 32, 2621440)
    e("""s_cmp_ge_u32 s3, 8
    s_cbranch_scc1 P1_xl""")
    x_consumer(e)
    e.label("P1_xl")
    x_loader(e)
    e.label("P1_i")
    idle_toucher(e)
    e.label("P1_end")
    e("s_endpgm")

Y_S = 5
Y_STAGE = 28672
Y_NST = 10
P2_LDS = Y_S * Y_STAGE

def p2_kernel(e):
    CUR_K[0] = 1
    e.raw(".p2align 8")
    e.raw(".type p2_kernel,@function")
    e.label("p2_kernel")
    e("""s_cmp_ge_u32 s2, 256
    s_cbranch_scc1 P2_end""")
    stamp(e, 0)
    e("""s_load_dwordx2 s[44:45], s[0:1], 48
    s_load_dwordx2 s[48:49], s[0:1], 64
    v_lshrrev_b32 v1, 6, v0
    v_and_b32 v0, 63, v0
    s_and_b32 s4, s2, 7
    s_lshr_b32 s5, s2, 3
    v_readfirstlane_b32 s3, v1
    v_lshlrev_b32 v1, 4, v0""")
    e("""s_and_b32 s6, s4, 3
    s_lshl_b32 s6, s6, 2
    s_and_b32 s51, s5, 3
    s_add_u32 s6, s6, s51
    s_lshr_b32 s7, s4, 2
    s_lshl_b32 s7, s7, 3
    s_lshr_b32 s51, s5, 2
    s_add_u32 s7, s7, s51
    s_cmp_ge_u32 s3, 4
    s_cbranch_scc0 P2_c""")
    e(f"""s_sub_u32 s50, s3, 4
    s_and_b32 s51, s50, 1
    s_lshr_b32 s52, s50, 1           ; kk
    s_mul_i32 s53, s52, 14336
    s_mul_i32 s55, s51, 3072
    s_add_u32 s54, s53, 6144
    s_add_u32 s53, s53, s55          ; T lds base
    s_lshl_b32 s55, s51, 12
    s_add_u32 s54, s54, s55          ; xr lds base
    s_mul_i32 s55, s51, 3
    s_mul_i32 s56, s7, 6
    s_add_u32 s55, s55, s56
    s_mul_i32 s55, s55, 20
    s_add_u32 s55, s55, s52
    s_lshl_b32 s28, s55, 10
    s_add_u32 s28, s28, {T_WS}
    s_lshl_b32 s55, s51, 2
    s_lshl_b32 s56, s6, 3
    s_add_u32 s55, s55, s56
    s_mul_i32 s55, s55, 20
    s_add_u32 s55, s55, s52
    s_lshl_b32 s27, s55, 10
    s_add_u32 s27, s27, {XR_WS}""")
    for i in range(1, 4):
        e(f"v_add_u32 v{1+i}, {19456*i}, v1")
    e("s_waitcnt lgkmcnt(0)")
    srd(e, 16, 48, WS_BYTES)
    def issue():
        e("s_add_u32 m0, s29, s53")
        e("s_nop 0")
        for i in range(3):
            off = f" offset:{1024*i}" if i else ""
            e(f"buffer_load_dwordx4 v{1+i}, s[16:19], s28 offen{off} lds")
        e("s_add_u32 m0, s29, s54")
        e("s_add_u32 s28, s28, 2048")
        for i in range(4):
            off = f" offset:{1024*i}" if i else ""
            e(f"buffer_load_dwordx4 v{1+i}, s[16:19], s27 offen{off} lds")
        e("s_add_u32 s27, s27, 2048")
    loader_loop(e, "YL", Y_NST, Y_S, Y_STAGE, 7, issue)
    e.label("P2_c")
    ACC = 64
    FB = [8, 112]
    for i in range(48):
        e(f"v_mov_b32 v{ACC+i}, 0")
    e("""s_lshl_b32 s51, s3, 11
    s_add_u32 s51, s51, 6144
    v_add_u32 v2, s51, v1
    s_waitcnt lgkmcnt(0)""")
    srd(e, 16, 48, WS_BYTES)
    srd(e, 8, 44, 6291456)
    e("s_mov_b32 s30, 0")

    def rlist(kk, b):
        l = []
        for mi in range(2):
            l.append(f"ds_read_b128 v[{b+24+4*mi}:{b+27+4*mi}], v4 offset:{kk*14336 + mi*1024}")
        for gt in range(6):
            l.append(f"ds_read_b128 v[{b+4*gt}:{b+4*gt+3}], v3 offset:{kk*14336 + gt*1024}")
        return l

    def block(b, rl):
        i = 0
        for gt in range(6):
            for mi in range(2):
                d = ACC + (gt * 2 + mi) * 4
                e(f"v_mfma_f32_16x16x32_bf16 v[{d}:{d+3}], v[{b+4*gt}:{b+4*gt+3}], v[{b+24+4*mi}:{b+27+4*mi}], v[{d}:{d+3}]")
                if i < len(rl):
                    e(rl[i]); i += 1

    def newslot():
        e(f"""v_add_u32 v3, s30, v1
        v_add_u32 v4, s30, v2
        s_add_u32 s30, s30, {Y_STAGE}
        s_cmp_ge_u32 s30, {Y_S*Y_STAGE}
        s_cselect_b32 s30, 0, s30""")

    e("s_barrier")
    stamp(e, 1)
    newslot()
    for r in rlist(0, FB[0]):
        e(r)
    e(f"s_mov_b32 s31, {Y_NST-1}")
    e.label("P2_loop")
    e("s_waitcnt lgkmcnt(0)")
    block(FB[0], rlist(1, FB[1]))
    e("s_waitcnt lgkmcnt(0)")
    e("s_barrier")
    newslot()
    block(FB[1], rlist(0, FB[0]))
    e("""s_sub_u32 s31, s31, 1
    s_cmp_lg_u32 s31, 0
    s_cbranch_scc1 P2_loop""")
    e("s_waitcnt lgkmcnt(0)")
    block(FB[0], rlist(1, FB[1]))
    e("s_waitcnt lgkmcnt(0)")
    block(FB[1], [])
    stamp(e, 2)
    e("""v_and_b32 v3, 15, v0
    v_lshrrev_b32 v4, 4, v0
    s_mov_b32 s52, 3072
    v_mul_lo_u32 v3, v3, s52
    v_and_b32 v5, 1, v4
    v_lshrrev_b32 v4, 1, v4
    v_lshlrev_b32 v5, 5, v5
    v_lshl_add_u32 v5, v4, 4, v5
    v_add_u32 v3, v3, v5
    s_lshl_b32 s51, s6, 7
    s_lshl_b32 s52, s3, 5
    s_add_u32 s51, s51, s52
    s_mul_i32 s54, s51, 3072
    s_mul_i32 s52, s7, 192
    s_add_u32 s54, s54, s52
    s_add_u32 s55, s54, 49152
    s_nop 7""")
    for mi in range(2):
        for a in range(3):
            P = 8 + (mi * 3 + a) * 4
            dA = ACC + ((2 * a) * 2 + mi) * 4
            dB = ACC + ((2 * a + 1) * 2 + mi) * 4
            e(f"""v_cvt_pk_bf16_f32 v{P}, v{dA}, v{dA+1}
            v_cvt_pk_bf16_f32 v{P+1}, v{dA+2}, v{dA+3}
            v_cvt_pk_bf16_f32 v{P+2}, v{dB}, v{dB+1}
            v_cvt_pk_bf16_f32 v{P+3}, v{dB+2}, v{dB+3}
            s_nop 1
            v_permlane16_swap_b32 v{P}, v{P+2}
            v_permlane16_swap_b32 v{P+1}, v{P+3}""")
            so = "s54" if mi == 0 else "s55"
            off = f" offset:{64*a}" if a else ""
            e("s_nop 1")
            e(f"buffer_store_dwordx4 v[{P}:{P+3}], v3, s[8:11], {so} offen{off}")
    stamp_flush(e, 4, 1)
    e.label("P2_end")
    e("s_endpgm")

def main(out):
    e = E()
    e.raw(HEADER.rstrip('\n'))
    e.raw(f"; @launch kernel=p1_kernel grid=({256 if OPT['touch'] and OPT['tmode'] == 1 else 240},1,1) block=(768,1,1) lds={P1_LDS}")
    e.raw(f"; @launch kernel=p2_kernel grid=(256,1,1) block=(512,1,1) lds={P2_LDS}")
    e.raw('.amdgcn_target "amdgcn-amd-amdhsa--gfx950"')
    e.raw(".text")
    e.raw(".globl p1_kernel")
    e.raw(".globl p2_kernel")
    p1_kernel(e)
    p2_kernel(e)
    e.raw('.section .rodata,"a"')
    for name, vg, acc in (("p1_kernel", 168, 168), ("p2_kernel", 144, 144)):
        e.raw(".p2align 6")
        e.raw(f""".amdhsa_kernel {name}
  .amdhsa_next_free_vgpr {vg}
  .amdhsa_next_free_sgpr 96
  .amdhsa_accum_offset {acc}
  .amdhsa_group_segment_fixed_size 0
  .amdhsa_kernarg_size 72
  .amdhsa_user_sgpr_count 2
  .amdhsa_user_sgpr_kernarg_segment_ptr 1
  .amdhsa_system_sgpr_workgroup_id_x 1
  .amdhsa_float_denorm_mode_32 3
.end_amdhsa_kernel""")
    open(out, 'w').write(e.text())

if __name__ == '__main__':
    for a in sys.argv[2:]:
        if a == 'diag':
            DIAG = True
        elif '=' in a:
            k, v = a.split('=')
            OPT[k] = int(v)
    main(sys.argv[1] if len(sys.argv) > 1 else 'standalone__weight_only_int_quip__prompt.s')
```

```python
import sys

HEADER = open('standalone__weight_only_int_quip__prompt.s.ref').read().split('; Override launch')[0]

XR_WS = 0
T_WS = 2621440
WS_BYTES = 268435456
OPT = dict(ldprio=0, noload=0, nocomp=0, touch=1, tdelta=12, xdelta=6, nt=0, nttouch=0, xtouch=0, samek=0, dbg=0, drop=0, split=16, zdpp=1, sdpp=1, rdfirst=1, inner=0, tmode=1, protouch=1, p0=8, xfirst=1, tlead=4)

class E:
    def __init__(self):
        self.l = []
    def __call__(self, s):
        for line in s.strip('\n').split('\n'):
            t = line.strip()
            if OPT['noload'] and t.endswith(' lds'): continue
            if (OPT['drop'] & 1) and t.startswith('ds_read_b64_tr'): continue
            if (OPT['drop'] & 2) and t.endswith('; DQ'): continue
            if (OPT['drop'] & 8) and (t.startswith('ds_read_b128') or t.startswith('ds_read_b32')): continue
            if (OPT['drop'] & 4) and t.startswith('v_mfma'): continue
            if OPT['samek'] and (t.startswith('s_add_u32 s28, s28,') or t.startswith('s_add_u32 s27, s27,')): continue
            if OPT['nt'] and t.endswith(' lds') and ('s[8:11]' in t or 's[12:15]' in t): t = t[:-4] + ' nt lds'
            if OPT['nttouch'] and t.startswith('buffer_load_dword v'): t = t + ' nt'
            if OPT['nocomp'] and (t.startswith('ds_read') or t.startswith('v_mfma') or '_dpp' in t or t.startswith('v_cvt')): continue
            self.l.append('    ' + t)
    def label(self, s):
        self.l.append(s + ':')
    def raw(self, s):
        self.l.append(s)
    def text(self):
        return '\n'.join(self.l) + '\n'

DIAG = False
STAMP_WS = 64 << 20
def dbg_entry(e):
    if not OPT['dbg']: return
    e("""s_memrealtime s[90:91]
    s_memtime s[86:87]
    s_load_dwordx2 s[92:93], s[0:1], 56
    s_waitcnt lgkmcnt(0)
    s_mov_b32 s88, s92
    s_and_b32 s89, s93, 0xffff
    s_not_b32 s94, s90
    s_mov_b32 s90, 256
    s_mov_b32 s91, 0x00020000""")
DBGN = [0]
def dbg_exit(e, kern):
    if not OPT['dbg']: return
    DBGN[0] += 1
    lab = f"DBGX{DBGN[0]}"
    e(f"""s_and_b32 s95, s3, 3
    s_cmp_lg_u32 s95, 0
    s_cbranch_scc1 {lab}""")
    if kern == 1:
        e(f"""s_cmp_lg_u32 s2, 0
        s_cbranch_scc1 {lab}b
        s_sub_u32 s92, s88, 512
        s_subb_u32 s93, s89, 0
        s_load_dwordx8 s[72:79], s[92:93], 0
        s_waitcnt lgkmcnt(0)
        v_mov_b32 v2, 0
        v_mov_b32 v4, s72
        v_mov_b32 v5, s73
        v_mov_b32 v6, s74
        v_mov_b32 v7, s75
        buffer_store_dwordx4 v[4:7], v2, s[88:91], 0 offen offset:16
        v_mov_b32 v8, s76
        v_mov_b32 v9, s77
        v_mov_b32 v10, s78
        v_mov_b32 v11, s79
        buffer_store_dwordx4 v[8:11], v2, s[88:91], 0 offen offset:32""")
        e.label(lab + "b")
    dbg_exit2(e)
    e.label(lab)
def dbg_exit2(e):
    e("""s_waitcnt vmcnt(0)
    s_memrealtime s[92:93]
    s_waitcnt lgkmcnt(0)
    v_mov_b32 v2, 0
    v_mov_b32 v4, s94
    v_mov_b32 v5, s92
    s_mov_b64 exec, 1
    buffer_atomic_umax v4, v2, s[88:91], 0 offen
    buffer_atomic_umax v5, v2, s[88:91], 0 offen offset:4
    s_waitcnt vmcnt(0)
    s_memtime s[70:71]
    s_waitcnt lgkmcnt(0)
    s_sub_u32 s70, s70, s86
    s_not_b32 s94, s94
    s_sub_u32 s71, s92, s94
    s_or_b32 s95, s2, s3
    s_cmp_lg_u32 s95, 0""")
    DBGN[0] += 1
    e(f"""s_cbranch_scc1 DBGY{DBGN[0]}
    v_mov_b32 v4, s70
    v_mov_b32 v5, s71
    buffer_store_dwordx2 v[4:5], v2, s[88:91], 0 offen offset:8
    s_waitcnt vmcnt(0)""")
    e.label(f"DBGY{DBGN[0]}")

CUR_K = [0]
def stamp(e, i):
    if i == 0 and OPT['dbg']: dbg_entry(e)
    if not DIAG: return
    e(f"""s_memtime s[{64+4*i}:{65+4*i}]
    s_memrealtime s[{66+4*i}:{67+4*i}]
    s_waitcnt lgkmcnt(0)""")
def stamp_flush(e, n, kern):
    if OPT['dbg']: dbg_exit(e, kern)
    if not DIAG: return
    e(f"""s_waitcnt vmcnt(0)""")
    stamp(e, n - 1)
    e(f"""s_lshl_b32 s60, s2, 4
    s_add_u32 s60, s60, s3
    s_lshl_b32 s60, s60, 7
    s_add_u32 s60, s60, {STAMP_WS + kern * (1 << 20)}
    v_mov_b32 v2, 0
    s_getreg_b32 s61, hwreg(HW_REG_XCC_ID)
    s_getreg_b32 s62, hwreg(HW_REG_HW_ID)
    v_mov_b32 v4, s61
    v_mov_b32 v5, s62
    buffer_store_dwordx2 v[4:5], v2, s[16:19], s60 offen offset:112
    s_waitcnt vmcnt(0)
    v_mov_b32 v4, s84
    v_mov_b32 v5, s85
    buffer_store_dwordx2 v[4:5], v2, s[16:19], s60 offen offset:96
    s_waitcnt vmcnt(0)""")
    for i in range(n):
        e(f"""v_mov_b32 v4, s{64+4*i}
        v_mov_b32 v5, s{65+4*i}
        v_mov_b32 v6, s{66+4*i}
        v_mov_b32 v7, s{67+4*i}
        buffer_store_dwordx4 v[4:7], v2, s[16:19], s60 offen offset:{16*i}
        s_waitcnt vmcnt(0)""")

def srd(e, d, lo, nbytes):
    e(f"""s_mov_b32 s{d}, s{lo}
    s_and_b32 s{d+1}, s{lo+1}, 0xffff
    s_mov_b32 s{d+2}, {nbytes}
    s_mov_b32 s{d+3}, 0x00020000""")

T_S = 5
T_STAGE = 28672
T_QW = 0
T_V = 16384
T_ZS = T_S * T_STAGE
T_NST = 24
X_S = 4
X_STAGE = 32768
X_U = 0
X_X = 16384
X_NST = 10
P1_LDS = T_ZS + 12288

def loader_loop(e, L, nst, RING, stage_bytes, npieces, issue, lead=None):
    S = (lead + 1) if lead else RING
    if OPT['ldprio']:
        e(f"s_setprio {OPT['ldprio']}")
    def rec():
        if DIAG:
            e("""s_memtime s[62:63]
            s_waitcnt lgkmcnt(0)
            v_mov_b32 v21, s62
            v_cmp_eq_u32 vcc, s61, v0
            s_nop 1
            v_cndmask_b32 v20, v20, v21, vcc
            s_add_u32 s61, s61, 1""")
    def adv():
        e(f"""s_add_u32 s29, s29, {stage_bytes}
        s_cmp_ge_u32 s29, {RING*stage_bytes}
        s_cselect_b32 s29, 0, s29""")
    e("s_mov_b32 s29, 0")
    if DIAG:
        e("s_mov_b32 s61, 0\nv_mov_b32 v20, 0")
        rec()
    issued = 0
    first = min(2, S - 1)
    for _ in range(first):
        issue(); adv(); issued += 1
    s = 0
    while issued < s + S - 1:
        e(f"s_waitcnt vmcnt({npieces*(issued-1-s)})")
        e("s_barrier")
        rec()
        for _ in range(2):
            if issued < s + S:
                issue(); adv(); issued += 1
        s += 1
    nloop = nst - issued
    e(f"s_mov_b32 s31, {nloop}")
    e.label(f"{L}_ldloop")
    e(f"s_waitcnt vmcnt({npieces*(S-2)})")
    e("s_barrier")
    rec()
    issue()
    adv()
    e(f"""s_sub_u32 s31, s31, 1
    s_cmp_lg_u32 s31, 0
    s_cbranch_scc1 {L}_ldloop""")
    s += nloop
    for ss in range(s, nst):
        e(f"s_waitcnt vmcnt({npieces*(nst-1-ss)})")
        e("s_barrier")
        rec()
    if DIAG:
        kern = 1 if L == "YL" else 0
        e(f"""s_lshl_b32 s60, s2, 2
        s_add_u32 s60, s60, s50
        s_lshl_b32 s60, s60, 8
        s_add_u32 s60, s60, {STAMP_WS + (4 + kern) * (1 << 20)}
        v_lshlrev_b32 v21, 2, v0
        buffer_store_dword v20, v21, s[16:19], s60 offen""")
    e("s_endpgm")

def dequant_ops(R, ZD, NZ, SC, P, A):
    ops = []
    for i in range(8):
        ops.append(f"v_cvt_f32_i32 v{R+i}, v{R+i}")
    for i in range(8):
        if OPT['zdpp']:
            ops.append(f"v_add_f32_dpp v{R+i}, v{ZD}, v{R+i} row_newbcast:{i} row_mask:0xf bank_mask:0xf")
        else:
            ops.append(f"v_add_f32 v{R+i}, v{NZ+i}, v{R+i}")
    for i in range(4):
        ops.append(f"v_cvt_pk_bf16_f32 v{P+i}, v{R+2*i}, v{R+2*i+1}")
    for i in range(4):
        ops.append(f"v_lshlrev_b32 v{R+2*i}, 16, v{P+i}")
        ops.append(f"v_and_b32 v{R+2*i+1}, 0xffff0000, v{P+i}")
    for i in range(8):
        if OPT['sdpp']:
            ops.append(f"v_mul_f32_dpp v{R+i}, v{ZD}, v{R+i} row_newbcast:{8+i} row_mask:0xf bank_mask:0xf")
        else:
            ops.append(f"v_mul_f32 v{R+i}, v{SC+i}, v{R+i}")
    for i in range(4):
        ops.append(f"v_cvt_pk_bf16_f32 v{A+i}, v{R+2*i}, v{R+2*i+1}")
    return [o + ' ; DQ' for o in ops]

def t_loader(e):
    e("""s_sub_u32 s50, s3, 8
    v_and_b32 v60, 15, v0
    v_lshrrev_b32 v61, 4, v0
    s_mov_b32 s52, 6144""")
    for i in range(4):
        e(f"""v_add_u32 v62, {4*i}, v61
        v_mul_lo_u32 v63, v62, s52
        v_xor_b32 v62, v60, v62
        v_lshl_add_u32 v{1+i}, v62, 4, v63""")
        if i:
            e(f"v_subrev_u32 v{1+i}, {1024*i}, v{1+i}")
    e(f"""s_lshl_b32 s28, s6, 6
    s_lshl_b32 s51, s50, 4
    s_add_u32 s28, s28, s51
    s_mul_i32 s28, s28, 6144
    s_lshl_b32 s53, s50, 12
    s_add_u32 s53, s53, {T_QW}
    s_mov_b32 s52, 3072""")
    for j in range(3):
        e(f"""v_add_u32 v62, {64*j}, v0
        v_mul_u32_u24 v63, 171, v62
        v_lshrrev_b32 v63, 11, v63
        v_mul_u32_u24 v64, 12, v63
        v_sub_u32 v62, v62, v64
        v_lshrrev_b32 v64, 3, v63
        v_and_b32 v64, 1, v64
        v_lshlrev_b32 v64, 1, v64
        v_xor_b32 v62, v62, v64
        v_mul_lo_u32 v63, v63, s52
        v_lshl_add_u32 v{5+j}, v62, 4, v63""")
        if j:
            e(f"v_subrev_u32 v{5+j}, {1024*j}, v{5+j}")
    e(f"""s_mul_i32 s27, s50, 49152
    s_mul_i32 s51, s7, 192
    s_add_u32 s27, s27, s51
    s_mul_i32 s54, s50, 3072
    s_add_u32 s54, s54, {T_V}""")
    def issue():
        e("s_add_u32 m0, s29, s53")
        e("s_nop 0")
        for i in range(4):
            off = f" offset:{1024*i}" if i else ""
            e(f"buffer_load_dwordx4 v{1+i}, s[8:11], s28 offen{off} lds")
        e("s_add_u32 m0, s29, s54")
        e("s_add_u32 s28, s28, 256")
        for j in range(3):
            off = f" offset:{1024*j}" if j else ""
            e(f"buffer_load_dwordx4 v{5+j}, s[12:15], s27 offen{off} lds")
        e(f"s_add_u32 s27, s27, {64*3072}")
    loader_loop(e, "TL", T_NST, T_S, T_STAGE, 7, issue, lead=OPT["tlead"])

def touch_setup(e, tag, vo, t):
    e(f"""s_cmp_ge_u32 s51, 10
    s_cbranch_scc1 {tag}_tv
    s_lshl_b32 s51, s51, 6
    v_add_u32 v{t}, s51, v0
    v_lshrrev_b32 v{t+1}, 1, v{t}
    v_and_b32 v{t}, 1, v{t}
    s_mov_b32 s53, 6144
    v_mul_lo_u32 v{t+1}, v{t+1}, s53
    v_lshl_add_u32 v{vo}, v{t}, 7, v{t+1}
    s_and_b32 s27, s4, 1
    s_mul_i32 s27, s27, {320*6144}
    s_lshl_b32 s52, s26, 8
    s_add_u32 s27, s27, s52
    s_mov_b32 s52, s34
    s_and_b32 s53, s35, 0xffff
    s_mov_b32 s54, 3932160
    s_mov_b32 s55, 0x00020000
    s_branch {tag}_td""")
    e.label(f"{tag}_tv")
    e(f"""s_sub_u32 s51, s51, 10
    s_lshl_b32 s51, s51, 6
    v_add_u32 v{t}, s51, v0
    v_mul_u32_u24 v{t+1}, 171, v{t}
    v_lshrrev_b32 v{t+1}, 10, v{t+1}
    v_mul_u32_u24 v{t+2}, 6, v{t+1}
    v_sub_u32 v{t}, v{t}, v{t+2}
    s_mov_b32 s53, 3072
    v_mul_lo_u32 v{t+1}, v{t+1}, s53
    v_lshl_add_u32 v{vo}, v{t}, 7, v{t+1}
    s_lshr_b32 s27, s4, 1
    s_mul_i32 s27, s27, 768
    s_mul_i32 s52, s26, {64*3072}
    s_add_u32 s27, s27, s52
    s_mov_b32 s52, s42
    s_and_b32 s53, s43, 0xffff
    s_mov_b32 s54, 4718592
    s_mov_b32 s55, 0x00020000""")
    e.label(f"{tag}_td")

def idle_toucher(e):
    e("""s_cmp_lg_u32 s3, 0
    s_cbranch_scc1 P1_end
    s_sub_u32 s24, s5, 30""")
    e.label("IT_loop")
    e("""s_mul_i32 s26, s24, 171
    s_lshr_b32 s26, s26, 9
    s_mul_i32 s51, s26, 3
    s_sub_u32 s51, s24, s51
    s_add_u32 s51, s51, 13
    s_add_u32 s26, s26, """ + str(OPT['p0'] or 4))
    touch_setup(e, "IT", 3, 20)
    e("""buffer_load_dword v2, v3, s[52:55], s27 offen
    s_add_u32 s24, s24, 2
    s_cmp_lt_u32 s24, """ + str(3 * (24 - (OPT['p0'] or 4))) + """
    s_cbranch_scc1 IT_loop
    s_endpgm""")

def tcheck(e, tag, step=None):
    if step is None:
        step = 100 if OPT['tmode'] == 1 else 10
    e(f"""s_cmp_gt_u32 s26, s25
    s_cbranch_scc1 {tag}_nt
    s_cmp_ge_u32 s26, {T_NST}
    s_cbranch_scc1 {tag}_nt
    buffer_load_dword v2, v3, s[52:55], s27 offen
    s_add_u32 s26, s26, {step}
    s_add_u32 s27, s27, s28""")
    e.label(f"{tag}_nt")

def t_consumer(e, par):
    L = f"TC{par}"
    e("""s_and_b32 s50, s3, 3
    v_and_b32 v60, 15, v0          ; c
    v_lshrrev_b32 v61, 4, v0        ; q""")
    if par == 0:
        e(f"""s_cmp_ge_u32 s3, 3
        s_cbranch_scc1 {L}_nozs
        s_lshl_b32 s51, s3, 10
        v_lshlrev_b32 v62, 4, v0
        v_add_u32 v62, s51, v62
        buffer_load_dwordx4 v[64:67], v62, s[20:23], 0 offen
        buffer_load_dwordx4 v[68:71], v62, s[24:27], 0 offen
        s_waitcnt vmcnt(0)""")
        for i in range(4):
            e(f"""v_lshlrev_b32 v{16+2*i}, 16, v{64+i}
            v_and_b32 v{17+2*i}, 0xffff0000, v{64+i}
            v_lshlrev_b32 v{24+2*i}, 16, v{68+i}
            v_and_b32 v{25+2*i}, 0xffff0000, v{68+i}""")
        for i in range(8):
            e(f"v_xor_b32 v{16+i}, 0x80000000, v{16+i}")
        e(f"""s_lshl_b32 s51, s3, 12
        v_lshlrev_b32 v62, 6, v0
        v_add_u32 v62, s51, v62
        v_add_u32 v62, {T_ZS}, v62
        ds_write_b128 v62, v[16:19]
        ds_write_b128 v62, v[20:23] offset:16
        ds_write_b128 v62, v[24:27] offset:32
        ds_write_b128 v62, v[28:31] offset:48
        s_waitcnt lgkmcnt(0)""")
        e.label(f"{L}_nozs")
    if OPT['touch'] and OPT['tmode'] == 1:
        e(f"""s_add_u32 s26, s5, {OPT['p0'] or 4}
        s_mov_b32 s51, s3""")
        touch_setup(e, L, 3, 62)
        e(f"""s_mov_b32 s28, 0
        s_mov_b32 s25, {OPT['tdelta'] + par}""")
        if OPT['protouch']:
            tcheck(e, L + "p0", 100)
    elif OPT['touch']:
            e(f"""s_lshl_b32 s51, s5, 3
            s_add_u32 s51, s51, s3
            s_lshr_b32 s26, s51, 4          ; sigma0
            s_and_b32 s51, s51, 15          ; u
            s_cmp_ge_u32 s51, 10
            s_cbranch_scc1 {L}_tv
            s_lshl_b32 s51, s51, 6
            v_add_u32 v62, s51, v0          ; t
            v_lshrrev_b32 v63, 1, v62       ; row
            v_and_b32 v62, 1, v62
            s_mov_b32 s53, 6144
            v_mul_lo_u32 v63, v63, s53
            v_lshl_add_u32 v3, v62, 7, v63
            s_and_b32 s27, s4, 1
            s_mul_i32 s27, s27, {320*6144}
            s_lshl_b32 s52, s26, 8
            s_add_u32 s27, s27, s52
            s_mov_b32 s28, 2560
            s_mov_b32 s52, s34
            s_and_b32 s53, s35, 0xffff
            s_mov_b32 s54, 3932160
            s_mov_b32 s55, 0x00020000
            s_branch {L}_td""")
            e.label(f"{L}_tv")
            e(f"""s_sub_u32 s51, s51, 10
            s_lshl_b32 s51, s51, 6
            v_add_u32 v62, s51, v0          ; t in 0..383
            v_mul_u32_u24 v63, 171, v62
            v_lshrrev_b32 v63, 10, v63      ; row = t/6
            v_mul_u32_u24 v64, 6, v63
            v_sub_u32 v62, v62, v64
            s_mov_b32 s53, 3072
            v_mul_lo_u32 v63, v63, s53
            v_lshl_add_u32 v3, v62, 7, v63
            s_lshr_b32 s27, s4, 1
            s_mul_i32 s27, s27, 768
            s_mul_i32 s52, s26, {64*3072}
            s_add_u32 s27, s27, s52
            s_mov_b32 s28, {640*3072}
            s_mov_b32 s52, s42
            s_and_b32 s53, s43, 0xffff
            s_mov_b32 s54, 4718592
            s_mov_b32 s55, 0x00020000""")
            e.label(f"{L}_td")
            e(f"""s_cmp_ge_u32 s26, {T_S-1}
            s_cbranch_scc1 {L}_t0
            s_add_u32 s26, s26, 10
            s_add_u32 s27, s27, s28""")
            e.label(f"{L}_t0")
            e(f"s_mov_b32 s25, {OPT['tdelta'] + par}      ; s + delta")
            tcheck(e, L + "p0")
            tcheck(e, L + "p1")
    e(f"""s_and_b32 s56, s3, 1            ; eh
    s_lshr_b32 s57, s3, 1
    s_and_b32 s57, s57, 1           ; kh
    s_lshl_b32 s51, s57, 3
    v_lshlrev_b32 v62, 1, v61
    v_add_u32 v62, s51, v62
    v_xor_b32 v62, v62, v60
    v_lshlrev_b32 v62, 4, v62
    v_lshl_add_u32 v62, v60, 8, v62
    s_lshl_b32 s51, s56, 13
    s_add_u32 s51, s51, {T_QW}
    v_add_u32 v5, s51, v62
    v_xor_b32 v6, 16, v5
    v_lshlrev_b32 v4, 2, v0
    s_lshl_b32 s51, s57, 8
    s_add_u32 s51, s51, {T_ZS + 512*par}
    v_add_u32 v4, s51, v4
    v_lshlrev_b32 v9, 6, v61
    v_add_u32 v9, s51, v9""")
    e(f"""v_lshrrev_b32 v62, 2, v60        ; r
    v_lshl_add_u32 v62, v61, 3, v62  ; 8q + r
    v_mul_u32_u24 v62, 192, v62
    v_and_b32 v63, 3, v60
    v_lshl_add_u32 v62, v63, 3, v62
    s_mul_i32 s51, s57, {32*192}
    s_add_u32 s51, s51, {T_V}
    v_add_u32 v62, s51, v62
    v_and_b32 v63, 1, v61
    v_lshl_add_u32 v10, v63, 5, v62
    v_xor_b32 v63, 1, v63
    v_lshl_add_u32 v11, v63, 5, v62""")
    RAW0 = 18
    RAW1 = [26, 34]
    ZD = [42, 43]
    P = 44
    A = 48
    B = [52, 76]
    ACC = 100
    NZ, SC = 148, 156
    REGZS = not OPT['zdpp']
    if REGZS:
        for i in range(16):
            e(f"v_mov_b32 v{NZ+i}, 0")
    for i in range(48):
        e(f"v_mov_b32 v{ACC+i}, 0")
    for i in range(24):
        e(f"v_mov_b32 v{B[1]+i}, 0")
    for i in range(8):
        e(f"v_mov_b32 v{RAW1[1]+i}, 0")
    e(f"v_mov_b32 v{ZD[1]}, 0")
    e(f"s_mov_b32 s30, {T_STAGE*par}")
    e("s_mov_b32 s31, 6")
    stamp(e, 1)
    if par == 1:
        e("s_barrier")
    def tmr(reg):
        if DIAG and OPT['inner']:
            e(f"""s_memtime s[{reg}:{reg+1}]
            s_waitcnt lgkmcnt(0)""")
    def rlist(X):
        rd = [f"ds_read_b128 v[{RAW0}:{RAW0+3}], v12",
              f"ds_read_b128 v[{RAW0+4}:{RAW0+7}], v13",
              f"ds_read_b128 v[{RAW1[X]}:{RAW1[X]+3}], v12 offset:4096",
              f"ds_read_b128 v[{RAW1[X]+4}:{RAW1[X]+7}], v13 offset:4096"]
        if not REGZS:
            rd.append(f"ds_read_b32 v{ZD[X]}, v4")
        for gt in range(6):
            a_ = 16 if gt % 2 == 0 else 17
            off = 64 * (gt // 2)
            rd.append(f"ds_read_b64_tr_b16 v[{B[X]+4*gt}:{B[X]+4*gt+1}], v{a_} offset:{off}")
            rd.append(f"ds_read_b64_tr_b16 v[{B[X]+4*gt+2}:{B[X]+4*gt+3}], v{a_} offset:{off+768}")
        return rd
    def comp(f, X):
        R = RAW0 if f == 0 else RAW1[X]
        return dequant_ops(R, ZD[X], NZ, SC, P, A) + ["s_nop 1"] + \
            [f"v_mfma_f32_16x16x32_bf16 v[{ACC+24*f+4*gt}:{ACC+24*f+4*gt+3}], v[{A}:{A+3}], v[{B[X]+4*gt}:{B[X]+4*gt+3}], v[{ACC+24*f+4*gt}:{ACC+24*f+4*gt+3}]" for gt in range(6)]
    def mix(rd, cp):
        if OPT['rdfirst']:
            for r in rd: e(r)
            for op in cp: e(op)
            return
        i = 0
        for j, op in enumerate(cp):
            if i < len(rd) and j % 2 == 0:
                e(rd[i]); i += 1
            e(op)
        assert i == len(rd)
    if DIAG:
        e("s_mov_b32 s84, 0\ns_mov_b32 s85, 0")
    def unit(X, tag):
        e("s_barrier")
        tmr(80)
        e("""v_add_u32 v12, s30, v5
        v_add_u32 v13, s30, v6
        v_add_u32 v16, s30, v10
        v_add_u32 v17, s30, v11""")
        cp = comp(1, 1 - X)
        if REGZS:
            zr = [f"ds_read_b128 v[{NZ+4*i}:{NZ+4*i+3}], v9 offset:{16*i}" for i in range(4)]
            cp = cp[:40] + zr + cp[40:]
        mix(rlist(X), cp)
        e(f"""v_add_u32 v4, 1024, v4
        v_add_u32 v9, 1024, v9
        s_add_u32 s30, s30, {2*T_STAGE}
        s_cmp_ge_u32 s30, {T_S*T_STAGE}
        s_cselect_b32 s51, {T_S*T_STAGE}, 0
        s_sub_u32 s30, s30, s51
        s_waitcnt lgkmcnt(0)""")
        tmr(82)
        if DIAG:
            e("s_sub_u32 s82, s82, s80\ns_add_u32 s84, s84, s82")
        e("s_barrier")
        tmr(80)
        if OPT['touch']:
            e("s_add_u32 s25, s25, 2")
            tcheck(e, L + tag)
        for op in comp(0, X):
            e(op)
        tmr(82)
        if DIAG:
            e("s_sub_u32 s82, s82, s80\ns_add_u32 s85, s85, s82")
    e.label(f"{L}_loop")
    unit(0, "la")
    unit(1, "lb")
    e(f"""s_sub_u32 s31, s31, 1
    s_cmp_lg_u32 s31, 0
    s_cbranch_scc1 {L}_loop""")
    if par == 0:
        e("s_barrier")
    for op in comp(1, 1):
        e(op)
    stamp(e, 2)
    e(f"""s_mul_i32 s51, s56, 49152
    s_mul_i32 s52, s57, 12288
    s_add_u32 s51, s51, s52
    s_add_u32 s51, s51, {24576*par}
    v_lshlrev_b32 v15, 4, v0
    v_add_u32 v14, s51, v15
    s_mul_i32 s51, s56, 49152
    v_add_u32 v13, s51, v15
    s_nop 7""")
    for kh_ in range(2):
        j = kh_ + 2 * par
        if kh_ == 0:
            e(f"""s_cmp_eq_u32 s57, 1
            s_cbranch_scc1 {L}_ep1""")
        else:
            e.label(f"{L}_ep1")
        for f in range(2):
            for gt in range(6):
                if gt // 2 != j:
                    e(f"ds_write_b128 v14, v[{ACC+24*f+4*gt}:{ACC+24*f+4*gt+3}] offset:{(f*6+gt)*1024}")
        if j < 3:
            e(f"""s_lshl_b32 s51, s6, 1
            s_add_u32 s51, s51, s56
            s_mul_i32 s54, s7, 120
            s_add_u32 s54, s54, s51
            s_add_u32 s54, s54, {40*j}
            s_lshl_b32 s54, s54, 10
            s_add_u32 s54, s54, {T_WS}
            s_add_u32 s55, s54, 20480""")
        e("s_waitcnt lgkmcnt(0)")
        e("s_barrier")
        if j < 3:
            srcs = [x for x in range(4) if x != j]
            n = 0
            for g2 in range(2):
                gt = 2 * j + g2
                for f in range(2):
                    for si, x in enumerate(srcs):
                        r = 20 + ((g2 * 2 + f) * 3 + si) * 4
                        e(f"ds_read_b128 v[{r}:{r+3}], v13 offset:{x*12288 + (f*6+gt)*1024}")
            for g2 in range(2):
                gt = 2 * j + g2
                for f in range(2):
                    e(f"s_waitcnt lgkmcnt({12 - 3*(g2*2+f+1)})")
                    d = ACC + 24 * f + 4 * gt
                    for si in range(3):
                        r = 20 + ((g2 * 2 + f) * 3 + si) * 4
                        for i in range(4):
                            e(f"v_add_f32 v{d+i}, v{d+i}, v{r+i}")
                    e(f"v_cvt_pk_bf16_f32 v{72+4*g2+2*f}, v{d}, v{d+1}")
                    e(f"v_cvt_pk_bf16_f32 v{73+4*g2+2*f}, v{d+2}, v{d+3}")
                e(f"buffer_store_dwordx4 v[{72+4*g2}:{75+4*g2}], v15, s[16:19], s{54+g2} offen")
        if kh_ == 0:
            stamp_flush(e, 4, 0)
            e("s_endpgm")
    stamp_flush(e, 4, 0)
    e("s_endpgm")

def x_loader(e):
    e("""s_sub_u32 s50, s3, 8
    v_and_b32 v60, 15, v0
    v_lshrrev_b32 v61, 4, v0
    s_mov_b32 s52, 1280""")
    for i in range(4):
        e(f"""v_add_u32 v62, {4*i}, v61
        v_mul_lo_u32 v63, v62, s52
        v_or_b32 v62, {((i>>1)&1)<<2}, v61
        v_lshlrev_b32 v62, 1, v62
        v_xor_b32 v62, v60, v62
        v_lshl_add_u32 v{1+i}, v62, 4, v63""")
        if i:
            e(f"v_subrev_u32 v{1+i}, {1024*i}, v{1+i}")
    e(f"""s_mul_i32 s28, s50, 20480
    s_lshl_b32 s51, s6, 8
    s_add_u32 s28, s28, s51
    s_lshl_b32 s53, s50, 12
    s_add_u32 s53, s53, {X_U}""")
    for i in range(4):
        e(f"""v_lshrrev_b32 v62, 3, v0
        v_add_u32 v62, {8*i}, v62
        v_mul_lo_u32 v63, v62, s52
        v_add_u32 v62, {4*i}, v61
        v_and_b32 v62, 7, v62
        v_and_b32 v64, 7, v0
        v_xor_b32 v62, v64, v62
        v_lshl_add_u32 v{5+i}, v62, 4, v63""")
        if i:
            e(f"v_subrev_u32 v{5+i}, {1024*i}, v{5+i}")
    e(f"""s_lshl_b32 s27, s7, 7
    s_lshl_b32 s51, s50, 5
    s_add_u32 s27, s27, s51
    s_mul_i32 s27, s27, 1280
    s_lshl_b32 s54, s50, 12
    s_add_u32 s54, s54, {X_X}""")
    def issue():
        e("s_add_u32 m0, s29, s53")
        e("s_nop 0")
        for i in range(4):
            off = f" offset:{1024*i}" if i else ""
            e(f"buffer_load_dwordx4 v{1+i}, s[8:11], s28 offen{off} lds")
        e("s_add_u32 m0, s29, s54")
        e(f"s_add_u32 s28, s28, {64*1280}")
        for i in range(4):
            off = f" offset:{1024*i}" if i else ""
            e(f"buffer_load_dwordx4 v{5+i}, s[12:15], s27 offen{off} lds")
        e("s_add_u32 s27, s27, 128")
    loader_loop(e, "XL", X_NST, X_S, X_STAGE, 8, issue)

def x_consumer(e):
    L = "XC"
    if OPT['xtouch']:
        for rnd in range(2):
            e(f"""s_lshl_b32 s51, s5, 3
            s_add_u32 s51, s51, s3
            s_add_u32 s51, s51, {14*OPT['xfirst'] + 80*rnd}
            s_cmp_ge_u32 s51, 140
            s_cbranch_scc1 {L}_td{rnd}
            s_mul_i32 s52, s51, 147
            s_lshr_b32 s52, s52, 11         ; stage = p/14
            s_mul_i32 s53, s52, 14
            s_sub_u32 s51, s51, s53         ; u
            s_cmp_ge_u32 s51, 4
            s_cbranch_scc1 {L}_tu{rnd}
            s_lshl_b32 s51, s51, 6
            v_add_u32 v62, s51, v0          ; row
            s_mov_b32 s53, 1280
            v_mul_lo_u32 v62, v62, s53
            s_mul_i32 s53, s4, {256*1280}
            s_lshl_b32 s52, s52, 7
            s_add_u32 s53, s53, s52
            buffer_load_dword v{1+rnd}, v62, s[12:15], s53 offen
            s_branch {L}_td{rnd}""")
            e.label(f"{L}_tu{rnd}")
            e(f"""s_sub_u32 s51, s51, 4
            s_lshl_b32 s51, s51, 13
            v_lshlrev_b32 v62, 7, v0
            s_mul_i32 s52, s52, {64*1280}
            s_add_u32 s53, s51, s52
            buffer_load_dword v{1+rnd}, v62, s[8:11], s53 offen""")
            e.label(f"{L}_td{rnd}")
    e("""v_and_b32 v60, 15, v0          ; c
    v_lshrrev_b32 v61, 4, v0        ; q
    s_and_b32 s56, s3, 1
    s_lshr_b32 s57, s3, 1
    v_lshrrev_b32 v62, 2, v60        ; r
    v_and_b32 v63, 1, v61
    v_lshl_add_u32 v63, v63, 2, v62  ; g
    v_lshl_add_u32 v62, v61, 3, v62  ; 8q+r
    v_lshlrev_b32 v62, 8, v62
    v_and_b32 v64, 3, v60
    v_lshl_add_u32 v62, v64, 3, v62
    s_lshl_b32 s51, s56, 2""")
    for a in range(4):
        e(f"""s_add_u32 s58, s51, {a}
        v_xor_b32 v64, s58, v63
        v_lshl_add_u32 v{5+a}, v64, 5, v62""")
        if X_U:
            e(f"v_add_u32 v{5+a}, {X_U}, v{5+a}")
    e(f"""v_lshrrev_b32 v62, 1, v60
    v_xor_b32 v62, v62, v61
    v_lshlrev_b32 v62, 4, v62
    v_lshl_add_u32 v62, v60, 7, v62
    s_lshl_b32 s51, s57, 12
    s_add_u32 s51, s51, {X_X}
    v_add_u32 v9, s51, v62
    v_xor_b32 v10, 64, v9""")
    for i in range(32):
        e(f"v_mov_b32 v{96+i}, 0")
    e("s_mov_b32 s30, 0")
    e(f"s_mov_b32 s31, {X_NST}")
    stamp(e, 1)
    e("s_mov_b32 s24, s5")
    e("s_mov_b32 s25, 0")
    e.label(f"{L}_loop")
    e("s_barrier")
    if OPT['touch'] and OPT['tmode'] == 1:
        e(f"""s_and_b32 s51, s25, 7
        s_cmp_lg_u32 s51, s3
        s_cbranch_scc1 {L}_nt
        s_mul_i32 s26, s24, 205
        s_lshr_b32 s26, s26, 10
        s_mul_i32 s51, s26, 5
        s_sub_u32 s51, s24, s51
        s_add_u32 s51, s51, 8
        s_add_u32 s26, s26, {OPT['p0'] or 4}
        s_cmp_ge_u32 s26, 24
        s_cbranch_scc1 {L}_nt""")
        touch_setup(e, L + "x", 3, 20)
        e("buffer_load_dword v2, v3, s[52:55], s27 offen")
        e.label(f"{L}_nt")
        e("""s_add_u32 s24, s24, 10
        s_add_u32 s25, s25, 1""")
    for a in range(6):
        e(f"v_add_u32 v{11+a}, s30, v{5+a}")
    e(f"""s_add_u32 s30, s30, {X_STAGE}
    s_cmp_ge_u32 s30, {X_S*X_STAGE}
    s_cselect_b32 s30, 0, s30""")
    for kh in range(2):
        base = 32 + 32 * kh
        for a in range(4):
            e(f"ds_read_b64_tr_b16 v[{base+4*a}:{base+4*a+1}], v{11+a} offset:{8192*kh}")
            e(f"ds_read_b64_tr_b16 v[{base+4*a+2}:{base+4*a+3}], v{11+a} offset:{8192*kh+1024}")
        for mt in range(2):
            e(f"ds_read_b128 v[{base+16+4*mt}:{base+19+4*mt}], v{15+kh} offset:{2048*mt}")
    for kh in range(2):
        base = 32 + 32 * kh
        e(f"s_waitcnt lgkmcnt({10 if kh == 0 else 0})")
        for a in range(4):
            for mt in range(2):
                d = 96 + 8 * a + 4 * mt
                e(f"v_mfma_f32_16x16x32_bf16 v[{d}:{d+3}], v[{base+4*a}:{base+4*a+3}], v[{base+16+4*mt}:{base+19+4*mt}], v[{d}:{d+3}]")
    e(f"""s_sub_u32 s31, s31, 1
    s_cmp_lg_u32 s31, 0
    s_cbranch_scc1 {L}_loop""")
    stamp(e, 2)
    e(f"""s_lshl_b32 s51, s7, 3
    s_lshl_b32 s52, s57, 1
    s_add_u32 s51, s51, s52
    s_mul_i32 s51, s51, 20
    s_lshl_b32 s52, s6, 2
    s_add_u32 s51, s51, s52
    s_lshl_b32 s52, s56, 1
    s_add_u32 s51, s51, s52
    s_lshl_b32 s54, s51, 10
    s_add_u32 s54, s54, {XR_WS}
    s_add_u32 s55, s54, 20480
    v_lshlrev_b32 v62, 4, v0
    s_nop 7""")
    for mt in range(2):
        for kb in range(2):
            P = 32 + 8 * mt + 4 * kb
            d0 = 96 + 8 * (2 * kb) + 4 * mt
            d1 = 96 + 8 * (2 * kb + 1) + 4 * mt
            e(f"""v_cvt_pk_bf16_f32 v{P}, v{d0}, v{d0+1}
            v_cvt_pk_bf16_f32 v{P+1}, v{d0+2}, v{d0+3}
            v_cvt_pk_bf16_f32 v{P+2}, v{d1}, v{d1+1}
            v_cvt_pk_bf16_f32 v{P+3}, v{d1+2}, v{d1+3}""")
            so = "s54" if mt == 0 else "s55"
            off = f" offset:{1024*kb}" if kb else ""
            e(f"buffer_store_dwordx4 v[{P}:{P+3}], v62, s[16:19], {so} offen{off}")
    stamp_flush(e, 4, 0)
    e("s_endpgm")

def p1_kernel(e):
    e.raw(".p2align 8")
    e.raw(".type p1_kernel,@function")
    e.label("p1_kernel")
    e(f"""s_cmp_ge_u32 s2, {256 if OPT['touch'] and OPT['tmode'] == 1 else 240}
    s_cbranch_scc1 P1_end""")
    stamp(e, 0)
    e("""s_load_dwordx16 s[32:47], s[0:1], 0
    s_load_dwordx2 s[48:49], s[0:1], 64
    v_lshrrev_b32 v1, 6, v0
    v_and_b32 v0, 63, v0
    s_and_b32 s4, s2, 7
    s_lshr_b32 s5, s2, 3
    v_readfirstlane_b32 s3, v1
    s_waitcnt lgkmcnt(0)""")
    srd(e, 16, 48, WS_BYTES)
    P0 = OPT['p0']
    if OPT['touch'] and OPT['tmode'] == 1 and P0:
        e(f"""s_cmp_lt_u32 s3, 4
        s_cbranch_scc1 P0_done
        s_cmp_ge_u32 s3, {4 + P0 // 2}
        s_cbranch_scc1 P0_done
        s_sub_u32 s51, s3, 4
        s_lshl_b32 s51, s51, 5
        s_add_u32 s51, s51, s5
        s_lshr_b32 s26, s51, 4
        s_and_b32 s51, s51, 15""")
        touch_setup(e, "P0", 3, 20)
        e("buffer_load_dword v2, v3, s[52:55], s27 offen")
        e.label("P0_done")
    e("""s_cmp_ge_u32 s5, 30
    s_cbranch_scc1 P1_i
    s_cmp_ge_u32 s5, 20
    s_cbranch_scc1 P1_x""")
    e("""s_mul_i32 s7, s5, 52
    s_lshr_b32 s7, s7, 8          ; i/5
    s_mul_i32 s51, s7, 5
    s_sub_u32 s6, s5, s51         ; i%5
    s_and_b32 s51, s4, 1
    s_mul_i32 s51, s51, 5
    s_add_u32 s6, s6, s51
    s_lshr_b32 s51, s4, 1
    s_lshl_b32 s51, s51, 2
    s_add_u32 s7, s7, s51""")
    srd(e, 8, 34, 3932160)
    srd(e, 12, 42, 4718592)
    e("""s_cmp_ge_u32 s3, 8
    s_cbranch_scc1 P1_tl
    s_cmp_ge_u32 s3, 4
    s_cbranch_scc1 P1_tc1""")
    srd(e, 20, 38, 3072)
    srd(e, 24, 36, 3072)
    t_consumer(e, 0)
    e.label("P1_tc1")
    t_consumer(e, 1)
    e.label("P1_tl")
    t_loader(e)
    e.label("P1_x")
    e("""s_sub_u32 s5, s5, 20
    s_cmp_ge_u32 s5, 5
    s_cselect_b32 s51, 1, 0
    s_mul_i32 s52, s51, 5
    s_sub_u32 s6, s5, s52
    s_lshl_b32 s7, s4, 1
    s_add_u32 s7, s7, s51""")
    srd(e, 8, 40, 819200)
    srd(e, 12, 32, 2621440)
    e("""s_cmp_ge_u32 s3, 8
    s_cbranch_scc1 P1_xl""")
    x_consumer(e)
    e.label("P1_xl")
    x_loader(e)
    e.label("P1_i")
    idle_toucher(e)
    e.label("P1_end")
    e("s_endpgm")

Y_S = 5
Y_STAGE = 28672
Y_NST = 10
P2_LDS = Y_S * Y_STAGE

def p2_kernel(e):
    CUR_K[0] = 1
    e.raw(".p2align 8")
    e.raw(".type p2_kernel,@function")
    e.label("p2_kernel")
    e("""s_cmp_ge_u32 s2, 256
    s_cbranch_scc1 P2_end""")
    stamp(e, 0)
    e("""s_load_dwordx2 s[44:45], s[0:1], 48
    s_load_dwordx2 s[48:49], s[0:1], 64
    v_lshrrev_b32 v1, 6, v0
    v_and_b32 v0, 63, v0
    s_and_b32 s4, s2, 7
    s_lshr_b32 s5, s2, 3
    v_readfirstlane_b32 s3, v1
    v_lshlrev_b32 v1, 4, v0""")
    e("""s_and_b32 s6, s4, 3
    s_lshl_b32 s6, s6, 2
    s_and_b32 s51, s5, 3
    s_add_u32 s6, s6, s51
    s_lshr_b32 s7, s4, 2
    s_lshl_b32 s7, s7, 3
    s_lshr_b32 s51, s5, 2
    s_add_u32 s7, s7, s51
    s_cmp_ge_u32 s3, 4
    s_cbranch_scc0 P2_c""")
    e(f"""s_sub_u32 s50, s3, 4
    s_and_b32 s51, s50, 1
    s_lshr_b32 s52, s50, 1           ; kk
    s_mul_i32 s53, s52, 14336
    s_mul_i32 s55, s51, 3072
    s_add_u32 s54, s53, 6144
    s_add_u32 s53, s53, s55          ; T lds base
    s_lshl_b32 s55, s51, 12
    s_add_u32 s54, s54, s55          ; xr lds base
    s_mul_i32 s55, s51, 3
    s_mul_i32 s56, s7, 6
    s_add_u32 s55, s55, s56
    s_mul_i32 s55, s55, 20
    s_add_u32 s55, s55, s52
    s_lshl_b32 s28, s55, 10
    s_add_u32 s28, s28, {T_WS}
    s_lshl_b32 s55, s51, 2
    s_lshl_b32 s56, s6, 3
    s_add_u32 s55, s55, s56
    s_mul_i32 s55, s55, 20
    s_add_u32 s55, s55, s52
    s_lshl_b32 s27, s55, 10
    s_add_u32 s27, s27, {XR_WS}""")
    for i in range(1, 4):
        e(f"v_add_u32 v{1+i}, {19456*i}, v1")
    e("s_waitcnt lgkmcnt(0)")
    srd(e, 16, 48, WS_BYTES)
    def issue():
        e("s_add_u32 m0, s29, s53")
        e("s_nop 0")
        for i in range(3):
            off = f" offset:{1024*i}" if i else ""
            e(f"buffer_load_dwordx4 v{1+i}, s[16:19], s28 offen{off} lds")
        e("s_add_u32 m0, s29, s54")
        e("s_add_u32 s28, s28, 2048")
        for i in range(4):
            off = f" offset:{1024*i}" if i else ""
            e(f"buffer_load_dwordx4 v{1+i}, s[16:19], s27 offen{off} lds")
        e("s_add_u32 s27, s27, 2048")
    loader_loop(e, "YL", Y_NST, Y_S, Y_STAGE, 7, issue)
    e.label("P2_c")
    ACC = 64
    FB = [8, 112]
    for i in range(48):
        e(f"v_mov_b32 v{ACC+i}, 0")
    e("""s_lshl_b32 s51, s3, 11
    s_add_u32 s51, s51, 6144
    v_add_u32 v2, s51, v1
    s_waitcnt lgkmcnt(0)""")
    srd(e, 16, 48, WS_BYTES)
    srd(e, 8, 44, 6291456)
    e("s_mov_b32 s30, 0")

    def rlist(kk, b):
        l = []
        for mi in range(2):
            l.append(f"ds_read_b128 v[{b+24+4*mi}:{b+27+4*mi}], v4 offset:{kk*14336 + mi*1024}")
        for gt in range(6):
            l.append(f"ds_read_b128 v[{b+4*gt}:{b+4*gt+3}], v3 offset:{kk*14336 + gt*1024}")
        return l

    def block(b, rl):
        i = 0
        for gt in range(6):
            for mi in range(2):
                d = ACC + (gt * 2 + mi) * 4
                e(f"v_mfma_f32_16x16x32_bf16 v[{d}:{d+3}], v[{b+4*gt}:{b+4*gt+3}], v[{b+24+4*mi}:{b+27+4*mi}], v[{d}:{d+3}]")
                if i < len(rl):
                    e(rl[i]); i += 1

    def newslot():
        e(f"""v_add_u32 v3, s30, v1
        v_add_u32 v4, s30, v2
        s_add_u32 s30, s30, {Y_STAGE}
        s_cmp_ge_u32 s30, {Y_S*Y_STAGE}
        s_cselect_b32 s30, 0, s30""")

    e("s_barrier")
    stamp(e, 1)
    newslot()
    for r in rlist(0, FB[0]):
        e(r)
    e(f"s_mov_b32 s31, {Y_NST-1}")
    e.label("P2_loop")
    e("s_waitcnt lgkmcnt(0)")
    block(FB[0], rlist(1, FB[1]))
    e("s_waitcnt lgkmcnt(0)")
    e("s_barrier")
    newslot()
    block(FB[1], rlist(0, FB[0]))
    e("""s_sub_u32 s31, s31, 1
    s_cmp_lg_u32 s31, 0
    s_cbranch_scc1 P2_loop""")
    e("s_waitcnt lgkmcnt(0)")
    block(FB[0], rlist(1, FB[1]))
    e("s_waitcnt lgkmcnt(0)")
    block(FB[1], [])
    stamp(e, 2)
    e("""v_and_b32 v3, 15, v0
    v_lshrrev_b32 v4, 4, v0
    s_mov_b32 s52, 3072
    v_mul_lo_u32 v3, v3, s52
    v_and_b32 v5, 1, v4
    v_lshrrev_b32 v4, 1, v4
    v_lshlrev_b32 v5, 5, v5
    v_lshl_add_u32 v5, v4, 4, v5
    v_add_u32 v3, v3, v5
    s_lshl_b32 s51, s6, 7
    s_lshl_b32 s52, s3, 5
    s_add_u32 s51, s51, s52
    s_mul_i32 s54, s51, 3072
    s_mul_i32 s52, s7, 192
    s_add_u32 s54, s54, s52
    s_add_u32 s55, s54, 49152
    s_nop 7""")
    for mi in range(2):
        for a in range(3):
            P = 8 + (mi * 3 + a) * 4
            dA = ACC + ((2 * a) * 2 + mi) * 4
            dB = ACC + ((2 * a + 1) * 2 + mi) * 4
            e(f"""v_cvt_pk_bf16_f32 v{P}, v{dA}, v{dA+1}
            v_cvt_pk_bf16_f32 v{P+1}, v{dA+2}, v{dA+3}
            v_cvt_pk_bf16_f32 v{P+2}, v{dB}, v{dB+1}
            v_cvt_pk_bf16_f32 v{P+3}, v{dB+2}, v{dB+3}
            s_nop 1
            v_permlane16_swap_b32 v{P}, v{P+2}
            v_permlane16_swap_b32 v{P+1}, v{P+3}""")
            so = "s54" if mi == 0 else "s55"
            off = f" offset:{64*a}" if a else ""
            e("s_nop 1")
            e(f"buffer_store_dwordx4 v[{P}:{P+3}], v3, s[8:11], {so} offen{off}")
    stamp_flush(e, 4, 1)
    e.label("P2_end")
    e("s_endpgm")

def main(out):
    e = E()
    e.raw(HEADER.rstrip('\n'))
    e.raw(f"; @launch kernel=p1_kernel grid=({256 if OPT['touch'] and OPT['tmode'] == 1 else 240},1,1) block=(768,1,1) lds={P1_LDS}")
    e.raw(f"; @launch kernel=p2_kernel grid=(256,1,1) block=(512,1,1) lds={P2_LDS}")
    e.raw('.amdgcn_target "amdgcn-amd-amdhsa--gfx950"')
    e.raw(".text")
    e.raw(".globl p1_kernel")
    e.raw(".globl p2_kernel")
    p1_kernel(e)
    p2_kernel(e)
    e.raw('.section .rodata,"a"')
    for name, vg, acc in (("p1_kernel", 168, 168), ("p2_kernel", 144, 144)):
        e.raw(".p2align 6")
        e.raw(f""".amdhsa_kernel {name}
  .amdhsa_next_free_vgpr {vg}
  .amdhsa_next_free_sgpr 96
  .amdhsa_accum_offset {acc}
  .amdhsa_group_segment_fixed_size 0
  .amdhsa_kernarg_size 72
  .amdhsa_user_sgpr_count 2
  .amdhsa_user_sgpr_kernarg_segment_ptr 1
  .amdhsa_system_sgpr_workgroup_id_x 1
  .amdhsa_float_denorm_mode_32 3
.end_amdhsa_kernel""")
    open(out, 'w').write(e.text())

if __name__ == '__main__':
    for a in sys.argv[2:]:
        if a == 'diag':
            DIAG = True
        elif '=' in a:
            k, v = a.split('=')
            OPT[k] = int(v)
    main(sys.argv[1] if len(sys.argv) > 1 else 'standalone__weight_only_int_quip__prompt.s')
```

```python
import sys

HEADER = open('standalone__weight_only_int_quip__prompt.s.ref').read().split('; Override launch')[0]

XR_WS = 0
T_WS = 2621440
WS_BYTES = 268435456
OPT = dict(ldprio=0, noload=0, nocomp=0, touch=1, tdelta=12, xdelta=6, nt=0, nttouch=0, xtouch=0, samek=0, dbg=0, drop=0, split=16, zdpp=1, sdpp=1, rdfirst=1, inner=0, tmode=1, protouch=1, p0=8, xfirst=1, tlead=4)

class E:
    def __init__(self):
        self.l = []
    def __call__(self, s):
        for line in s.strip('\n').split('\n'):
            t = line.strip()
            if OPT['noload'] and t.endswith(' lds'): continue
            if (OPT['drop'] & 1) and t.startswith('ds_read_b64_tr'): continue
            if (OPT['drop'] & 2) and t.endswith('; DQ'): continue
            if (OPT['drop'] & 8) and (t.startswith('ds_read_b128') or t.startswith('ds_read_b32')): continue
            if (OPT['drop'] & 4) and t.startswith('v_mfma'): continue
            if OPT['samek'] and (t.startswith('s_add_u32 s28, s28,') or t.startswith('s_add_u32 s27, s27,')): continue
            if OPT['nt'] and t.endswith(' lds') and ('s[8:11]' in t or 's[12:15]' in t): t = t[:-4] + ' nt lds'
            if OPT['nttouch'] and t.startswith('buffer_load_dword v'): t = t + ' nt'
            if OPT['nocomp'] and (t.startswith('ds_read') or t.startswith('v_mfma') or '_dpp' in t or t.startswith('v_cvt')): continue
            self.l.append('    ' + t)
    def label(self, s):
        self.l.append(s + ':')
    def raw(self, s):
        self.l.append(s)
    def text(self):
        return '\n'.join(self.l) + '\n'

DIAG = False
STAMP_WS = 64 << 20
def dbg_entry(e):
    if not OPT['dbg']: return
    e("""s_memrealtime s[90:91]
    s_memtime s[86:87]
    s_load_dwordx2 s[92:93], s[0:1], 56
    s_waitcnt lgkmcnt(0)
    s_mov_b32 s88, s92
    s_and_b32 s89, s93, 0xffff
    s_not_b32 s94, s90
    s_mov_b32 s90, 256
    s_mov_b32 s91, 0x00020000""")
DBGN = [0]
def dbg_exit(e, kern):
    if not OPT['dbg']: return
    DBGN[0] += 1
    lab = f"DBGX{DBGN[0]}"
    e(f"""s_and_b32 s95, s3, 3
    s_cmp_lg_u32 s95, 0
    s_cbranch_scc1 {lab}""")
    if kern == 1:
        e(f"""s_cmp_lg_u32 s2, 0
        s_cbranch_scc1 {lab}b
        s_sub_u32 s92, s88, 512
        s_subb_u32 s93, s89, 0
        s_load_dwordx8 s[72:79], s[92:93], 0
        s_waitcnt lgkmcnt(0)
        v_mov_b32 v2, 0
        v_mov_b32 v4, s72
        v_mov_b32 v5, s73
        v_mov_b32 v6, s74
        v_mov_b32 v7, s75
        buffer_store_dwordx4 v[4:7], v2, s[88:91], 0 offen offset:32
        v_mov_b32 v8, s76
        v_mov_b32 v9, s77
        v_mov_b32 v10, s78
        v_mov_b32 v11, s79
        buffer_store_dwordx4 v[8:11], v2, s[88:91], 0 offen offset:48""")
        e.label(lab + "b")
    dbg_exit2(e)
    e.label(lab)
def dbg_exit2(e):
    e("""s_waitcnt vmcnt(0)
    s_memrealtime s[92:93]
    s_waitcnt lgkmcnt(0)
    v_mov_b32 v2, 0
    v_mov_b32 v4, s94
    v_mov_b32 v5, s92
    s_mov_b64 exec, 1
    buffer_atomic_umax v4, v2, s[88:91], 0 offen
    buffer_atomic_umax v5, v2, s[88:91], 0 offen offset:4
    v_not_b32 v6, v4
    v_not_b32 v7, v5
    buffer_atomic_umax v6, v2, s[88:91], 0 offen offset:16
    buffer_atomic_umax v7, v2, s[88:91], 0 offen offset:20
    v_sub_u32 v8, v5, v6
    buffer_atomic_umax v8, v2, s[88:91], 0 offen offset:24
    v_not_b32 v8, v8
    buffer_atomic_umax v8, v2, s[88:91], 0 offen offset:28
    s_waitcnt vmcnt(0)
    s_memtime s[70:71]
    s_waitcnt lgkmcnt(0)
    s_sub_u32 s70, s70, s86
    s_not_b32 s94, s94
    s_sub_u32 s71, s92, s94
    s_or_b32 s95, s2, s3
    s_cmp_lg_u32 s95, 0""")
    DBGN[0] += 1
    e(f"""s_cbranch_scc1 DBGY{DBGN[0]}
    v_mov_b32 v4, s70
    v_mov_b32 v5, s71
    buffer_store_dwordx2 v[4:5], v2, s[88:91], 0 offen offset:8
    s_waitcnt vmcnt(0)""")
    e.label(f"DBGY{DBGN[0]}")

CUR_K = [0]
def stamp(e, i):
    if i == 0 and OPT['dbg']: dbg_entry(e)
    if not DIAG: return
    e(f"""s_memtime s[{64+4*i}:{65+4*i}]
    s_memrealtime s[{66+4*i}:{67+4*i}]
    s_waitcnt lgkmcnt(0)""")
def stamp_flush(e, n, kern):
    if OPT['dbg']: dbg_exit(e, kern)
    if not DIAG: return
    e(f"""s_waitcnt vmcnt(0)""")
    stamp(e, n - 1)
    e(f"""s_lshl_b32 s60, s2, 4
    s_add_u32 s60, s60, s3
    s_lshl_b32 s60, s60, 7
    s_add_u32 s60, s60, {STAMP_WS + kern * (1 << 20)}
    v_mov_b32 v2, 0
    s_getreg_b32 s61, hwreg(HW_REG_XCC_ID)
    s_getreg_b32 s62, hwreg(HW_REG_HW_ID)
    v_mov_b32 v4, s61
    v_mov_b32 v5, s62
    buffer_store_dwordx2 v[4:5], v2, s[16:19], s60 offen offset:112
    s_waitcnt vmcnt(0)
    v_mov_b32 v4, s84
    v_mov_b32 v5, s85
    buffer_store_dwordx2 v[4:5], v2, s[16:19], s60 offen offset:96
    s_waitcnt vmcnt(0)""")
    for i in range(n):
        e(f"""v_mov_b32 v4, s{64+4*i}
        v_mov_b32 v5, s{65+4*i}
        v_mov_b32 v6, s{66+4*i}
        v_mov_b32 v7, s{67+4*i}
        buffer_store_dwordx4 v[4:7], v2, s[16:19], s60 offen offset:{16*i}
        s_waitcnt vmcnt(0)""")

def srd(e, d, lo, nbytes):
    e(f"""s_mov_b32 s{d}, s{lo}
    s_and_b32 s{d+1}, s{lo+1}, 0xffff
    s_mov_b32 s{d+2}, {nbytes}
    s_mov_b32 s{d+3}, 0x00020000""")

T_S = 5
T_STAGE = 28672
T_QW = 0
T_V = 16384
T_ZS = T_S * T_STAGE
T_NST = 24
X_S = 4
X_STAGE = 32768
X_U = 0
X_X = 16384
X_NST = 10
P1_LDS = T_ZS + 12288

def loader_loop(e, L, nst, RING, stage_bytes, npieces, issue, lead=None):
    S = (lead + 1) if lead else RING
    if OPT['ldprio']:
        e(f"s_setprio {OPT['ldprio']}")
    def rec():
        if DIAG:
            e("""s_memtime s[62:63]
            s_waitcnt lgkmcnt(0)
            v_mov_b32 v21, s62
            v_cmp_eq_u32 vcc, s61, v0
            s_nop 1
            v_cndmask_b32 v20, v20, v21, vcc
            s_add_u32 s61, s61, 1""")
    def adv():
        e(f"""s_add_u32 s29, s29, {stage_bytes}
        s_cmp_ge_u32 s29, {RING*stage_bytes}
        s_cselect_b32 s29, 0, s29""")
    e("s_mov_b32 s29, 0")
    if DIAG:
        e("s_mov_b32 s61, 0\nv_mov_b32 v20, 0")
        rec()
    issued = 0
    first = min(2, S - 1)
    for _ in range(first):
        issue(); adv(); issued += 1
    s = 0
    while issued < s + S - 1:
        e(f"s_waitcnt vmcnt({npieces*(issued-1-s)})")
        e("s_barrier")
        rec()
        for _ in range(2):
            if issued < s + S:
                issue(); adv(); issued += 1
        s += 1
    nloop = nst - issued
    e(f"s_mov_b32 s31, {nloop}")
    e.label(f"{L}_ldloop")
    e(f"s_waitcnt vmcnt({npieces*(S-2)})")
    e("s_barrier")
    rec()
    issue()
    adv()
    e(f"""s_sub_u32 s31, s31, 1
    s_cmp_lg_u32 s31, 0
    s_cbranch_scc1 {L}_ldloop""")
    s += nloop
    for ss in range(s, nst):
        e(f"s_waitcnt vmcnt({npieces*(nst-1-ss)})")
        e("s_barrier")
        rec()
    if DIAG:
        kern = 1 if L == "YL" else 0
        e(f"""s_lshl_b32 s60, s2, 2
        s_add_u32 s60, s60, s50
        s_lshl_b32 s60, s60, 8
        s_add_u32 s60, s60, {STAMP_WS + (4 + kern) * (1 << 20)}
        v_lshlrev_b32 v21, 2, v0
        buffer_store_dword v20, v21, s[16:19], s60 offen""")
    e("s_endpgm")

def dequant_ops(R, ZD, NZ, SC, P, A):
    ops = []
    for i in range(8):
        ops.append(f"v_cvt_f32_i32 v{R+i}, v{R+i}")
    for i in range(8):
        if OPT['zdpp']:
            ops.append(f"v_add_f32_dpp v{R+i}, v{ZD}, v{R+i} row_newbcast:{i} row_mask:0xf bank_mask:0xf")
        else:
            ops.append(f"v_add_f32 v{R+i}, v{NZ+i}, v{R+i}")
    for i in range(4):
        ops.append(f"v_cvt_pk_bf16_f32 v{P+i}, v{R+2*i}, v{R+2*i+1}")
    for i in range(4):
        ops.append(f"v_lshlrev_b32 v{R+2*i}, 16, v{P+i}")
        ops.append(f"v_and_b32 v{R+2*i+1}, 0xffff0000, v{P+i}")
    for i in range(8):
        if OPT['sdpp']:
            ops.append(f"v_mul_f32_dpp v{R+i}, v{ZD}, v{R+i} row_newbcast:{8+i} row_mask:0xf bank_mask:0xf")
        else:
            ops.append(f"v_mul_f32 v{R+i}, v{SC+i}, v{R+i}")
    for i in range(4):
        ops.append(f"v_cvt_pk_bf16_f32 v{A+i}, v{R+2*i}, v{R+2*i+1}")
    return [o + ' ; DQ' for o in ops]

def t_loader(e):
    e("""s_sub_u32 s50, s3, 8
    v_and_b32 v60, 15, v0
    v_lshrrev_b32 v61, 4, v0
    s_mov_b32 s52, 6144""")
    for i in range(4):
        e(f"""v_add_u32 v62, {4*i}, v61
        v_mul_lo_u32 v63, v62, s52
        v_xor_b32 v62, v60, v62
        v_lshl_add_u32 v{1+i}, v62, 4, v63""")
        if i:
            e(f"v_subrev_u32 v{1+i}, {1024*i}, v{1+i}")
    e(f"""s_lshl_b32 s28, s6, 6
    s_lshl_b32 s51, s50, 4
    s_add_u32 s28, s28, s51
    s_mul_i32 s28, s28, 6144
    s_lshl_b32 s53, s50, 12
    s_add_u32 s53, s53, {T_QW}
    s_mov_b32 s52, 3072""")
    for j in range(3):
        e(f"""v_add_u32 v62, {64*j}, v0
        v_mul_u32_u24 v63, 171, v62
        v_lshrrev_b32 v63, 11, v63
        v_mul_u32_u24 v64, 12, v63
        v_sub_u32 v62, v62, v64
        v_lshrrev_b32 v64, 3, v63
        v_and_b32 v64, 1, v64
        v_lshlrev_b32 v64, 1, v64
        v_xor_b32 v62, v62, v64
        v_mul_lo_u32 v63, v63, s52
        v_lshl_add_u32 v{5+j}, v62, 4, v63""")
        if j:
            e(f"v_subrev_u32 v{5+j}, {1024*j}, v{5+j}")
    e(f"""s_mul_i32 s27, s50, 49152
    s_mul_i32 s51, s7, 192
    s_add_u32 s27, s27, s51
    s_mul_i32 s54, s50, 3072
    s_add_u32 s54, s54, {T_V}""")
    def issue():
        e("s_add_u32 m0, s29, s53")
        e("s_nop 0")
        for i in range(4):
            off = f" offset:{1024*i}" if i else ""
            e(f"buffer_load_dwordx4 v{1+i}, s[8:11], s28 offen{off} lds")
        e("s_add_u32 m0, s29, s54")
        e("s_add_u32 s28, s28, 256")
        for j in range(3):
            off = f" offset:{1024*j}" if j else ""
            e(f"buffer_load_dwordx4 v{5+j}, s[12:15], s27 offen{off} lds")
        e(f"s_add_u32 s27, s27, {64*3072}")
    loader_loop(e, "TL", T_NST, T_S, T_STAGE, 7, issue, lead=OPT["tlead"])

def touch_setup(e, tag, vo, t):
    e(f"""s_cmp_ge_u32 s51, 10
    s_cbranch_scc1 {tag}_tv
    s_lshl_b32 s51, s51, 6
    v_add_u32 v{t}, s51, v0
    v_lshrrev_b32 v{t+1}, 1, v{t}
    v_and_b32 v{t}, 1, v{t}
    s_mov_b32 s53, 6144
    v_mul_lo_u32 v{t+1}, v{t+1}, s53
    v_lshl_add_u32 v{vo}, v{t}, 7, v{t+1}
    s_and_b32 s27, s4, 1
    s_mul_i32 s27, s27, {320*6144}
    s_lshl_b32 s52, s26, 8
    s_add_u32 s27, s27, s52
    s_mov_b32 s52, s34
    s_and_b32 s53, s35, 0xffff
    s_mov_b32 s54, 3932160
    s_mov_b32 s55, 0x00020000
    s_branch {tag}_td""")
    e.label(f"{tag}_tv")
    e(f"""s_sub_u32 s51, s51, 10
    s_lshl_b32 s51, s51, 6
    v_add_u32 v{t}, s51, v0
    v_mul_u32_u24 v{t+1}, 171, v{t}
    v_lshrrev_b32 v{t+1}, 10, v{t+1}
    v_mul_u32_u24 v{t+2}, 6, v{t+1}
    v_sub_u32 v{t}, v{t}, v{t+2}
    s_mov_b32 s53, 3072
    v_mul_lo_u32 v{t+1}, v{t+1}, s53
    v_lshl_add_u32 v{vo}, v{t}, 7, v{t+1}
    s_lshr_b32 s27, s4, 1
    s_mul_i32 s27, s27, 768
    s_mul_i32 s52, s26, {64*3072}
    s_add_u32 s27, s27, s52
    s_mov_b32 s52, s42
    s_and_b32 s53, s43, 0xffff
    s_mov_b32 s54, 4718592
    s_mov_b32 s55, 0x00020000""")
    e.label(f"{tag}_td")

def idle_toucher(e):
    e("""s_cmp_lg_u32 s3, 0
    s_cbranch_scc1 P1_end
    s_sub_u32 s24, s5, 30""")
    e.label("IT_loop")
    e("""s_mul_i32 s26, s24, 171
    s_lshr_b32 s26, s26, 9
    s_mul_i32 s51, s26, 3
    s_sub_u32 s51, s24, s51
    s_add_u32 s51, s51, 13
    s_add_u32 s26, s26, """ + str(OPT['p0'] or 4))
    touch_setup(e, "IT", 3, 20)
    e("""buffer_load_dword v2, v3, s[52:55], s27 offen
    s_add_u32 s24, s24, 2
    s_cmp_lt_u32 s24, """ + str(3 * (24 - (OPT['p0'] or 4))) + """
    s_cbranch_scc1 IT_loop
    s_endpgm""")

def tcheck(e, tag, step=None):
    if step is None:
        step = 100 if OPT['tmode'] == 1 else 10
    e(f"""s_cmp_gt_u32 s26, s25
    s_cbranch_scc1 {tag}_nt
    s_cmp_ge_u32 s26, {T_NST}
    s_cbranch_scc1 {tag}_nt
    buffer_load_dword v2, v3, s[52:55], s27 offen
    s_add_u32 s26, s26, {step}
    s_add_u32 s27, s27, s28""")
    e.label(f"{tag}_nt")

def t_consumer(e, par):
    L = f"TC{par}"
    e("""s_and_b32 s50, s3, 3
    v_and_b32 v60, 15, v0          ; c
    v_lshrrev_b32 v61, 4, v0        ; q""")
    if par == 0:
        e(f"""s_cmp_ge_u32 s3, 3
        s_cbranch_scc1 {L}_nozs
        s_lshl_b32 s51, s3, 10
        v_lshlrev_b32 v62, 4, v0
        v_add_u32 v62, s51, v62
        buffer_load_dwordx4 v[64:67], v62, s[20:23], 0 offen
        buffer_load_dwordx4 v[68:71], v62, s[24:27], 0 offen
        s_waitcnt vmcnt(0)""")
        for i in range(4):
            e(f"""v_lshlrev_b32 v{16+2*i}, 16, v{64+i}
            v_and_b32 v{17+2*i}, 0xffff0000, v{64+i}
            v_lshlrev_b32 v{24+2*i}, 16, v{68+i}
            v_and_b32 v{25+2*i}, 0xffff0000, v{68+i}""")
        for i in range(8):
            e(f"v_xor_b32 v{16+i}, 0x80000000, v{16+i}")
        e(f"""s_lshl_b32 s51, s3, 12
        v_lshlrev_b32 v62, 6, v0
        v_add_u32 v62, s51, v62
        v_add_u32 v62, {T_ZS}, v62
        ds_write_b128 v62, v[16:19]
        ds_write_b128 v62, v[20:23] offset:16
        ds_write_b128 v62, v[24:27] offset:32
        ds_write_b128 v62, v[28:31] offset:48
        s_waitcnt lgkmcnt(0)""")
        e.label(f"{L}_nozs")
    if OPT['touch'] and OPT['tmode'] == 1:
        e(f"""s_add_u32 s26, s5, {OPT['p0'] or 4}
        s_mov_b32 s51, s3""")
        touch_setup(e, L, 3, 62)
        e(f"""s_mov_b32 s28, 0
        s_mov_b32 s25, {OPT['tdelta'] + par}""")
        if OPT['protouch']:
            tcheck(e, L + "p0", 100)
    elif OPT['touch']:
            e(f"""s_lshl_b32 s51, s5, 3
            s_add_u32 s51, s51, s3
            s_lshr_b32 s26, s51, 4          ; sigma0
            s_and_b32 s51, s51, 15          ; u
            s_cmp_ge_u32 s51, 10
            s_cbranch_scc1 {L}_tv
            s_lshl_b32 s51, s51, 6
            v_add_u32 v62, s51, v0          ; t
            v_lshrrev_b32 v63, 1, v62       ; row
            v_and_b32 v62, 1, v62
            s_mov_b32 s53, 6144
            v_mul_lo_u32 v63, v63, s53
            v_lshl_add_u32 v3, v62, 7, v63
            s_and_b32 s27, s4, 1
            s_mul_i32 s27, s27, {320*6144}
            s_lshl_b32 s52, s26, 8
            s_add_u32 s27, s27, s52
            s_mov_b32 s28, 2560
            s_mov_b32 s52, s34
            s_and_b32 s53, s35, 0xffff
            s_mov_b32 s54, 3932160
            s_mov_b32 s55, 0x00020000
            s_branch {L}_td""")
            e.label(f"{L}_tv")
            e(f"""s_sub_u32 s51, s51, 10
            s_lshl_b32 s51, s51, 6
            v_add_u32 v62, s51, v0          ; t in 0..383
            v_mul_u32_u24 v63, 171, v62
            v_lshrrev_b32 v63, 10, v63      ; row = t/6
            v_mul_u32_u24 v64, 6, v63
            v_sub_u32 v62, v62, v64
            s_mov_b32 s53, 3072
            v_mul_lo_u32 v63, v63, s53
            v_lshl_add_u32 v3, v62, 7, v63
            s_lshr_b32 s27, s4, 1
            s_mul_i32 s27, s27, 768
            s_mul_i32 s52, s26, {64*3072}
            s_add_u32 s27, s27, s52
            s_mov_b32 s28, {640*3072}
            s_mov_b32 s52, s42
            s_and_b32 s53, s43, 0xffff
            s_mov_b32 s54, 4718592
            s_mov_b32 s55, 0x00020000""")
            e.label(f"{L}_td")
            e(f"""s_cmp_ge_u32 s26, {T_S-1}
            s_cbranch_scc1 {L}_t0
            s_add_u32 s26, s26, 10
            s_add_u32 s27, s27, s28""")
            e.label(f"{L}_t0")
            e(f"s_mov_b32 s25, {OPT['tdelta'] + par}      ; s + delta")
            tcheck(e, L + "p0")
            tcheck(e, L + "p1")
    e(f"""s_and_b32 s56, s3, 1            ; eh
    s_lshr_b32 s57, s3, 1
    s_and_b32 s57, s57, 1           ; kh
    s_lshl_b32 s51, s57, 3
    v_lshlrev_b32 v62, 1, v61
    v_add_u32 v62, s51, v62
    v_xor_b32 v62, v62, v60
    v_lshlrev_b32 v62, 4, v62
    v_lshl_add_u32 v62, v60, 8, v62
    s_lshl_b32 s51, s56, 13
    s_add_u32 s51, s51, {T_QW}
    v_add_u32 v5, s51, v62
    v_xor_b32 v6, 16, v5
    v_lshlrev_b32 v4, 2, v0
    s_lshl_b32 s51, s57, 8
    s_add_u32 s51, s51, {T_ZS + 512*par}
    v_add_u32 v4, s51, v4
    v_lshlrev_b32 v9, 6, v61
    v_add_u32 v9, s51, v9""")
    e(f"""v_lshrrev_b32 v62, 2, v60        ; r
    v_lshl_add_u32 v62, v61, 3, v62  ; 8q + r
    v_mul_u32_u24 v62, 192, v62
    v_and_b32 v63, 3, v60
    v_lshl_add_u32 v62, v63, 3, v62
    s_mul_i32 s51, s57, {32*192}
    s_add_u32 s51, s51, {T_V}
    v_add_u32 v62, s51, v62
    v_and_b32 v63, 1, v61
    v_lshl_add_u32 v10, v63, 5, v62
    v_xor_b32 v63, 1, v63
    v_lshl_add_u32 v11, v63, 5, v62""")
    RAW0 = 18
    RAW1 = [26, 34]
    ZD = [42, 43]
    P = 44
    A = 48
    B = [52, 76]
    ACC = 100
    NZ, SC = 148, 156
    REGZS = not OPT['zdpp']
    if REGZS:
        for i in range(16):
            e(f"v_mov_b32 v{NZ+i}, 0")
    for i in range(48):
        e(f"v_mov_b32 v{ACC+i}, 0")
    for i in range(24):
        e(f"v_mov_b32 v{B[1]+i}, 0")
    for i in range(8):
        e(f"v_mov_b32 v{RAW1[1]+i}, 0")
    e(f"v_mov_b32 v{ZD[1]}, 0")
    e(f"s_mov_b32 s30, {T_STAGE*par}")
    e("s_mov_b32 s31, 6")
    stamp(e, 1)
    if par == 1:
        e("s_barrier")
    def tmr(reg):
        if DIAG and OPT['inner']:
            e(f"""s_memtime s[{reg}:{reg+1}]
            s_waitcnt lgkmcnt(0)""")
    def rlist(X):
        rd = [f"ds_read_b128 v[{RAW0}:{RAW0+3}], v12",
              f"ds_read_b128 v[{RAW0+4}:{RAW0+7}], v13",
              f"ds_read_b128 v[{RAW1[X]}:{RAW1[X]+3}], v12 offset:4096",
              f"ds_read_b128 v[{RAW1[X]+4}:{RAW1[X]+7}], v13 offset:4096"]
        if not REGZS:
            rd.append(f"ds_read_b32 v{ZD[X]}, v4")
        for gt in range(6):
            a_ = 16 if gt % 2 == 0 else 17
            off = 64 * (gt // 2)
            rd.append(f"ds_read_b64_tr_b16 v[{B[X]+4*gt}:{B[X]+4*gt+1}], v{a_} offset:{off}")
            rd.append(f"ds_read_b64_tr_b16 v[{B[X]+4*gt+2}:{B[X]+4*gt+3}], v{a_} offset:{off+768}")
        return rd
    def comp(f, X):
        R = RAW0 if f == 0 else RAW1[X]
        return dequant_ops(R, ZD[X], NZ, SC, P, A) + ["s_nop 1"] + \
            [f"v_mfma_f32_16x16x32_bf16 v[{ACC+24*f+4*gt}:{ACC+24*f+4*gt+3}], v[{A}:{A+3}], v[{B[X]+4*gt}:{B[X]+4*gt+3}], v[{ACC+24*f+4*gt}:{ACC+24*f+4*gt+3}]" for gt in range(6)]
    def mix(rd, cp):
        if OPT['rdfirst']:
            for r in rd: e(r)
            for op in cp: e(op)
            return
        i = 0
        for j, op in enumerate(cp):
            if i < len(rd) and j % 2 == 0:
                e(rd[i]); i += 1
            e(op)
        assert i == len(rd)
    if DIAG:
        e("s_mov_b32 s84, 0\ns_mov_b32 s85, 0")
    def unit(X, tag):
        e("s_barrier")
        tmr(80)
        e("""v_add_u32 v12, s30, v5
        v_add_u32 v13, s30, v6
        v_add_u32 v16, s30, v10
        v_add_u32 v17, s30, v11""")
        cp = comp(1, 1 - X)
        if REGZS:
            zr = [f"ds_read_b128 v[{NZ+4*i}:{NZ+4*i+3}], v9 offset:{16*i}" for i in range(4)]
            cp = cp[:40] + zr + cp[40:]
        mix(rlist(X), cp)
        e(f"""v_add_u32 v4, 1024, v4
        v_add_u32 v9, 1024, v9
        s_add_u32 s30, s30, {2*T_STAGE}
        s_cmp_ge_u32 s30, {T_S*T_STAGE}
        s_cselect_b32 s51, {T_S*T_STAGE}, 0
        s_sub_u32 s30, s30, s51
        s_waitcnt lgkmcnt(0)""")
        tmr(82)
        if DIAG:
            e("s_sub_u32 s82, s82, s80\ns_add_u32 s84, s84, s82")
        e("s_barrier")
        tmr(80)
        if OPT['touch']:
            e("s_add_u32 s25, s25, 2")
            tcheck(e, L + tag)
        for op in comp(0, X):
            e(op)
        tmr(82)
        if DIAG:
            e("s_sub_u32 s82, s82, s80\ns_add_u32 s85, s85, s82")
    e.label(f"{L}_loop")
    unit(0, "la")
    unit(1, "lb")
    e(f"""s_sub_u32 s31, s31, 1
    s_cmp_lg_u32 s31, 0
    s_cbranch_scc1 {L}_loop""")
    if par == 0:
        e("s_barrier")
    for op in comp(1, 1):
        e(op)
    stamp(e, 2)
    e(f"""s_mul_i32 s51, s56, 49152
    s_mul_i32 s52, s57, 12288
    s_add_u32 s51, s51, s52
    s_add_u32 s51, s51, {24576*par}
    v_lshlrev_b32 v15, 4, v0
    v_add_u32 v14, s51, v15
    s_mul_i32 s51, s56, 49152
    v_add_u32 v13, s51, v15
    s_nop 7""")
    for kh_ in range(2):
        j = kh_ + 2 * par
        if kh_ == 0:
            e(f"""s_cmp_eq_u32 s57, 1
            s_cbranch_scc1 {L}_ep1""")
        else:
            e.label(f"{L}_ep1")
        for f in range(2):
            for gt in range(6):
                if gt // 2 != j:
                    e(f"ds_write_b128 v14, v[{ACC+24*f+4*gt}:{ACC+24*f+4*gt+3}] offset:{(f*6+gt)*1024}")
        if j < 3:
            e(f"""s_lshl_b32 s51, s6, 1
            s_add_u32 s51, s51, s56
            s_mul_i32 s54, s7, 120
            s_add_u32 s54, s54, s51
            s_add_u32 s54, s54, {40*j}
            s_lshl_b32 s54, s54, 10
            s_add_u32 s54, s54, {T_WS}
            s_add_u32 s55, s54, 20480""")
        e("s_waitcnt lgkmcnt(0)")
        e("s_barrier")
        if j < 3:
            srcs = [x for x in range(4) if x != j]
            n = 0
            for g2 in range(2):
                gt = 2 * j + g2
                for f in range(2):
                    for si, x in enumerate(srcs):
                        r = 20 + ((g2 * 2 + f) * 3 + si) * 4
                        e(f"ds_read_b128 v[{r}:{r+3}], v13 offset:{x*12288 + (f*6+gt)*1024}")
            for g2 in range(2):
                gt = 2 * j + g2
                for f in range(2):
                    e(f"s_waitcnt lgkmcnt({12 - 3*(g2*2+f+1)})")
                    d = ACC + 24 * f + 4 * gt
                    for si in range(3):
                        r = 20 + ((g2 * 2 + f) * 3 + si) * 4
                        for i in range(4):
                            e(f"v_add_f32 v{d+i}, v{d+i}, v{r+i}")
                    e(f"v_cvt_pk_bf16_f32 v{72+4*g2+2*f}, v{d}, v{d+1}")
                    e(f"v_cvt_pk_bf16_f32 v{73+4*g2+2*f}, v{d+2}, v{d+3}")
                e(f"buffer_store_dwordx4 v[{72+4*g2}:{75+4*g2}], v15, s[16:19], s{54+g2} offen")
        if kh_ == 0:
            stamp_flush(e, 4, 0)
            e("s_endpgm")
    stamp_flush(e, 4, 0)
    e("s_endpgm")

def x_loader(e):
    e("""s_sub_u32 s50, s3, 8
    v_and_b32 v60, 15, v0
    v_lshrrev_b32 v61, 4, v0
    s_mov_b32 s52, 1280""")
    for i in range(4):
        e(f"""v_add_u32 v62, {4*i}, v61
        v_mul_lo_u32 v63, v62, s52
        v_or_b32 v62, {((i>>1)&1)<<2}, v61
        v_lshlrev_b32 v62, 1, v62
        v_xor_b32 v62, v60, v62
        v_lshl_add_u32 v{1+i}, v62, 4, v63""")
        if i:
            e(f"v_subrev_u32 v{1+i}, {1024*i}, v{1+i}")
    e(f"""s_mul_i32 s28, s50, 20480
    s_lshl_b32 s51, s6, 8
    s_add_u32 s28, s28, s51
    s_lshl_b32 s53, s50, 12
    s_add_u32 s53, s53, {X_U}""")
    for i in range(4):
        e(f"""v_lshrrev_b32 v62, 3, v0
        v_add_u32 v62, {8*i}, v62
        v_mul_lo_u32 v63, v62, s52
        v_add_u32 v62, {4*i}, v61
        v_and_b32 v62, 7, v62
        v_and_b32 v64, 7, v0
        v_xor_b32 v62, v64, v62
        v_lshl_add_u32 v{5+i}, v62, 4, v63""")
        if i:
            e(f"v_subrev_u32 v{5+i}, {1024*i}, v{5+i}")
    e(f"""s_lshl_b32 s27, s7, 7
    s_lshl_b32 s51, s50, 5
    s_add_u32 s27, s27, s51
    s_mul_i32 s27, s27, 1280
    s_lshl_b32 s54, s50, 12
    s_add_u32 s54, s54, {X_X}""")
    def issue():
        e("s_add_u32 m0, s29, s53")
        e("s_nop 0")
        for i in range(4):
            off = f" offset:{1024*i}" if i else ""
            e(f"buffer_load_dwordx4 v{1+i}, s[8:11], s28 offen{off} lds")
        e("s_add_u32 m0, s29, s54")
        e(f"s_add_u32 s28, s28, {64*1280}")
        for i in range(4):
            off = f" offset:{1024*i}" if i else ""
            e(f"buffer_load_dwordx4 v{5+i}, s[12:15], s27 offen{off} lds")
        e("s_add_u32 s27, s27, 128")
    loader_loop(e, "XL", X_NST, X_S, X_STAGE, 8, issue)

def x_consumer(e):
    L = "XC"
    if OPT['xtouch']:
        for rnd in range(2):
            e(f"""s_lshl_b32 s51, s5, 3
            s_add_u32 s51, s51, s3
            s_add_u32 s51, s51, {14*OPT['xfirst'] + 80*rnd}
            s_cmp_ge_u32 s51, 140
            s_cbranch_scc1 {L}_td{rnd}
            s_mul_i32 s52, s51, 147
            s_lshr_b32 s52, s52, 11         ; stage = p/14
            s_mul_i32 s53, s52, 14
            s_sub_u32 s51, s51, s53         ; u
            s_cmp_ge_u32 s51, 4
            s_cbranch_scc1 {L}_tu{rnd}
            s_lshl_b32 s51, s51, 6
            v_add_u32 v62, s51, v0          ; row
            s_mov_b32 s53, 1280
            v_mul_lo_u32 v62, v62, s53
            s_mul_i32 s53, s4, {256*1280}
            s_lshl_b32 s52, s52, 7
            s_add_u32 s53, s53, s52
            buffer_load_dword v{1+rnd}, v62, s[12:15], s53 offen
            s_branch {L}_td{rnd}""")
            e.label(f"{L}_tu{rnd}")
            e(f"""s_sub_u32 s51, s51, 4
            s_lshl_b32 s51, s51, 13
            v_lshlrev_b32 v62, 7, v0
            s_mul_i32 s52, s52, {64*1280}
            s_add_u32 s53, s51, s52
            buffer_load_dword v{1+rnd}, v62, s[8:11], s53 offen""")
            e.label(f"{L}_td{rnd}")
    e("""v_and_b32 v60, 15, v0          ; c
    v_lshrrev_b32 v61, 4, v0        ; q
    s_and_b32 s56, s3, 1
    s_lshr_b32 s57, s3, 1
    v_lshrrev_b32 v62, 2, v60        ; r
    v_and_b32 v63, 1, v61
    v_lshl_add_u32 v63, v63, 2, v62  ; g
    v_lshl_add_u32 v62, v61, 3, v62  ; 8q+r
    v_lshlrev_b32 v62, 8, v62
    v_and_b32 v64, 3, v60
    v_lshl_add_u32 v62, v64, 3, v62
    s_lshl_b32 s51, s56, 2""")
    for a in range(4):
        e(f"""s_add_u32 s58, s51, {a}
        v_xor_b32 v64, s58, v63
        v_lshl_add_u32 v{5+a}, v64, 5, v62""")
        if X_U:
            e(f"v_add_u32 v{5+a}, {X_U}, v{5+a}")
    e(f"""v_lshrrev_b32 v62, 1, v60
    v_xor_b32 v62, v62, v61
    v_lshlrev_b32 v62, 4, v62
    v_lshl_add_u32 v62, v60, 7, v62
    s_lshl_b32 s51, s57, 12
    s_add_u32 s51, s51, {X_X}
    v_add_u32 v9, s51, v62
    v_xor_b32 v10, 64, v9""")
    for i in range(32):
        e(f"v_mov_b32 v{96+i}, 0")
    e("s_mov_b32 s30, 0")
    e(f"s_mov_b32 s31, {X_NST}")
    stamp(e, 1)
    e("s_mov_b32 s24, s5")
    e("s_mov_b32 s25, 0")
    e.label(f"{L}_loop")
    e("s_barrier")
    if OPT['touch'] and OPT['tmode'] == 1:
        e(f"""s_and_b32 s51, s25, 7
        s_cmp_lg_u32 s51, s3
        s_cbranch_scc1 {L}_nt
        s_mul_i32 s26, s24, 205
        s_lshr_b32 s26, s26, 10
        s_mul_i32 s51, s26, 5
        s_sub_u32 s51, s24, s51
        s_add_u32 s51, s51, 8
        s_add_u32 s26, s26, {OPT['p0'] or 4}
        s_cmp_ge_u32 s26, 24
        s_cbranch_scc1 {L}_nt""")
        touch_setup(e, L + "x", 3, 20)
        e("buffer_load_dword v2, v3, s[52:55], s27 offen")
        e.label(f"{L}_nt")
        e("""s_add_u32 s24, s24, 10
        s_add_u32 s25, s25, 1""")
    for a in range(6):
        e(f"v_add_u32 v{11+a}, s30, v{5+a}")
    e(f"""s_add_u32 s30, s30, {X_STAGE}
    s_cmp_ge_u32 s30, {X_S*X_STAGE}
    s_cselect_b32 s30, 0, s30""")
    for kh in range(2):
        base = 32 + 32 * kh
        for a in range(4):
            e(f"ds_read_b64_tr_b16 v[{base+4*a}:{base+4*a+1}], v{11+a} offset:{8192*kh}")
            e(f"ds_read_b64_tr_b16 v[{base+4*a+2}:{base+4*a+3}], v{11+a} offset:{8192*kh+1024}")
        for mt in range(2):
            e(f"ds_read_b128 v[{base+16+4*mt}:{base+19+4*mt}], v{15+kh} offset:{2048*mt}")
    for kh in range(2):
        base = 32 + 32 * kh
        e(f"s_waitcnt lgkmcnt({10 if kh == 0 else 0})")
        for a in range(4):
            for mt in range(2):
                d = 96 + 8 * a + 4 * mt
                e(f"v_mfma_f32_16x16x32_bf16 v[{d}:{d+3}], v[{base+4*a}:{base+4*a+3}], v[{base+16+4*mt}:{base+19+4*mt}], v[{d}:{d+3}]")
    e(f"""s_sub_u32 s31, s31, 1
    s_cmp_lg_u32 s31, 0
    s_cbranch_scc1 {L}_loop""")
    stamp(e, 2)
    e(f"""s_lshl_b32 s51, s7, 3
    s_lshl_b32 s52, s57, 1
    s_add_u32 s51, s51, s52
    s_mul_i32 s51, s51, 20
    s_lshl_b32 s52, s6, 2
    s_add_u32 s51, s51, s52
    s_lshl_b32 s52, s56, 1
    s_add_u32 s51, s51, s52
    s_lshl_b32 s54, s51, 10
    s_add_u32 s54, s54, {XR_WS}
    s_add_u32 s55, s54, 20480
    v_lshlrev_b32 v62, 4, v0
    s_nop 7""")
    for mt in range(2):
        for kb in range(2):
            P = 32 + 8 * mt + 4 * kb
            d0 = 96 + 8 * (2 * kb) + 4 * mt
            d1 = 96 + 8 * (2 * kb + 1) + 4 * mt
            e(f"""v_cvt_pk_bf16_f32 v{P}, v{d0}, v{d0+1}
            v_cvt_pk_bf16_f32 v{P+1}, v{d0+2}, v{d0+3}
            v_cvt_pk_bf16_f32 v{P+2}, v{d1}, v{d1+1}
            v_cvt_pk_bf16_f32 v{P+3}, v{d1+2}, v{d1+3}""")
            so = "s54" if mt == 0 else "s55"
            off = f" offset:{1024*kb}" if kb else ""
            e(f"buffer_store_dwordx4 v[{P}:{P+3}], v62, s[16:19], {so} offen{off}")
    stamp_flush(e, 4, 0)
    e("s_endpgm")

def p1_kernel(e):
    e.raw(".p2align 8")
    e.raw(".type p1_kernel,@function")
    e.label("p1_kernel")
    e(f"""s_cmp_ge_u32 s2, {256 if OPT['touch'] and OPT['tmode'] == 1 else 240}
    s_cbranch_scc1 P1_end""")
    stamp(e, 0)
    e("""s_load_dwordx16 s[32:47], s[0:1], 0
    s_load_dwordx2 s[48:49], s[0:1], 64
    v_lshrrev_b32 v1, 6, v0
    v_and_b32 v0, 63, v0
    s_and_b32 s4, s2, 7
    s_lshr_b32 s5, s2, 3
    v_readfirstlane_b32 s3, v1
    s_waitcnt lgkmcnt(0)""")
    srd(e, 16, 48, WS_BYTES)
    P0 = OPT['p0']
    if OPT['touch'] and OPT['tmode'] == 1 and P0:
        e(f"""s_cmp_lt_u32 s3, 4
        s_cbranch_scc1 P0_done
        s_cmp_ge_u32 s3, {4 + P0 // 2}
        s_cbranch_scc1 P0_done
        s_sub_u32 s51, s3, 4
        s_lshl_b32 s51, s51, 5
        s_add_u32 s51, s51, s5
        s_lshr_b32 s26, s51, 4
        s_and_b32 s51, s51, 15""")
        touch_setup(e, "P0", 3, 20)
        e("buffer_load_dword v2, v3, s[52:55], s27 offen")
        e.label("P0_done")
    e("""s_cmp_ge_u32 s5, 30
    s_cbranch_scc1 P1_i
    s_cmp_ge_u32 s5, 20
    s_cbranch_scc1 P1_x""")
    e("""s_mul_i32 s7, s5, 52
    s_lshr_b32 s7, s7, 8          ; i/5
    s_mul_i32 s51, s7, 5
    s_sub_u32 s6, s5, s51         ; i%5
    s_and_b32 s51, s4, 1
    s_mul_i32 s51, s51, 5
    s_add_u32 s6, s6, s51
    s_lshr_b32 s51, s4, 1
    s_lshl_b32 s51, s51, 2
    s_add_u32 s7, s7, s51""")
    srd(e, 8, 34, 3932160)
    srd(e, 12, 42, 4718592)
    e("""s_cmp_ge_u32 s3, 8
    s_cbranch_scc1 P1_tl
    s_cmp_ge_u32 s3, 4
    s_cbranch_scc1 P1_tc1""")
    srd(e, 20, 38, 3072)
    srd(e, 24, 36, 3072)
    t_consumer(e, 0)
    e.label("P1_tc1")
    t_consumer(e, 1)
    e.label("P1_tl")
    t_loader(e)
    e.label("P1_x")
    e("""s_sub_u32 s5, s5, 20
    s_cmp_ge_u32 s5, 5
    s_cselect_b32 s51, 1, 0
    s_mul_i32 s52, s51, 5
    s_sub_u32 s6, s5, s52
    s_lshl_b32 s7, s4, 1
    s_add_u32 s7, s7, s51""")
    srd(e, 8, 40, 819200)
    srd(e, 12, 32, 2621440)
    e("""s_cmp_ge_u32 s3, 8
    s_cbranch_scc1 P1_xl""")
    x_consumer(e)
    e.label("P1_xl")
    x_loader(e)
    e.label("P1_i")
    idle_toucher(e)
    e.label("P1_end")
    e("s_endpgm")

Y_S = 5
Y_STAGE = 28672
Y_NST = 10
P2_LDS = Y_S * Y_STAGE

def p2_kernel(e):
    CUR_K[0] = 1
    e.raw(".p2align 8")
    e.raw(".type p2_kernel,@function")
    e.label("p2_kernel")
    e("""s_cmp_ge_u32 s2, 256
    s_cbranch_scc1 P2_end""")
    stamp(e, 0)
    e("""s_load_dwordx2 s[44:45], s[0:1], 48
    s_load_dwordx2 s[48:49], s[0:1], 64
    v_lshrrev_b32 v1, 6, v0
    v_and_b32 v0, 63, v0
    s_and_b32 s4, s2, 7
    s_lshr_b32 s5, s2, 3
    v_readfirstlane_b32 s3, v1
    v_lshlrev_b32 v1, 4, v0""")
    e("""s_and_b32 s6, s4, 3
    s_lshl_b32 s6, s6, 2
    s_and_b32 s51, s5, 3
    s_add_u32 s6, s6, s51
    s_lshr_b32 s7, s4, 2
    s_lshl_b32 s7, s7, 3
    s_lshr_b32 s51, s5, 2
    s_add_u32 s7, s7, s51
    s_cmp_ge_u32 s3, 4
    s_cbranch_scc0 P2_c""")
    e(f"""s_sub_u32 s50, s3, 4
    s_and_b32 s51, s50, 1
    s_lshr_b32 s52, s50, 1           ; kk
    s_mul_i32 s53, s52, 14336
    s_mul_i32 s55, s51, 3072
    s_add_u32 s54, s53, 6144
    s_add_u32 s53, s53, s55          ; T lds base
    s_lshl_b32 s55, s51, 12
    s_add_u32 s54, s54, s55          ; xr lds base
    s_mul_i32 s55, s51, 3
    s_mul_i32 s56, s7, 6
    s_add_u32 s55, s55, s56
    s_mul_i32 s55, s55, 20
    s_add_u32 s55, s55, s52
    s_lshl_b32 s28, s55, 10
    s_add_u32 s28, s28, {T_WS}
    s_lshl_b32 s55, s51, 2
    s_lshl_b32 s56, s6, 3
    s_add_u32 s55, s55, s56
    s_mul_i32 s55, s55, 20
    s_add_u32 s55, s55, s52
    s_lshl_b32 s27, s55, 10
    s_add_u32 s27, s27, {XR_WS}""")
    for i in range(1, 4):
        e(f"v_add_u32 v{1+i}, {19456*i}, v1")
    e("s_waitcnt lgkmcnt(0)")
    srd(e, 16, 48, WS_BYTES)
    def issue():
        e("s_add_u32 m0, s29, s53")
        e("s_nop 0")
        for i in range(3):
            off = f" offset:{1024*i}" if i else ""
            e(f"buffer_load_dwordx4 v{1+i}, s[16:19], s28 offen{off} lds")
        e("s_add_u32 m0, s29, s54")
        e("s_add_u32 s28, s28, 2048")
        for i in range(4):
            off = f" offset:{1024*i}" if i else ""
            e(f"buffer_load_dwordx4 v{1+i}, s[16:19], s27 offen{off} lds")
        e("s_add_u32 s27, s27, 2048")
    loader_loop(e, "YL", Y_NST, Y_S, Y_STAGE, 7, issue)
    e.label("P2_c")
    ACC = 64
    FB = [8, 112]
    for i in range(48):
        e(f"v_mov_b32 v{ACC+i}, 0")
    e("""s_lshl_b32 s51, s3, 11
    s_add_u32 s51, s51, 6144
    v_add_u32 v2, s51, v1
    s_waitcnt lgkmcnt(0)""")
    srd(e, 16, 48, WS_BYTES)
    srd(e, 8, 44, 6291456)
    e("s_mov_b32 s30, 0")

    def rlist(kk, b):
        l = []
        for mi in range(2):
            l.append(f"ds_read_b128 v[{b+24+4*mi}:{b+27+4*mi}], v4 offset:{kk*14336 + mi*1024}")
        for gt in range(6):
            l.append(f"ds_read_b128 v[{b+4*gt}:{b+4*gt+3}], v3 offset:{kk*14336 + gt*1024}")
        return l

    def block(b, rl):
        i = 0
        for gt in range(6):
            for mi in range(2):
                d = ACC + (gt * 2 + mi) * 4
                e(f"v_mfma_f32_16x16x32_bf16 v[{d}:{d+3}], v[{b+4*gt}:{b+4*gt+3}], v[{b+24+4*mi}:{b+27+4*mi}], v[{d}:{d+3}]")
                if i < len(rl):
                    e(rl[i]); i += 1

    def newslot():
        e(f"""v_add_u32 v3, s30, v1
        v_add_u32 v4, s30, v2
        s_add_u32 s30, s30, {Y_STAGE}
        s_cmp_ge_u32 s30, {Y_S*Y_STAGE}
        s_cselect_b32 s30, 0, s30""")

    e("s_barrier")
    stamp(e, 1)
    newslot()
    for r in rlist(0, FB[0]):
        e(r)
    e(f"s_mov_b32 s31, {Y_NST-1}")
    e.label("P2_loop")
    e("s_waitcnt lgkmcnt(0)")
    block(FB[0], rlist(1, FB[1]))
    e("s_waitcnt lgkmcnt(0)")
    e("s_barrier")
    newslot()
    block(FB[1], rlist(0, FB[0]))
    e("""s_sub_u32 s31, s31, 1
    s_cmp_lg_u32 s31, 0
    s_cbranch_scc1 P2_loop""")
    e("s_waitcnt lgkmcnt(0)")
    block(FB[0], rlist(1, FB[1]))
    e("s_waitcnt lgkmcnt(0)")
    block(FB[1], [])
    stamp(e, 2)
    e("""v_and_b32 v3, 15, v0
    v_lshrrev_b32 v4, 4, v0
    s_mov_b32 s52, 3072
    v_mul_lo_u32 v3, v3, s52
    v_and_b32 v5, 1, v4
    v_lshrrev_b32 v4, 1, v4
    v_lshlrev_b32 v5, 5, v5
    v_lshl_add_u32 v5, v4, 4, v5
    v_add_u32 v3, v3, v5
    s_lshl_b32 s51, s6, 7
    s_lshl_b32 s52, s3, 5
    s_add_u32 s51, s51, s52
    s_mul_i32 s54, s51, 3072
    s_mul_i32 s52, s7, 192
    s_add_u32 s54, s54, s52
    s_add_u32 s55, s54, 49152
    s_nop 7""")
    for mi in range(2):
        for a in range(3):
            P = 8 + (mi * 3 + a) * 4
            dA = ACC + ((2 * a) * 2 + mi) * 4
            dB = ACC + ((2 * a + 1) * 2 + mi) * 4
            e(f"""v_cvt_pk_bf16_f32 v{P}, v{dA}, v{dA+1}
            v_cvt_pk_bf16_f32 v{P+1}, v{dA+2}, v{dA+3}
            v_cvt_pk_bf16_f32 v{P+2}, v{dB}, v{dB+1}
            v_cvt_pk_bf16_f32 v{P+3}, v{dB+2}, v{dB+3}
            s_nop 1
            v_permlane16_swap_b32 v{P}, v{P+2}
            v_permlane16_swap_b32 v{P+1}, v{P+3}""")
            so = "s54" if mi == 0 else "s55"
            off = f" offset:{64*a}" if a else ""
            e("s_nop 1")
            e(f"buffer_store_dwordx4 v[{P}:{P+3}], v3, s[8:11], {so} offen{off}")
    stamp_flush(e, 4, 1)
    e.label("P2_end")
    e("s_endpgm")

def main(out):
    e = E()
    e.raw(HEADER.rstrip('\n'))
    e.raw(f"; @launch kernel=p1_kernel grid=({256 if OPT['touch'] and OPT['tmode'] == 1 else 240},1,1) block=(768,1,1) lds={P1_LDS}")
    e.raw(f"; @launch kernel=p2_kernel grid=(256,1,1) block=(512,1,1) lds={P2_LDS}")
    e.raw('.amdgcn_target "amdgcn-amd-amdhsa--gfx950"')
    e.raw(".text")
    e.raw(".globl p1_kernel")
    e.raw(".globl p2_kernel")
    p1_kernel(e)
    p2_kernel(e)
    e.raw('.section .rodata,"a"')
    for name, vg, acc in (("p1_kernel", 168, 168), ("p2_kernel", 144, 144)):
        e.raw(".p2align 6")
        e.raw(f""".amdhsa_kernel {name}
  .amdhsa_next_free_vgpr {vg}
  .amdhsa_next_free_sgpr 96
  .amdhsa_accum_offset {acc}
  .amdhsa_group_segment_fixed_size 0
  .amdhsa_kernarg_size 72
  .amdhsa_user_sgpr_count 2
  .amdhsa_user_sgpr_kernarg_segment_ptr 1
  .amdhsa_system_sgpr_workgroup_id_x 1
  .amdhsa_float_denorm_mode_32 3
.end_amdhsa_kernel""")
    open(out, 'w').write(e.text())

if __name__ == '__main__':
    for a in sys.argv[2:]:
        if a == 'diag':
            DIAG = True
        elif '=' in a:
            k, v = a.split('=')
            OPT[k] = int(v)
    main(sys.argv[1] if len(sys.argv) > 1 else 'standalone__weight_only_int_quip__prompt.s')
```

```python
import sys

HEADER = open('standalone__weight_only_int_quip__prompt.s.ref').read().split('; Override launch')[0]

XR_WS = 0
T_WS = 2621440
WS_BYTES = 268435456
OPT = dict(ldprio=0, noload=0, nocomp=0, touch=1, tdelta=12, xdelta=6, nt=0, nttouch=0, xtouch=0, samek=0, dbg=0, drop=0, split=16, zdpp=1, sdpp=1, rdfirst=1, inner=0, tmode=1, protouch=1, p0=8, xfirst=1, tlead=4)

class E:
    def __init__(self):
        self.l = []
    def __call__(self, s):
        for line in s.strip('\n').split('\n'):
            t = line.strip()
            if OPT['noload'] and t.endswith(' lds'): continue
            if (OPT['drop'] & 1) and t.startswith('ds_read_b64_tr'): continue
            if (OPT['drop'] & 2) and t.endswith('; DQ'): continue
            if (OPT['drop'] & 8) and (t.startswith('ds_read_b128') or t.startswith('ds_read_b32')): continue
            if (OPT['drop'] & 4) and t.startswith('v_mfma'): continue
            if OPT['samek'] and (t.startswith('s_add_u32 s28, s28,') or t.startswith('s_add_u32 s27, s27,')): continue
            if OPT['nt'] and t.endswith(' lds') and ('s[8:11]' in t or 's[12:15]' in t): t = t[:-4] + ' nt lds'
            if OPT['nttouch'] and t.startswith('buffer_load_dword v'): t = t + ' nt'
            if OPT['nocomp'] and (t.startswith('ds_read') or t.startswith('v_mfma') or '_dpp' in t or t.startswith('v_cvt')): continue
            self.l.append('    ' + t)
    def label(self, s):
        self.l.append(s + ':')
    def raw(self, s):
        self.l.append(s)
    def text(self):
        return '\n'.join(self.l) + '\n'

DIAG = False
STAMP_WS = 64 << 20
def dbg_entry(e):
    if not OPT['dbg']: return
    e("""s_memrealtime s[90:91]
    s_memtime s[86:87]
    s_load_dwordx2 s[92:93], s[0:1], 56
    s_waitcnt lgkmcnt(0)
    s_mov_b32 s88, s92
    s_and_b32 s89, s93, 0xffff
    s_not_b32 s94, s90
    s_mov_b32 s90, 256
    s_mov_b32 s91, 0x00020000""")
DBGN = [0]
DBG_WS = 100 << 20
def dbg_exit(e, kern):
    if not OPT['dbg']: return
    DBGN[0] += 1
    lab = f"DBGX{DBGN[0]}"
    e(f"""s_and_b32 s95, s3, 3
    s_cmp_lg_u32 s95, 0
    s_cbranch_scc1 {lab}
    s_waitcnt vmcnt(0)
    s_memrealtime s[92:93]
    s_waitcnt lgkmcnt(0)
    s_not_b32 s94, s94
    v_mov_b32 v2, 0
    v_mov_b32 v4, s94
    v_mov_b32 v5, s92
    s_lshl_b32 s95, s2, 4
    s_lshl_b32 s93, s3, 1
    s_add_u32 s95, s95, s93
    s_add_u32 s95, s95, {DBG_WS + kern * 8192}
    buffer_store_dwordx2 v[4:5], v2, s[16:19], s95 offen""")
    if kern == 1:
        e(f"""s_or_b32 s95, s2, s3
        s_cmp_lg_u32 s95, 0
        s_cbranch_scc1 {lab}
        v_lshlrev_b32 v2, 4, v0""")
        for i in range(4):
            if i == 3:
                e("v_min_u32 v2, 752, v2")
            e(f"s_mov_b32 s95, {DBG_WS + i * 1024}")
            e(f"buffer_load_dwordx4 v[{8+4*i}:{11+4*i}], v2, s[16:19], s95 offen")
        e("s_waitcnt vmcnt(0)")
        for i in range(4):
            e(f"v_max_u32 v{9+4*i}, v{9+4*i}, v{11+4*i}")
            e(f"v_sub_u32 v{10+4*i}, v{9+4*i}, v{8+4*i}")
        e("""v_min_u32 v24, v8, v12
        v_min_u32 v24, v24, v16
        v_min_u32 v24, v24, v20
        v_max_u32 v25, v8, v12
        v_max_u32 v25, v25, v16
        v_max_u32 v25, v25, v20
        v_min_u32 v26, v9, v13
        v_min_u32 v26, v26, v17
        v_min_u32 v26, v26, v21
        v_max_u32 v27, v9, v13
        v_max_u32 v27, v27, v17
        v_max_u32 v27, v27, v21
        v_max_u32 v28, v10, v14
        v_max_u32 v28, v28, v18
        v_max_u32 v28, v28, v22
        s_mov_b32 s70, -1
        s_mov_b32 s71, 0
        s_mov_b32 s72, -1
        s_mov_b32 s73, 0
        s_mov_b32 s74, 0
        s_nop 1""")
        for l in range(64):
            e(f"""v_readlane_b32 s75, v24, {l}
            v_readlane_b32 s76, v25, {l}
            v_readlane_b32 s77, v26, {l}
            v_readlane_b32 s78, v27, {l}
            v_readlane_b32 s79, v28, {l}
            s_nop 3
            s_min_u32 s70, s70, s75
            s_max_u32 s71, s71, s76
            s_min_u32 s72, s72, s77
            s_max_u32 s73, s73, s78
            s_max_u32 s74, s74, s79""")
        e("""v_mov_b32 v2, 0
        v_mov_b32 v4, s70
        v_mov_b32 v5, s71
        v_mov_b32 v6, s72
        v_mov_b32 v7, s73
        buffer_store_dwordx4 v[4:7], v2, s[88:91], 0 offen
        v_mov_b32 v8, s74
        v_mov_b32 v9, s94
        v_mov_b32 v10, s92
        v_mov_b32 v11, 0
        buffer_store_dwordx4 v[8:11], v2, s[88:91], 0 offen offset:16""")
    e.label(lab)

CUR_K = [0]
def stamp(e, i):
    if i == 0 and OPT['dbg']: dbg_entry(e)
    if not DIAG: return
    e(f"""s_memtime s[{64+4*i}:{65+4*i}]
    s_memrealtime s[{66+4*i}:{67+4*i}]
    s_waitcnt lgkmcnt(0)""")
def stamp_flush(e, n, kern):
    if OPT['dbg']: dbg_exit(e, kern)
    if not DIAG: return
    e(f"""s_waitcnt vmcnt(0)""")
    stamp(e, n - 1)
    e(f"""s_lshl_b32 s60, s2, 4
    s_add_u32 s60, s60, s3
    s_lshl_b32 s60, s60, 7
    s_add_u32 s60, s60, {STAMP_WS + kern * (1 << 20)}
    v_mov_b32 v2, 0
    s_getreg_b32 s61, hwreg(HW_REG_XCC_ID)
    s_getreg_b32 s62, hwreg(HW_REG_HW_ID)
    v_mov_b32 v4, s61
    v_mov_b32 v5, s62
    buffer_store_dwordx2 v[4:5], v2, s[16:19], s60 offen offset:112
    s_waitcnt vmcnt(0)
    v_mov_b32 v4, s84
    v_mov_b32 v5, s85
    buffer_store_dwordx2 v[4:5], v2, s[16:19], s60 offen offset:96
    s_waitcnt vmcnt(0)""")
    for i in range(n):
        e(f"""v_mov_b32 v4, s{64+4*i}
        v_mov_b32 v5, s{65+4*i}
        v_mov_b32 v6, s{66+4*i}
        v_mov_b32 v7, s{67+4*i}
        buffer_store_dwordx4 v[4:7], v2, s[16:19], s60 offen offset:{16*i}
        s_waitcnt vmcnt(0)""")

def srd(e, d, lo, nbytes):
    e(f"""s_mov_b32 s{d}, s{lo}
    s_and_b32 s{d+1}, s{lo+1}, 0xffff
    s_mov_b32 s{d+2}, {nbytes}
    s_mov_b32 s{d+3}, 0x00020000""")

T_S = 5
T_STAGE = 28672
T_QW = 0
T_V = 16384
T_ZS = T_S * T_STAGE
T_NST = 24
X_S = 4
X_STAGE = 32768
X_U = 0
X_X = 16384
X_NST = 10
P1_LDS = T_ZS + 12288

def loader_loop(e, L, nst, RING, stage_bytes, npieces, issue, lead=None):
    S = (lead + 1) if lead else RING
    if OPT['ldprio']:
        e(f"s_setprio {OPT['ldprio']}")
    def rec():
        if DIAG:
            e("""s_memtime s[62:63]
            s_waitcnt lgkmcnt(0)
            v_mov_b32 v21, s62
            v_cmp_eq_u32 vcc, s61, v0
            s_nop 1
            v_cndmask_b32 v20, v20, v21, vcc
            s_add_u32 s61, s61, 1""")
    def adv():
        e(f"""s_add_u32 s29, s29, {stage_bytes}
        s_cmp_ge_u32 s29, {RING*stage_bytes}
        s_cselect_b32 s29, 0, s29""")
    e("s_mov_b32 s29, 0")
    if DIAG:
        e("s_mov_b32 s61, 0\nv_mov_b32 v20, 0")
        rec()
    issued = 0
    first = min(2, S - 1)
    for _ in range(first):
        issue(); adv(); issued += 1
    s = 0
    while issued < s + S - 1:
        e(f"s_waitcnt vmcnt({npieces*(issued-1-s)})")
        e("s_barrier")
        rec()
        for _ in range(2):
            if issued < s + S:
                issue(); adv(); issued += 1
        s += 1
    nloop = nst - issued
    e(f"s_mov_b32 s31, {nloop}")
    e.label(f"{L}_ldloop")
    e(f"s_waitcnt vmcnt({npieces*(S-2)})")
    e("s_barrier")
    rec()
    issue()
    adv()
    e(f"""s_sub_u32 s31, s31, 1
    s_cmp_lg_u32 s31, 0
    s_cbranch_scc1 {L}_ldloop""")
    s += nloop
    for ss in range(s, nst):
        e(f"s_waitcnt vmcnt({npieces*(nst-1-ss)})")
        e("s_barrier")
        rec()
    if DIAG:
        kern = 1 if L == "YL" else 0
        e(f"""s_lshl_b32 s60, s2, 2
        s_add_u32 s60, s60, s50
        s_lshl_b32 s60, s60, 8
        s_add_u32 s60, s60, {STAMP_WS + (4 + kern) * (1 << 20)}
        v_lshlrev_b32 v21, 2, v0
        buffer_store_dword v20, v21, s[16:19], s60 offen""")
    e("s_endpgm")

def dequant_ops(R, ZD, NZ, SC, P, A):
    ops = []
    for i in range(8):
        ops.append(f"v_cvt_f32_i32 v{R+i}, v{R+i}")
    for i in range(8):
        if OPT['zdpp']:
            ops.append(f"v_add_f32_dpp v{R+i}, v{ZD}, v{R+i} row_newbcast:{i} row_mask:0xf bank_mask:0xf")
        else:
            ops.append(f"v_add_f32 v{R+i}, v{NZ+i}, v{R+i}")
    for i in range(4):
        ops.append(f"v_cvt_pk_bf16_f32 v{P+i}, v{R+2*i}, v{R+2*i+1}")
    for i in range(4):
        ops.append(f"v_lshlrev_b32 v{R+2*i}, 16, v{P+i}")
        ops.append(f"v_and_b32 v{R+2*i+1}, 0xffff0000, v{P+i}")
    for i in range(8):
        if OPT['sdpp']:
            ops.append(f"v_mul_f32_dpp v{R+i}, v{ZD}, v{R+i} row_newbcast:{8+i} row_mask:0xf bank_mask:0xf")
        else:
            ops.append(f"v_mul_f32 v{R+i}, v{SC+i}, v{R+i}")
    for i in range(4):
        ops.append(f"v_cvt_pk_bf16_f32 v{A+i}, v{R+2*i}, v{R+2*i+1}")
    return [o + ' ; DQ' for o in ops]

def t_loader(e):
    e("""s_sub_u32 s50, s3, 8
    v_and_b32 v60, 15, v0
    v_lshrrev_b32 v61, 4, v0
    s_mov_b32 s52, 6144""")
    for i in range(4):
        e(f"""v_add_u32 v62, {4*i}, v61
        v_mul_lo_u32 v63, v62, s52
        v_xor_b32 v62, v60, v62
        v_lshl_add_u32 v{1+i}, v62, 4, v63""")
        if i:
            e(f"v_subrev_u32 v{1+i}, {1024*i}, v{1+i}")
    e(f"""s_lshl_b32 s28, s6, 6
    s_lshl_b32 s51, s50, 4
    s_add_u32 s28, s28, s51
    s_mul_i32 s28, s28, 6144
    s_lshl_b32 s53, s50, 12
    s_add_u32 s53, s53, {T_QW}
    s_mov_b32 s52, 3072""")
    for j in range(3):
        e(f"""v_add_u32 v62, {64*j}, v0
        v_mul_u32_u24 v63, 171, v62
        v_lshrrev_b32 v63, 11, v63
        v_mul_u32_u24 v64, 12, v63
        v_sub_u32 v62, v62, v64
        v_lshrrev_b32 v64, 3, v63
        v_and_b32 v64, 1, v64
        v_lshlrev_b32 v64, 1, v64
        v_xor_b32 v62, v62, v64
        v_mul_lo_u32 v63, v63, s52
        v_lshl_add_u32 v{5+j}, v62, 4, v63""")
        if j:
            e(f"v_subrev_u32 v{5+j}, {1024*j}, v{5+j}")
    e(f"""s_mul_i32 s27, s50, 49152
    s_mul_i32 s51, s7, 192
    s_add_u32 s27, s27, s51
    s_mul_i32 s54, s50, 3072
    s_add_u32 s54, s54, {T_V}""")
    def issue():
        e("s_add_u32 m0, s29, s53")
        e("s_nop 0")
        for i in range(4):
            off = f" offset:{1024*i}" if i else ""
            e(f"buffer_load_dwordx4 v{1+i}, s[8:11], s28 offen{off} lds")
        e("s_add_u32 m0, s29, s54")
        e("s_add_u32 s28, s28, 256")
        for j in range(3):
            off = f" offset:{1024*j}" if j else ""
            e(f"buffer_load_dwordx4 v{5+j}, s[12:15], s27 offen{off} lds")
        e(f"s_add_u32 s27, s27, {64*3072}")
    loader_loop(e, "TL", T_NST, T_S, T_STAGE, 7, issue, lead=OPT["tlead"])

def touch_setup(e, tag, vo, t):
    e(f"""s_cmp_ge_u32 s51, 10
    s_cbranch_scc1 {tag}_tv
    s_lshl_b32 s51, s51, 6
    v_add_u32 v{t}, s51, v0
    v_lshrrev_b32 v{t+1}, 1, v{t}
    v_and_b32 v{t}, 1, v{t}
    s_mov_b32 s53, 6144
    v_mul_lo_u32 v{t+1}, v{t+1}, s53
    v_lshl_add_u32 v{vo}, v{t}, 7, v{t+1}
    s_and_b32 s27, s4, 1
    s_mul_i32 s27, s27, {320*6144}
    s_lshl_b32 s52, s26, 8
    s_add_u32 s27, s27, s52
    s_mov_b32 s52, s34
    s_and_b32 s53, s35, 0xffff
    s_mov_b32 s54, 3932160
    s_mov_b32 s55, 0x00020000
    s_branch {tag}_td""")
    e.label(f"{tag}_tv")
    e(f"""s_sub_u32 s51, s51, 10
    s_lshl_b32 s51, s51, 6
    v_add_u32 v{t}, s51, v0
    v_mul_u32_u24 v{t+1}, 171, v{t}
    v_lshrrev_b32 v{t+1}, 10, v{t+1}
    v_mul_u32_u24 v{t+2}, 6, v{t+1}
    v_sub_u32 v{t}, v{t}, v{t+2}
    s_mov_b32 s53, 3072
    v_mul_lo_u32 v{t+1}, v{t+1}, s53
    v_lshl_add_u32 v{vo}, v{t}, 7, v{t+1}
    s_lshr_b32 s27, s4, 1
    s_mul_i32 s27, s27, 768
    s_mul_i32 s52, s26, {64*3072}
    s_add_u32 s27, s27, s52
    s_mov_b32 s52, s42
    s_and_b32 s53, s43, 0xffff
    s_mov_b32 s54, 4718592
    s_mov_b32 s55, 0x00020000""")
    e.label(f"{tag}_td")

def idle_toucher(e):
    e("""s_cmp_lg_u32 s3, 0
    s_cbranch_scc1 P1_end
    s_sub_u32 s24, s5, 30""")
    e.label("IT_loop")
    e("""s_mul_i32 s26, s24, 171
    s_lshr_b32 s26, s26, 9
    s_mul_i32 s51, s26, 3
    s_sub_u32 s51, s24, s51
    s_add_u32 s51, s51, 13
    s_add_u32 s26, s26, """ + str(OPT['p0'] or 4))
    touch_setup(e, "IT", 3, 20)
    e("""buffer_load_dword v2, v3, s[52:55], s27 offen
    s_add_u32 s24, s24, 2
    s_cmp_lt_u32 s24, """ + str(3 * (24 - (OPT['p0'] or 4))) + """
    s_cbranch_scc1 IT_loop
    s_endpgm""")

def tcheck(e, tag, step=None):
    if step is None:
        step = 100 if OPT['tmode'] == 1 else 10
    e(f"""s_cmp_gt_u32 s26, s25
    s_cbranch_scc1 {tag}_nt
    s_cmp_ge_u32 s26, {T_NST}
    s_cbranch_scc1 {tag}_nt
    buffer_load_dword v2, v3, s[52:55], s27 offen
    s_add_u32 s26, s26, {step}
    s_add_u32 s27, s27, s28""")
    e.label(f"{tag}_nt")

def t_consumer(e, par):
    L = f"TC{par}"
    e("""s_and_b32 s50, s3, 3
    v_and_b32 v60, 15, v0          ; c
    v_lshrrev_b32 v61, 4, v0        ; q""")
    if par == 0:
        e(f"""s_cmp_ge_u32 s3, 3
        s_cbranch_scc1 {L}_nozs
        s_lshl_b32 s51, s3, 10
        v_lshlrev_b32 v62, 4, v0
        v_add_u32 v62, s51, v62
        buffer_load_dwordx4 v[64:67], v62, s[20:23], 0 offen
        buffer_load_dwordx4 v[68:71], v62, s[24:27], 0 offen
        s_waitcnt vmcnt(0)""")
        for i in range(4):
            e(f"""v_lshlrev_b32 v{16+2*i}, 16, v{64+i}
            v_and_b32 v{17+2*i}, 0xffff0000, v{64+i}
            v_lshlrev_b32 v{24+2*i}, 16, v{68+i}
            v_and_b32 v{25+2*i}, 0xffff0000, v{68+i}""")
        for i in range(8):
            e(f"v_xor_b32 v{16+i}, 0x80000000, v{16+i}")
        e(f"""s_lshl_b32 s51, s3, 12
        v_lshlrev_b32 v62, 6, v0
        v_add_u32 v62, s51, v62
        v_add_u32 v62, {T_ZS}, v62
        ds_write_b128 v62, v[16:19]
        ds_write_b128 v62, v[20:23] offset:16
        ds_write_b128 v62, v[24:27] offset:32
        ds_write_b128 v62, v[28:31] offset:48
        s_waitcnt lgkmcnt(0)""")
        e.label(f"{L}_nozs")
    if OPT['touch'] and OPT['tmode'] == 1:
        e(f"""s_add_u32 s26, s5, {OPT['p0'] or 4}
        s_mov_b32 s51, s3""")
        touch_setup(e, L, 3, 62)
        e(f"""s_mov_b32 s28, 0
        s_mov_b32 s25, {OPT['tdelta'] + par}""")
        if OPT['protouch']:
            tcheck(e, L + "p0", 100)
    elif OPT['touch']:
            e(f"""s_lshl_b32 s51, s5, 3
            s_add_u32 s51, s51, s3
            s_lshr_b32 s26, s51, 4          ; sigma0
            s_and_b32 s51, s51, 15          ; u
            s_cmp_ge_u32 s51, 10
            s_cbranch_scc1 {L}_tv
            s_lshl_b32 s51, s51, 6
            v_add_u32 v62, s51, v0          ; t
            v_lshrrev_b32 v63, 1, v62       ; row
            v_and_b32 v62, 1, v62
            s_mov_b32 s53, 6144
            v_mul_lo_u32 v63, v63, s53
            v_lshl_add_u32 v3, v62, 7, v63
            s_and_b32 s27, s4, 1
            s_mul_i32 s27, s27, {320*6144}
            s_lshl_b32 s52, s26, 8
            s_add_u32 s27, s27, s52
            s_mov_b32 s28, 2560
            s_mov_b32 s52, s34
            s_and_b32 s53, s35, 0xffff
            s_mov_b32 s54, 3932160
            s_mov_b32 s55, 0x00020000
            s_branch {L}_td""")
            e.label(f"{L}_tv")
            e(f"""s_sub_u32 s51, s51, 10
            s_lshl_b32 s51, s51, 6
            v_add_u32 v62, s51, v0          ; t in 0..383
            v_mul_u32_u24 v63, 171, v62
            v_lshrrev_b32 v63, 10, v63      ; row = t/6
            v_mul_u32_u24 v64, 6, v63
            v_sub_u32 v62, v62, v64
            s_mov_b32 s53, 3072
            v_mul_lo_u32 v63, v63, s53
            v_lshl_add_u32 v3, v62, 7, v63
            s_lshr_b32 s27, s4, 1
            s_mul_i32 s27, s27, 768
            s_mul_i32 s52, s26, {64*3072}
            s_add_u32 s27, s27, s52
            s_mov_b32 s28, {640*3072}
            s_mov_b32 s52, s42
            s_and_b32 s53, s43, 0xffff
            s_mov_b32 s54, 4718592
            s_mov_b32 s55, 0x00020000""")
            e.label(f"{L}_td")
            e(f"""s_cmp_ge_u32 s26, {T_S-1}
            s_cbranch_scc1 {L}_t0
            s_add_u32 s26, s26, 10
            s_add_u32 s27, s27, s28""")
            e.label(f"{L}_t0")
            e(f"s_mov_b32 s25, {OPT['tdelta'] + par}      ; s + delta")
            tcheck(e, L + "p0")
            tcheck(e, L + "p1")
    e(f"""s_and_b32 s56, s3, 1            ; eh
    s_lshr_b32 s57, s3, 1
    s_and_b32 s57, s57, 1           ; kh
    s_lshl_b32 s51, s57, 3
    v_lshlrev_b32 v62, 1, v61
    v_add_u32 v62, s51, v62
    v_xor_b32 v62, v62, v60
    v_lshlrev_b32 v62, 4, v62
    v_lshl_add_u32 v62, v60, 8, v62
    s_lshl_b32 s51, s56, 13
    s_add_u32 s51, s51, {T_QW}
    v_add_u32 v5, s51, v62
    v_xor_b32 v6, 16, v5
    v_lshlrev_b32 v4, 2, v0
    s_lshl_b32 s51, s57, 8
    s_add_u32 s51, s51, {T_ZS + 512*par}
    v_add_u32 v4, s51, v4
    v_lshlrev_b32 v9, 6, v61
    v_add_u32 v9, s51, v9""")
    e(f"""v_lshrrev_b32 v62, 2, v60        ; r
    v_lshl_add_u32 v62, v61, 3, v62  ; 8q + r
    v_mul_u32_u24 v62, 192, v62
    v_and_b32 v63, 3, v60
    v_lshl_add_u32 v62, v63, 3, v62
    s_mul_i32 s51, s57, {32*192}
    s_add_u32 s51, s51, {T_V}
    v_add_u32 v62, s51, v62
    v_and_b32 v63, 1, v61
    v_lshl_add_u32 v10, v63, 5, v62
    v_xor_b32 v63, 1, v63
    v_lshl_add_u32 v11, v63, 5, v62""")
    RAW0 = 18
    RAW1 = [26, 34]
    ZD = [42, 43]
    P = 44
    A = 48
    B = [52, 76]
    ACC = 100
    NZ, SC = 148, 156
    REGZS = not OPT['zdpp']
    if REGZS:
        for i in range(16):
            e(f"v_mov_b32 v{NZ+i}, 0")
    for i in range(48):
        e(f"v_mov_b32 v{ACC+i}, 0")
    for i in range(24):
        e(f"v_mov_b32 v{B[1]+i}, 0")
    for i in range(8):
        e(f"v_mov_b32 v{RAW1[1]+i}, 0")
    e(f"v_mov_b32 v{ZD[1]}, 0")
    e(f"s_mov_b32 s30, {T_STAGE*par}")
    e("s_mov_b32 s31, 6")
    stamp(e, 1)
    if par == 1:
        e("s_barrier")
    def tmr(reg):
        if DIAG and OPT['inner']:
            e(f"""s_memtime s[{reg}:{reg+1}]
            s_waitcnt lgkmcnt(0)""")
    def rlist(X):
        rd = [f"ds_read_b128 v[{RAW0}:{RAW0+3}], v12",
              f"ds_read_b128 v[{RAW0+4}:{RAW0+7}], v13",
              f"ds_read_b128 v[{RAW1[X]}:{RAW1[X]+3}], v12 offset:4096",
              f"ds_read_b128 v[{RAW1[X]+4}:{RAW1[X]+7}], v13 offset:4096"]
        if not REGZS:
            rd.append(f"ds_read_b32 v{ZD[X]}, v4")
        for gt in range(6):
            a_ = 16 if gt % 2 == 0 else 17
            off = 64 * (gt // 2)
            rd.append(f"ds_read_b64_tr_b16 v[{B[X]+4*gt}:{B[X]+4*gt+1}], v{a_} offset:{off}")
            rd.append(f"ds_read_b64_tr_b16 v[{B[X]+4*gt+2}:{B[X]+4*gt+3}], v{a_} offset:{off+768}")
        return rd
    def comp(f, X):
        R = RAW0 if f == 0 else RAW1[X]
        return dequant_ops(R, ZD[X], NZ, SC, P, A) + ["s_nop 1"] + \
            [f"v_mfma_f32_16x16x32_bf16 v[{ACC+24*f+4*gt}:{ACC+24*f+4*gt+3}], v[{A}:{A+3}], v[{B[X]+4*gt}:{B[X]+4*gt+3}], v[{ACC+24*f+4*gt}:{ACC+24*f+4*gt+3}]" for gt in range(6)]
    def mix(rd, cp):
        if OPT['rdfirst']:
            for r in rd: e(r)
            for op in cp: e(op)
            return
        i = 0
        for j, op in enumerate(cp):
            if i < len(rd) and j % 2 == 0:
                e(rd[i]); i += 1
            e(op)
        assert i == len(rd)
    if DIAG:
        e("s_mov_b32 s84, 0\ns_mov_b32 s85, 0")
    def unit(X, tag):
        e("s_barrier")
        tmr(80)
        e("""v_add_u32 v12, s30, v5
        v_add_u32 v13, s30, v6
        v_add_u32 v16, s30, v10
        v_add_u32 v17, s30, v11""")
        cp = comp(1, 1 - X)
        if REGZS:
            zr = [f"ds_read_b128 v[{NZ+4*i}:{NZ+4*i+3}], v9 offset:{16*i}" for i in range(4)]
            cp = cp[:40] + zr + cp[40:]
        mix(rlist(X), cp)
        e(f"""v_add_u32 v4, 1024, v4
        v_add_u32 v9, 1024, v9
        s_add_u32 s30, s30, {2*T_STAGE}
        s_cmp_ge_u32 s30, {T_S*T_STAGE}
        s_cselect_b32 s51, {T_S*T_STAGE}, 0
        s_sub_u32 s30, s30, s51
        s_waitcnt lgkmcnt(0)""")
        tmr(82)
        if DIAG:
            e("s_sub_u32 s82, s82, s80\ns_add_u32 s84, s84, s82")
        e("s_barrier")
        tmr(80)
        if OPT['touch']:
            e("s_add_u32 s25, s25, 2")
            tcheck(e, L + tag)
        for op in comp(0, X):
            e(op)
        tmr(82)
        if DIAG:
            e("s_sub_u32 s82, s82, s80\ns_add_u32 s85, s85, s82")
    e.label(f"{L}_loop")
    unit(0, "la")
    unit(1, "lb")
    e(f"""s_sub_u32 s31, s31, 1
    s_cmp_lg_u32 s31, 0
    s_cbranch_scc1 {L}_loop""")
    if par == 0:
        e("s_barrier")
    for op in comp(1, 1):
        e(op)
    stamp(e, 2)
    e(f"""s_mul_i32 s51, s56, 49152
    s_mul_i32 s52, s57, 12288
    s_add_u32 s51, s51, s52
    s_add_u32 s51, s51, {24576*par}
    v_lshlrev_b32 v15, 4, v0
    v_add_u32 v14, s51, v15
    s_mul_i32 s51, s56, 49152
    v_add_u32 v13, s51, v15
    s_nop 7""")
    for kh_ in range(2):
        j = kh_ + 2 * par
        if kh_ == 0:
            e(f"""s_cmp_eq_u32 s57, 1
            s_cbranch_scc1 {L}_ep1""")
        else:
            e.label(f"{L}_ep1")
        for f in range(2):
            for gt in range(6):
                if gt // 2 != j:
                    e(f"ds_write_b128 v14, v[{ACC+24*f+4*gt}:{ACC+24*f+4*gt+3}] offset:{(f*6+gt)*1024}")
        if j < 3:
            e(f"""s_lshl_b32 s51, s6, 1
            s_add_u32 s51, s51, s56
            s_mul_i32 s54, s7, 120
            s_add_u32 s54, s54, s51
            s_add_u32 s54, s54, {40*j}
            s_lshl_b32 s54, s54, 10
            s_add_u32 s54, s54, {T_WS}
            s_add_u32 s55, s54, 20480""")
        e("s_waitcnt lgkmcnt(0)")
        e("s_barrier")
        if j < 3:
            srcs = [x for x in range(4) if x != j]
            n = 0
            for g2 in range(2):
                gt = 2 * j + g2
                for f in range(2):
                    for si, x in enumerate(srcs):
                        r = 20 + ((g2 * 2 + f) * 3 + si) * 4
                        e(f"ds_read_b128 v[{r}:{r+3}], v13 offset:{x*12288 + (f*6+gt)*1024}")
            for g2 in range(2):
                gt = 2 * j + g2
                for f in range(2):
                    e(f"s_waitcnt lgkmcnt({12 - 3*(g2*2+f+1)})")
                    d = ACC + 24 * f + 4 * gt
                    for si in range(3):
                        r = 20 + ((g2 * 2 + f) * 3 + si) * 4
                        for i in range(4):
                            e(f"v_add_f32 v{d+i}, v{d+i}, v{r+i}")
                    e(f"v_cvt_pk_bf16_f32 v{72+4*g2+2*f}, v{d}, v{d+1}")
                    e(f"v_cvt_pk_bf16_f32 v{73+4*g2+2*f}, v{d+2}, v{d+3}")
                e(f"buffer_store_dwordx4 v[{72+4*g2}:{75+4*g2}], v15, s[16:19], s{54+g2} offen")
        if kh_ == 0:
            stamp_flush(e, 4, 0)
            e("s_endpgm")
    stamp_flush(e, 4, 0)
    e("s_endpgm")

def x_loader(e):
    e("""s_sub_u32 s50, s3, 8
    v_and_b32 v60, 15, v0
    v_lshrrev_b32 v61, 4, v0
    s_mov_b32 s52, 1280""")
    for i in range(4):
        e(f"""v_add_u32 v62, {4*i}, v61
        v_mul_lo_u32 v63, v62, s52
        v_or_b32 v62, {((i>>1)&1)<<2}, v61
        v_lshlrev_b32 v62, 1, v62
        v_xor_b32 v62, v60, v62
        v_lshl_add_u32 v{1+i}, v62, 4, v63""")
        if i:
            e(f"v_subrev_u32 v{1+i}, {1024*i}, v{1+i}")
    e(f"""s_mul_i32 s28, s50, 20480
    s_lshl_b32 s51, s6, 8
    s_add_u32 s28, s28, s51
    s_lshl_b32 s53, s50, 12
    s_add_u32 s53, s53, {X_U}""")
    for i in range(4):
        e(f"""v_lshrrev_b32 v62, 3, v0
        v_add_u32 v62, {8*i}, v62
        v_mul_lo_u32 v63, v62, s52
        v_add_u32 v62, {4*i}, v61
        v_and_b32 v62, 7, v62
        v_and_b32 v64, 7, v0
        v_xor_b32 v62, v64, v62
        v_lshl_add_u32 v{5+i}, v62, 4, v63""")
        if i:
            e(f"v_subrev_u32 v{5+i}, {1024*i}, v{5+i}")
    e(f"""s_lshl_b32 s27, s7, 7
    s_lshl_b32 s51, s50, 5
    s_add_u32 s27, s27, s51
    s_mul_i32 s27, s27, 1280
    s_lshl_b32 s54, s50, 12
    s_add_u32 s54, s54, {X_X}""")
    def issue():
        e("s_add_u32 m0, s29, s53")
        e("s_nop 0")
        for i in range(4):
            off = f" offset:{1024*i}" if i else ""
            e(f"buffer_load_dwordx4 v{1+i}, s[8:11], s28 offen{off} lds")
        e("s_add_u32 m0, s29, s54")
        e(f"s_add_u32 s28, s28, {64*1280}")
        for i in range(4):
            off = f" offset:{1024*i}" if i else ""
            e(f"buffer_load_dwordx4 v{5+i}, s[12:15], s27 offen{off} lds")
        e("s_add_u32 s27, s27, 128")
    loader_loop(e, "XL", X_NST, X_S, X_STAGE, 8, issue)

def x_consumer(e):
    L = "XC"
    if OPT['xtouch']:
        for rnd in range(2):
            e(f"""s_lshl_b32 s51, s5, 3
            s_add_u32 s51, s51, s3
            s_add_u32 s51, s51, {14*OPT['xfirst'] + 80*rnd}
            s_cmp_ge_u32 s51, 140
            s_cbranch_scc1 {L}_td{rnd}
            s_mul_i32 s52, s51, 147
            s_lshr_b32 s52, s52, 11         ; stage = p/14
            s_mul_i32 s53, s52, 14
            s_sub_u32 s51, s51, s53         ; u
            s_cmp_ge_u32 s51, 4
            s_cbranch_scc1 {L}_tu{rnd}
            s_lshl_b32 s51, s51, 6
            v_add_u32 v62, s51, v0          ; row
            s_mov_b32 s53, 1280
            v_mul_lo_u32 v62, v62, s53
            s_mul_i32 s53, s4, {256*1280}
            s_lshl_b32 s52, s52, 7
            s_add_u32 s53, s53, s52
            buffer_load_dword v{1+rnd}, v62, s[12:15], s53 offen
            s_branch {L}_td{rnd}""")
            e.label(f"{L}_tu{rnd}")
            e(f"""s_sub_u32 s51, s51, 4
            s_lshl_b32 s51, s51, 13
            v_lshlrev_b32 v62, 7, v0
            s_mul_i32 s52, s52, {64*1280}
            s_add_u32 s53, s51, s52
            buffer_load_dword v{1+rnd}, v62, s[8:11], s53 offen""")
            e.label(f"{L}_td{rnd}")
    e("""v_and_b32 v60, 15, v0          ; c
    v_lshrrev_b32 v61, 4, v0        ; q
    s_and_b32 s56, s3, 1
    s_lshr_b32 s57, s3, 1
    v_lshrrev_b32 v62, 2, v60        ; r
    v_and_b32 v63, 1, v61
    v_lshl_add_u32 v63, v63, 2, v62  ; g
    v_lshl_add_u32 v62, v61, 3, v62  ; 8q+r
    v_lshlrev_b32 v62, 8, v62
    v_and_b32 v64, 3, v60
    v_lshl_add_u32 v62, v64, 3, v62
    s_lshl_b32 s51, s56, 2""")
    for a in range(4):
        e(f"""s_add_u32 s58, s51, {a}
        v_xor_b32 v64, s58, v63
        v_lshl_add_u32 v{5+a}, v64, 5, v62""")
        if X_U:
            e(f"v_add_u32 v{5+a}, {X_U}, v{5+a}")
    e(f"""v_lshrrev_b32 v62, 1, v60
    v_xor_b32 v62, v62, v61
    v_lshlrev_b32 v62, 4, v62
    v_lshl_add_u32 v62, v60, 7, v62
    s_lshl_b32 s51, s57, 12
    s_add_u32 s51, s51, {X_X}
    v_add_u32 v9, s51, v62
    v_xor_b32 v10, 64, v9""")
    for i in range(32):
        e(f"v_mov_b32 v{96+i}, 0")
    e("s_mov_b32 s30, 0")
    e(f"s_mov_b32 s31, {X_NST}")
    stamp(e, 1)
    e("s_mov_b32 s24, s5")
    e("s_mov_b32 s25, 0")
    e.label(f"{L}_loop")
    e("s_barrier")
    if OPT['touch'] and OPT['tmode'] == 1:
        e(f"""s_and_b32 s51, s25, 7
        s_cmp_lg_u32 s51, s3
        s_cbranch_scc1 {L}_nt
        s_mul_i32 s26, s24, 205
        s_lshr_b32 s26, s26, 10
        s_mul_i32 s51, s26, 5
        s_sub_u32 s51, s24, s51
        s_add_u32 s51, s51, 8
        s_add_u32 s26, s26, {OPT['p0'] or 4}
        s_cmp_ge_u32 s26, 24
        s_cbranch_scc1 {L}_nt""")
        touch_setup(e, L + "x", 3, 20)
        e("buffer_load_dword v2, v3, s[52:55], s27 offen")
        e.label(f"{L}_nt")
        e("""s_add_u32 s24, s24, 10
        s_add_u32 s25, s25, 1""")
    for a in range(6):
        e(f"v_add_u32 v{11+a}, s30, v{5+a}")
    e(f"""s_add_u32 s30, s30, {X_STAGE}
    s_cmp_ge_u32 s30, {X_S*X_STAGE}
    s_cselect_b32 s30, 0, s30""")
    for kh in range(2):
        base = 32 + 32 * kh
        for a in range(4):
            e(f"ds_read_b64_tr_b16 v[{base+4*a}:{base+4*a+1}], v{11+a} offset:{8192*kh}")
            e(f"ds_read_b64_tr_b16 v[{base+4*a+2}:{base+4*a+3}], v{11+a} offset:{8192*kh+1024}")
        for mt in range(2):
            e(f"ds_read_b128 v[{base+16+4*mt}:{base+19+4*mt}], v{15+kh} offset:{2048*mt}")
    for kh in range(2):
        base = 32 + 32 * kh
        e(f"s_waitcnt lgkmcnt({10 if kh == 0 else 0})")
        for a in range(4):
            for mt in range(2):
                d = 96 + 8 * a + 4 * mt
                e(f"v_mfma_f32_16x16x32_bf16 v[{d}:{d+3}], v[{base+4*a}:{base+4*a+3}], v[{base+16+4*mt}:{base+19+4*mt}], v[{d}:{d+3}]")
    e(f"""s_sub_u32 s31, s31, 1
    s_cmp_lg_u32 s31, 0
    s_cbranch_scc1 {L}_loop""")
    stamp(e, 2)
    e(f"""s_lshl_b32 s51, s7, 3
    s_lshl_b32 s52, s57, 1
    s_add_u32 s51, s51, s52
    s_mul_i32 s51, s51, 20
    s_lshl_b32 s52, s6, 2
    s_add_u32 s51, s51, s52
    s_lshl_b32 s52, s56, 1
    s_add_u32 s51, s51, s52
    s_lshl_b32 s54, s51, 10
    s_add_u32 s54, s54, {XR_WS}
    s_add_u32 s55, s54, 20480
    v_lshlrev_b32 v62, 4, v0
    s_nop 7""")
    for mt in range(2):
        for kb in range(2):
            P = 32 + 8 * mt + 4 * kb
            d0 = 96 + 8 * (2 * kb) + 4 * mt
            d1 = 96 + 8 * (2 * kb + 1) + 4 * mt
            e(f"""v_cvt_pk_bf16_f32 v{P}, v{d0}, v{d0+1}
            v_cvt_pk_bf16_f32 v{P+1}, v{d0+2}, v{d0+3}
            v_cvt_pk_bf16_f32 v{P+2}, v{d1}, v{d1+1}
            v_cvt_pk_bf16_f32 v{P+3}, v{d1+2}, v{d1+3}""")
            so = "s54" if mt == 0 else "s55"
            off = f" offset:{1024*kb}" if kb else ""
            e(f"buffer_store_dwordx4 v[{P}:{P+3}], v62, s[16:19], {so} offen{off}")
    stamp_flush(e, 4, 0)
    e("s_endpgm")

def p1_kernel(e):
    e.raw(".p2align 8")
    e.raw(".type p1_kernel,@function")
    e.label("p1_kernel")
    e(f"""s_cmp_ge_u32 s2, {256 if OPT['touch'] and OPT['tmode'] == 1 else 240}
    s_cbranch_scc1 P1_end""")
    stamp(e, 0)
    e("""s_load_dwordx16 s[32:47], s[0:1], 0
    s_load_dwordx2 s[48:49], s[0:1], 64
    v_lshrrev_b32 v1, 6, v0
    v_and_b32 v0, 63, v0
    s_and_b32 s4, s2, 7
    s_lshr_b32 s5, s2, 3
    v_readfirstlane_b32 s3, v1
    s_waitcnt lgkmcnt(0)""")
    srd(e, 16, 48, WS_BYTES)
    P0 = OPT['p0']
    if OPT['touch'] and OPT['tmode'] == 1 and P0:
        e(f"""s_cmp_lt_u32 s3, 4
        s_cbranch_scc1 P0_done
        s_cmp_ge_u32 s3, {4 + P0 // 2}
        s_cbranch_scc1 P0_done
        s_sub_u32 s51, s3, 4
        s_lshl_b32 s51, s51, 5
        s_add_u32 s51, s51, s5
        s_lshr_b32 s26, s51, 4
        s_and_b32 s51, s51, 15""")
        touch_setup(e, "P0", 3, 20)
        e("buffer_load_dword v2, v3, s[52:55], s27 offen")
        e.label("P0_done")
    e("""s_cmp_ge_u32 s5, 30
    s_cbranch_scc1 P1_i
    s_cmp_ge_u32 s5, 20
    s_cbranch_scc1 P1_x""")
    e("""s_mul_i32 s7, s5, 52
    s_lshr_b32 s7, s7, 8          ; i/5
    s_mul_i32 s51, s7, 5
    s_sub_u32 s6, s5, s51         ; i%5
    s_and_b32 s51, s4, 1
    s_mul_i32 s51, s51, 5
    s_add_u32 s6, s6, s51
    s_lshr_b32 s51, s4, 1
    s_lshl_b32 s51, s51, 2
    s_add_u32 s7, s7, s51""")
    srd(e, 8, 34, 3932160)
    srd(e, 12, 42, 4718592)
    e("""s_cmp_ge_u32 s3, 8
    s_cbranch_scc1 P1_tl
    s_cmp_ge_u32 s3, 4
    s_cbranch_scc1 P1_tc1""")
    srd(e, 20, 38, 3072)
    srd(e, 24, 36, 3072)
    t_consumer(e, 0)
    e.label("P1_tc1")
    t_consumer(e, 1)
    e.label("P1_tl")
    t_loader(e)
    e.label("P1_x")
    e("""s_sub_u32 s5, s5, 20
    s_cmp_ge_u32 s5, 5
    s_cselect_b32 s51, 1, 0
    s_mul_i32 s52, s51, 5
    s_sub_u32 s6, s5, s52
    s_lshl_b32 s7, s4, 1
    s_add_u32 s7, s7, s51""")
    srd(e, 8, 40, 819200)
    srd(e, 12, 32, 2621440)
    e("""s_cmp_ge_u32 s3, 8
    s_cbranch_scc1 P1_xl""")
    x_consumer(e)
    e.label("P1_xl")
    x_loader(e)
    e.label("P1_i")
    idle_toucher(e)
    e.label("P1_end")
    e("s_endpgm")

Y_S = 5
Y_STAGE = 28672
Y_NST = 10
P2_LDS = Y_S * Y_STAGE

def p2_kernel(e):
    CUR_K[0] = 1
    e.raw(".p2align 8")
    e.raw(".type p2_kernel,@function")
    e.label("p2_kernel")
    e("""s_cmp_ge_u32 s2, 256
    s_cbranch_scc1 P2_end""")
    stamp(e, 0)
    e("""s_load_dwordx2 s[44:45], s[0:1], 48
    s_load_dwordx2 s[48:49], s[0:1], 64
    v_lshrrev_b32 v1, 6, v0
    v_and_b32 v0, 63, v0
    s_and_b32 s4, s2, 7
    s_lshr_b32 s5, s2, 3
    v_readfirstlane_b32 s3, v1
    v_lshlrev_b32 v1, 4, v0""")
    e("""s_and_b32 s6, s4, 3
    s_lshl_b32 s6, s6, 2
    s_and_b32 s51, s5, 3
    s_add_u32 s6, s6, s51
    s_lshr_b32 s7, s4, 2
    s_lshl_b32 s7, s7, 3
    s_lshr_b32 s51, s5, 2
    s_add_u32 s7, s7, s51
    s_cmp_ge_u32 s3, 4
    s_cbranch_scc0 P2_c""")
    e(f"""s_sub_u32 s50, s3, 4
    s_and_b32 s51, s50, 1
    s_lshr_b32 s52, s50, 1           ; kk
    s_mul_i32 s53, s52, 14336
    s_mul_i32 s55, s51, 3072
    s_add_u32 s54, s53, 6144
    s_add_u32 s53, s53, s55          ; T lds base
    s_lshl_b32 s55, s51, 12
    s_add_u32 s54, s54, s55          ; xr lds base
    s_mul_i32 s55, s51, 3
    s_mul_i32 s56, s7, 6
    s_add_u32 s55, s55, s56
    s_mul_i32 s55, s55, 20
    s_add_u32 s55, s55, s52
    s_lshl_b32 s28, s55, 10
    s_add_u32 s28, s28, {T_WS}
    s_lshl_b32 s55, s51, 2
    s_lshl_b32 s56, s6, 3
    s_add_u32 s55, s55, s56
    s_mul_i32 s55, s55, 20
    s_add_u32 s55, s55, s52
    s_lshl_b32 s27, s55, 10
    s_add_u32 s27, s27, {XR_WS}""")
    for i in range(1, 4):
        e(f"v_add_u32 v{1+i}, {19456*i}, v1")
    e("s_waitcnt lgkmcnt(0)")
    srd(e, 16, 48, WS_BYTES)
    def issue():
        e("s_add_u32 m0, s29, s53")
        e("s_nop 0")
        for i in range(3):
            off = f" offset:{1024*i}" if i else ""
            e(f"buffer_load_dwordx4 v{1+i}, s[16:19], s28 offen{off} lds")
        e("s_add_u32 m0, s29, s54")
        e("s_add_u32 s28, s28, 2048")
        for i in range(4):
            off = f" offset:{1024*i}" if i else ""
            e(f"buffer_load_dwordx4 v{1+i}, s[16:19], s27 offen{off} lds")
        e("s_add_u32 s27, s27, 2048")
    loader_loop(e, "YL", Y_NST, Y_S, Y_STAGE, 7, issue)
    e.label("P2_c")
    ACC = 64
    FB = [8, 112]
    for i in range(48):
        e(f"v_mov_b32 v{ACC+i}, 0")
    e("""s_lshl_b32 s51, s3, 11
    s_add_u32 s51, s51, 6144
    v_add_u32 v2, s51, v1
    s_waitcnt lgkmcnt(0)""")
    srd(e, 16, 48, WS_BYTES)
    srd(e, 8, 44, 6291456)
    e("s_mov_b32 s30, 0")

    def rlist(kk, b):
        l = []
        for mi in range(2):
            l.append(f"ds_read_b128 v[{b+24+4*mi}:{b+27+4*mi}], v4 offset:{kk*14336 + mi*1024}")
        for gt in range(6):
            l.append(f"ds_read_b128 v[{b+4*gt}:{b+4*gt+3}], v3 offset:{kk*14336 + gt*1024}")
        return l

    def block(b, rl):
        i = 0
        for gt in range(6):
            for mi in range(2):
                d = ACC + (gt * 2 + mi) * 4
                e(f"v_mfma_f32_16x16x32_bf16 v[{d}:{d+3}], v[{b+4*gt}:{b+4*gt+3}], v[{b+24+4*mi}:{b+27+4*mi}], v[{d}:{d+3}]")
                if i < len(rl):
                    e(rl[i]); i += 1

    def newslot():
        e(f"""v_add_u32 v3, s30, v1
        v_add_u32 v4, s30, v2
        s_add_u32 s30, s30, {Y_STAGE}
        s_cmp_ge_u32 s30, {Y_S*Y_STAGE}
        s_cselect_b32 s30, 0, s30""")

    e("s_barrier")
    stamp(e, 1)
    newslot()
    for r in rlist(0, FB[0]):
        e(r)
    e(f"s_mov_b32 s31, {Y_NST-1}")
    e.label("P2_loop")
    e("s_waitcnt lgkmcnt(0)")
    block(FB[0], rlist(1, FB[1]))
    e("s_waitcnt lgkmcnt(0)")
    e("s_barrier")
    newslot()
    block(FB[1], rlist(0, FB[0]))
    e("""s_sub_u32 s31, s31, 1
    s_cmp_lg_u32 s31, 0
    s_cbranch_scc1 P2_loop""")
    e("s_waitcnt lgkmcnt(0)")
    block(FB[0], rlist(1, FB[1]))
    e("s_waitcnt lgkmcnt(0)")
    block(FB[1], [])
    stamp(e, 2)
    e("""v_and_b32 v3, 15, v0
    v_lshrrev_b32 v4, 4, v0
    s_mov_b32 s52, 3072
    v_mul_lo_u32 v3, v3, s52
    v_and_b32 v5, 1, v4
    v_lshrrev_b32 v4, 1, v4
    v_lshlrev_b32 v5, 5, v5
    v_lshl_add_u32 v5, v4, 4, v5
    v_add_u32 v3, v3, v5
    s_lshl_b32 s51, s6, 7
    s_lshl_b32 s52, s3, 5
    s_add_u32 s51, s51, s52
    s_mul_i32 s54, s51, 3072
    s_mul_i32 s52, s7, 192
    s_add_u32 s54, s54, s52
    s_add_u32 s55, s54, 49152
    s_nop 7""")
    for mi in range(2):
        for a in range(3):
            P = 8 + (mi * 3 + a) * 4
            dA = ACC + ((2 * a) * 2 + mi) * 4
            dB = ACC + ((2 * a + 1) * 2 + mi) * 4
            e(f"""v_cvt_pk_bf16_f32 v{P}, v{dA}, v{dA+1}
            v_cvt_pk_bf16_f32 v{P+1}, v{dA+2}, v{dA+3}
            v_cvt_pk_bf16_f32 v{P+2}, v{dB}, v{dB+1}
            v_cvt_pk_bf16_f32 v{P+3}, v{dB+2}, v{dB+3}
            s_nop 1
            v_permlane16_swap_b32 v{P}, v{P+2}
            v_permlane16_swap_b32 v{P+1}, v{P+3}""")
            so = "s54" if mi == 0 else "s55"
            off = f" offset:{64*a}" if a else ""
            e("s_nop 1")
            e(f"buffer_store_dwordx4 v[{P}:{P+3}], v3, s[8:11], {so} offen{off}")
    stamp_flush(e, 4, 1)
    e.label("P2_end")
    e("s_endpgm")

def main(out):
    e = E()
    e.raw(HEADER.rstrip('\n'))
    e.raw(f"; @launch kernel=p1_kernel grid=({256 if OPT['touch'] and OPT['tmode'] == 1 else 240},1,1) block=(768,1,1) lds={P1_LDS}")
    e.raw(f"; @launch kernel=p2_kernel grid=(256,1,1) block=(512,1,1) lds={P2_LDS}")
    e.raw('.amdgcn_target "amdgcn-amd-amdhsa--gfx950"')
    e.raw(".text")
    e.raw(".globl p1_kernel")
    e.raw(".globl p2_kernel")
    p1_kernel(e)
    p2_kernel(e)
    e.raw('.section .rodata,"a"')
    for name, vg, acc in (("p1_kernel", 168, 168), ("p2_kernel", 144, 144)):
        e.raw(".p2align 6")
        e.raw(f""".amdhsa_kernel {name}
  .amdhsa_next_free_vgpr {vg}
  .amdhsa_next_free_sgpr 96
  .amdhsa_accum_offset {acc}
  .amdhsa_group_segment_fixed_size 0
  .amdhsa_kernarg_size 72
  .amdhsa_user_sgpr_count 2
  .amdhsa_user_sgpr_kernarg_segment_ptr 1
  .amdhsa_system_sgpr_workgroup_id_x 1
  .amdhsa_float_denorm_mode_32 3
.end_amdhsa_kernel""")
    open(out, 'w').write(e.text())

if __name__ == '__main__':
    for a in sys.argv[2:]:
        if a == 'diag':
            DIAG = True
        elif '=' in a:
            k, v = a.split('=')
            OPT[k] = int(v)
    main(sys.argv[1] if len(sys.argv) > 1 else 'standalone__weight_only_int_quip__prompt.s')
```

```python
import sys

HEADER = open('standalone__weight_only_int_quip__prompt.s.ref').read().split('; Override launch')[0]

XR_WS = 0
T_WS = 2621440
WS_BYTES = 268435456
OPT = dict(ldprio=0, noload=0, nocomp=0, touch=1, tdelta=12, xdelta=6, nt=0, nttouch=0, xtouch=0, samek=0, dbg=0, drop=0, split=16, zdpp=1, sdpp=1, rdfirst=1, inner=0, tmode=1, protouch=1, p0=8, xfirst=1, st1=0, st2=0, tlead=4)

CUR_K = [0]
class E:
    def __init__(self):
        self.l = []
    def __call__(self, s):
        for line in s.strip('\n').split('\n'):
            t = line.strip()
            if OPT['noload'] and t.endswith(' lds'): continue
            if t.startswith('buffer_store') and not DIAG:
                pol = {0: '', 1: ' sc1', 2: ' nt', 3: ' sc0 sc1', 4: ' sc1 nt'}[OPT['st1'] if CUR_K[0] == 0 else OPT['st2']]
                t = t + pol
            if (OPT['drop'] & 1) and t.startswith('ds_read_b64_tr'): continue
            if (OPT['drop'] & 2) and t.endswith('; DQ'): continue
            if (OPT['drop'] & 8) and (t.startswith('ds_read_b128') or t.startswith('ds_read_b32')): continue
            if (OPT['drop'] & 4) and t.startswith('v_mfma'): continue
            if OPT['samek'] and (t.startswith('s_add_u32 s28, s28,') or t.startswith('s_add_u32 s27, s27,')): continue
            if OPT['nt'] and t.endswith(' lds') and ('s[8:11]' in t or 's[12:15]' in t): t = t[:-4] + ' nt lds'
            if OPT['nttouch'] and t.startswith('buffer_load_dword v'): t = t + ' nt'
            if OPT['nocomp'] and (t.startswith('ds_read') or t.startswith('v_mfma') or '_dpp' in t or t.startswith('v_cvt')): continue
            self.l.append('    ' + t)
    def label(self, s):
        self.l.append(s + ':')
    def raw(self, s):
        self.l.append(s)
    def text(self):
        return '\n'.join(self.l) + '\n'

DIAG = False
STAMP_WS = 64 << 20
def dbg_entry(e):
    if not OPT['dbg']: return
    e("""s_memrealtime s[90:91]
    s_memtime s[86:87]
    s_load_dwordx2 s[92:93], s[0:1], 56
    s_waitcnt lgkmcnt(0)
    s_mov_b32 s88, s92
    s_and_b32 s89, s93, 0xffff
    s_not_b32 s94, s90
    s_mov_b32 s90, 256
    s_mov_b32 s91, 0x00020000""")
DBGN = [0]
DBG_WS = 100 << 20
def dbg_exit(e, kern):
    if not OPT['dbg']: return
    DBGN[0] += 1
    lab = f"DBGX{DBGN[0]}"
    e(f"""s_and_b32 s95, s3, 3
    s_cmp_lg_u32 s95, 0
    s_cbranch_scc1 {lab}
    s_waitcnt vmcnt(0)
    s_memrealtime s[92:93]
    s_waitcnt lgkmcnt(0)
    s_not_b32 s94, s94
    v_mov_b32 v2, 0
    v_mov_b32 v4, s94
    v_mov_b32 v5, s92
    s_lshl_b32 s95, s2, 4
    s_lshl_b32 s93, s3, 1
    s_add_u32 s95, s95, s93
    s_add_u32 s95, s95, {DBG_WS + kern * 8192}
    buffer_store_dwordx2 v[4:5], v2, s[16:19], s95 offen""")
    if kern == 1:
        e(f"""s_or_b32 s95, s2, s3
        s_cmp_lg_u32 s95, 0
        s_cbranch_scc1 {lab}
        v_lshlrev_b32 v2, 4, v0""")
        for i in range(4):
            if i == 3:
                e("v_min_u32 v2, 752, v2")
            e(f"s_mov_b32 s95, {DBG_WS + i * 1024}")
            e(f"buffer_load_dwordx4 v[{8+4*i}:{11+4*i}], v2, s[16:19], s95 offen")
        e("s_waitcnt vmcnt(0)")
        for i in range(4):
            e(f"v_max_u32 v{9+4*i}, v{9+4*i}, v{11+4*i}")
            e(f"v_sub_u32 v{10+4*i}, v{9+4*i}, v{8+4*i}")
        e("""v_min_u32 v24, v8, v12
        v_min_u32 v24, v24, v16
        v_min_u32 v24, v24, v20
        v_max_u32 v25, v8, v12
        v_max_u32 v25, v25, v16
        v_max_u32 v25, v25, v20
        v_min_u32 v26, v9, v13
        v_min_u32 v26, v26, v17
        v_min_u32 v26, v26, v21
        v_max_u32 v27, v9, v13
        v_max_u32 v27, v27, v17
        v_max_u32 v27, v27, v21
        v_max_u32 v28, v10, v14
        v_max_u32 v28, v28, v18
        v_max_u32 v28, v28, v22
        s_mov_b32 s70, -1
        s_mov_b32 s71, 0
        s_mov_b32 s72, -1
        s_mov_b32 s73, 0
        s_mov_b32 s74, 0
        s_nop 1""")
        for l in range(64):
            e(f"""v_readlane_b32 s75, v24, {l}
            v_readlane_b32 s76, v25, {l}
            v_readlane_b32 s77, v26, {l}
            v_readlane_b32 s78, v27, {l}
            v_readlane_b32 s79, v28, {l}
            s_nop 3
            s_min_u32 s70, s70, s75
            s_max_u32 s71, s71, s76
            s_min_u32 s72, s72, s77
            s_max_u32 s73, s73, s78
            s_max_u32 s74, s74, s79""")
        e("""v_mov_b32 v2, 0
        v_mov_b32 v4, s70
        v_mov_b32 v5, s71
        v_mov_b32 v6, s72
        v_mov_b32 v7, s73
        buffer_store_dwordx4 v[4:7], v2, s[88:91], 0 offen
        v_mov_b32 v8, s74
        v_mov_b32 v9, s94
        v_mov_b32 v10, s92
        v_mov_b32 v11, 0
        buffer_store_dwordx4 v[8:11], v2, s[88:91], 0 offen offset:16""")
    e.label(lab)

def stamp(e, i):
    if i == 0 and OPT['dbg']: dbg_entry(e)
    if not DIAG: return
    e(f"""s_memtime s[{64+4*i}:{65+4*i}]
    s_memrealtime s[{66+4*i}:{67+4*i}]
    s_waitcnt lgkmcnt(0)""")
def stamp_flush(e, n, kern):
    if OPT['dbg']: dbg_exit(e, kern)
    if not DIAG: return
    e(f"""s_waitcnt vmcnt(0)""")
    stamp(e, n - 1)
    e(f"""s_lshl_b32 s60, s2, 4
    s_add_u32 s60, s60, s3
    s_lshl_b32 s60, s60, 7
    s_add_u32 s60, s60, {STAMP_WS + kern * (1 << 20)}
    v_mov_b32 v2, 0
    s_getreg_b32 s61, hwreg(HW_REG_XCC_ID)
    s_getreg_b32 s62, hwreg(HW_REG_HW_ID)
    v_mov_b32 v4, s61
    v_mov_b32 v5, s62
    buffer_store_dwordx2 v[4:5], v2, s[16:19], s60 offen offset:112
    s_waitcnt vmcnt(0)
    v_mov_b32 v4, s84
    v_mov_b32 v5, s85
    buffer_store_dwordx2 v[4:5], v2, s[16:19], s60 offen offset:96
    s_waitcnt vmcnt(0)""")
    for i in range(n):
        e(f"""v_mov_b32 v4, s{64+4*i}
        v_mov_b32 v5, s{65+4*i}
        v_mov_b32 v6, s{66+4*i}
        v_mov_b32 v7, s{67+4*i}
        buffer_store_dwordx4 v[4:7], v2, s[16:19], s60 offen offset:{16*i}
        s_waitcnt vmcnt(0)""")

def srd(e, d, lo, nbytes):
    e(f"""s_mov_b32 s{d}, s{lo}
    s_and_b32 s{d+1}, s{lo+1}, 0xffff
    s_mov_b32 s{d+2}, {nbytes}
    s_mov_b32 s{d+3}, 0x00020000""")

T_S = 5
T_STAGE = 28672
T_QW = 0
T_V = 16384
T_ZS = T_S * T_STAGE
T_NST = 24
X_S = 4
X_STAGE = 32768
X_U = 0
X_X = 16384
X_NST = 10
P1_LDS = T_ZS + 12288

def loader_loop(e, L, nst, RING, stage_bytes, npieces, issue, lead=None):
    S = (lead + 1) if lead else RING
    if OPT['ldprio']:
        e(f"s_setprio {OPT['ldprio']}")
    def rec():
        if DIAG:
            e("""s_memtime s[62:63]
            s_waitcnt lgkmcnt(0)
            v_mov_b32 v21, s62
            v_cmp_eq_u32 vcc, s61, v0
            s_nop 1
            v_cndmask_b32 v20, v20, v21, vcc
            s_add_u32 s61, s61, 1""")
    def adv():
        e(f"""s_add_u32 s29, s29, {stage_bytes}
        s_cmp_ge_u32 s29, {RING*stage_bytes}
        s_cselect_b32 s29, 0, s29""")
    e("s_mov_b32 s29, 0")
    if DIAG:
        e("s_mov_b32 s61, 0\nv_mov_b32 v20, 0")
        rec()
    issued = 0
    first = min(2, S - 1)
    for _ in range(first):
        issue(); adv(); issued += 1
    s = 0
    while issued < s + S - 1:
        e(f"s_waitcnt vmcnt({npieces*(issued-1-s)})")
        e("s_barrier")
        rec()
        for _ in range(2):
            if issued < s + S:
                issue(); adv(); issued += 1
        s += 1
    nloop = nst - issued
    e(f"s_mov_b32 s31, {nloop}")
    e.label(f"{L}_ldloop")
    e(f"s_waitcnt vmcnt({npieces*(S-2)})")
    e("s_barrier")
    rec()
    issue()
    adv()
    e(f"""s_sub_u32 s31, s31, 1
    s_cmp_lg_u32 s31, 0
    s_cbranch_scc1 {L}_ldloop""")
    s += nloop
    for ss in range(s, nst):
        e(f"s_waitcnt vmcnt({npieces*(nst-1-ss)})")
        e("s_barrier")
        rec()
    if DIAG:
        kern = 1 if L == "YL" else 0
        e(f"""s_lshl_b32 s60, s2, 2
        s_add_u32 s60, s60, s50
        s_lshl_b32 s60, s60, 8
        s_add_u32 s60, s60, {STAMP_WS + (4 + kern) * (1 << 20)}
        v_lshlrev_b32 v21, 2, v0
        buffer_store_dword v20, v21, s[16:19], s60 offen""")
    e("s_endpgm")

def dequant_ops(R, ZD, NZ, SC, P, A):
    ops = []
    for i in range(8):
        ops.append(f"v_cvt_f32_i32 v{R+i}, v{R+i}")
    for i in range(8):
        if OPT['zdpp']:
            ops.append(f"v_add_f32_dpp v{R+i}, v{ZD}, v{R+i} row_newbcast:{i} row_mask:0xf bank_mask:0xf")
        else:
            ops.append(f"v_add_f32 v{R+i}, v{NZ+i}, v{R+i}")
    for i in range(4):
        ops.append(f"v_cvt_pk_bf16_f32 v{P+i}, v{R+2*i}, v{R+2*i+1}")
    for i in range(4):
        ops.append(f"v_lshlrev_b32 v{R+2*i}, 16, v{P+i}")
        ops.append(f"v_and_b32 v{R+2*i+1}, 0xffff0000, v{P+i}")
    for i in range(8):
        if OPT['sdpp']:
            ops.append(f"v_mul_f32_dpp v{R+i}, v{ZD}, v{R+i} row_newbcast:{8+i} row_mask:0xf bank_mask:0xf")
        else:
            ops.append(f"v_mul_f32 v{R+i}, v{SC+i}, v{R+i}")
    for i in range(4):
        ops.append(f"v_cvt_pk_bf16_f32 v{A+i}, v{R+2*i}, v{R+2*i+1}")
    return [o + ' ; DQ' for o in ops]

def t_loader(e):
    e("""s_sub_u32 s50, s3, 8
    v_and_b32 v60, 15, v0
    v_lshrrev_b32 v61, 4, v0
    s_mov_b32 s52, 6144""")
    for i in range(4):
        e(f"""v_add_u32 v62, {4*i}, v61
        v_mul_lo_u32 v63, v62, s52
        v_xor_b32 v62, v60, v62
        v_lshl_add_u32 v{1+i}, v62, 4, v63""")
        if i:
            e(f"v_subrev_u32 v{1+i}, {1024*i}, v{1+i}")
    e(f"""s_lshl_b32 s28, s6, 6
    s_lshl_b32 s51, s50, 4
    s_add_u32 s28, s28, s51
    s_mul_i32 s28, s28, 6144
    s_lshl_b32 s53, s50, 12
    s_add_u32 s53, s53, {T_QW}
    s_mov_b32 s52, 3072""")
    for j in range(3):
        e(f"""v_add_u32 v62, {64*j}, v0
        v_mul_u32_u24 v63, 171, v62
        v_lshrrev_b32 v63, 11, v63
        v_mul_u32_u24 v64, 12, v63
        v_sub_u32 v62, v62, v64
        v_lshrrev_b32 v64, 3, v63
        v_and_b32 v64, 1, v64
        v_lshlrev_b32 v64, 1, v64
        v_xor_b32 v62, v62, v64
        v_mul_lo_u32 v63, v63, s52
        v_lshl_add_u32 v{5+j}, v62, 4, v63""")
        if j:
            e(f"v_subrev_u32 v{5+j}, {1024*j}, v{5+j}")
    e(f"""s_mul_i32 s27, s50, 49152
    s_mul_i32 s51, s7, 192
    s_add_u32 s27, s27, s51
    s_mul_i32 s54, s50, 3072
    s_add_u32 s54, s54, {T_V}""")
    def issue():
        e("s_add_u32 m0, s29, s53")
        e("s_nop 0")
        for i in range(4):
            off = f" offset:{1024*i}" if i else ""
            e(f"buffer_load_dwordx4 v{1+i}, s[8:11], s28 offen{off} lds")
        e("s_add_u32 m0, s29, s54")
        e("s_add_u32 s28, s28, 256")
        for j in range(3):
            off = f" offset:{1024*j}" if j else ""
            e(f"buffer_load_dwordx4 v{5+j}, s[12:15], s27 offen{off} lds")
        e(f"s_add_u32 s27, s27, {64*3072}")
    loader_loop(e, "TL", T_NST, T_S, T_STAGE, 7, issue, lead=OPT["tlead"])

def touch_setup(e, tag, vo, t):
    e(f"""s_cmp_ge_u32 s51, 10
    s_cbranch_scc1 {tag}_tv
    s_lshl_b32 s51, s51, 6
    v_add_u32 v{t}, s51, v0
    v_lshrrev_b32 v{t+1}, 1, v{t}
    v_and_b32 v{t}, 1, v{t}
    s_mov_b32 s53, 6144
    v_mul_lo_u32 v{t+1}, v{t+1}, s53
    v_lshl_add_u32 v{vo}, v{t}, 7, v{t+1}
    s_and_b32 s27, s4, 1
    s_mul_i32 s27, s27, {320*6144}
    s_lshl_b32 s52, s26, 8
    s_add_u32 s27, s27, s52
    s_mov_b32 s52, s34
    s_and_b32 s53, s35, 0xffff
    s_mov_b32 s54, 3932160
    s_mov_b32 s55, 0x00020000
    s_branch {tag}_td""")
    e.label(f"{tag}_tv")
    e(f"""s_sub_u32 s51, s51, 10
    s_lshl_b32 s51, s51, 6
    v_add_u32 v{t}, s51, v0
    v_mul_u32_u24 v{t+1}, 171, v{t}
    v_lshrrev_b32 v{t+1}, 10, v{t+1}
    v_mul_u32_u24 v{t+2}, 6, v{t+1}
    v_sub_u32 v{t}, v{t}, v{t+2}
    s_mov_b32 s53, 3072
    v_mul_lo_u32 v{t+1}, v{t+1}, s53
    v_lshl_add_u32 v{vo}, v{t}, 7, v{t+1}
    s_lshr_b32 s27, s4, 1
    s_mul_i32 s27, s27, 768
    s_mul_i32 s52, s26, {64*3072}
    s_add_u32 s27, s27, s52
    s_mov_b32 s52, s42
    s_and_b32 s53, s43, 0xffff
    s_mov_b32 s54, 4718592
    s_mov_b32 s55, 0x00020000""")
    e.label(f"{tag}_td")

def idle_toucher(e):
    e("""s_cmp_lg_u32 s3, 0
    s_cbranch_scc1 P1_end
    s_sub_u32 s24, s5, 30""")
    e.label("IT_loop")
    e("""s_mul_i32 s26, s24, 171
    s_lshr_b32 s26, s26, 9
    s_mul_i32 s51, s26, 3
    s_sub_u32 s51, s24, s51
    s_add_u32 s51, s51, 13
    s_add_u32 s26, s26, """ + str(OPT['p0'] or 4))
    touch_setup(e, "IT", 3, 20)
    e("""buffer_load_dword v2, v3, s[52:55], s27 offen
    s_add_u32 s24, s24, 2
    s_cmp_lt_u32 s24, """ + str(3 * (24 - (OPT['p0'] or 4))) + """
    s_cbranch_scc1 IT_loop
    s_endpgm""")

def tcheck(e, tag, step=None):
    if step is None:
        step = 100 if OPT['tmode'] == 1 else 10
    e(f"""s_cmp_gt_u32 s26, s25
    s_cbranch_scc1 {tag}_nt
    s_cmp_ge_u32 s26, {T_NST}
    s_cbranch_scc1 {tag}_nt
    buffer_load_dword v2, v3, s[52:55], s27 offen
    s_add_u32 s26, s26, {step}
    s_add_u32 s27, s27, s28""")
    e.label(f"{tag}_nt")

def t_consumer(e, par):
    L = f"TC{par}"
    e("""s_and_b32 s50, s3, 3
    v_and_b32 v60, 15, v0          ; c
    v_lshrrev_b32 v61, 4, v0        ; q""")
    if par == 0:
        e(f"""s_cmp_ge_u32 s3, 3
        s_cbranch_scc1 {L}_nozs
        s_lshl_b32 s51, s3, 10
        v_lshlrev_b32 v62, 4, v0
        v_add_u32 v62, s51, v62
        buffer_load_dwordx4 v[64:67], v62, s[20:23], 0 offen
        buffer_load_dwordx4 v[68:71], v62, s[24:27], 0 offen
        s_waitcnt vmcnt(0)""")
        for i in range(4):
            e(f"""v_lshlrev_b32 v{16+2*i}, 16, v{64+i}
            v_and_b32 v{17+2*i}, 0xffff0000, v{64+i}
            v_lshlrev_b32 v{24+2*i}, 16, v{68+i}
            v_and_b32 v{25+2*i}, 0xffff0000, v{68+i}""")
        for i in range(8):
            e(f"v_xor_b32 v{16+i}, 0x80000000, v{16+i}")
        e(f"""s_lshl_b32 s51, s3, 12
        v_lshlrev_b32 v62, 6, v0
        v_add_u32 v62, s51, v62
        v_add_u32 v62, {T_ZS}, v62
        ds_write_b128 v62, v[16:19]
        ds_write_b128 v62, v[20:23] offset:16
        ds_write_b128 v62, v[24:27] offset:32
        ds_write_b128 v62, v[28:31] offset:48
        s_waitcnt lgkmcnt(0)""")
        e.label(f"{L}_nozs")
    if OPT['touch'] and OPT['tmode'] == 1:
        e(f"""s_add_u32 s26, s5, {OPT['p0'] or 4}
        s_mov_b32 s51, s3""")
        touch_setup(e, L, 3, 62)
        e(f"""s_mov_b32 s28, 0
        s_mov_b32 s25, {OPT['tdelta'] + par}""")
        if OPT['protouch']:
            tcheck(e, L + "p0", 100)
    elif OPT['touch']:
            e(f"""s_lshl_b32 s51, s5, 3
            s_add_u32 s51, s51, s3
            s_lshr_b32 s26, s51, 4          ; sigma0
            s_and_b32 s51, s51, 15          ; u
            s_cmp_ge_u32 s51, 10
            s_cbranch_scc1 {L}_tv
            s_lshl_b32 s51, s51, 6
            v_add_u32 v62, s51, v0          ; t
            v_lshrrev_b32 v63, 1, v62       ; row
            v_and_b32 v62, 1, v62
            s_mov_b32 s53, 6144
            v_mul_lo_u32 v63, v63, s53
            v_lshl_add_u32 v3, v62, 7, v63
            s_and_b32 s27, s4, 1
            s_mul_i32 s27, s27, {320*6144}
            s_lshl_b32 s52, s26, 8
            s_add_u32 s27, s27, s52
            s_mov_b32 s28, 2560
            s_mov_b32 s52, s34
            s_and_b32 s53, s35, 0xffff
            s_mov_b32 s54, 3932160
            s_mov_b32 s55, 0x00020000
            s_branch {L}_td""")
            e.label(f"{L}_tv")
            e(f"""s_sub_u32 s51, s51, 10
            s_lshl_b32 s51, s51, 6
            v_add_u32 v62, s51, v0          ; t in 0..383
            v_mul_u32_u24 v63, 171, v62
            v_lshrrev_b32 v63, 10, v63      ; row = t/6
            v_mul_u32_u24 v64, 6, v63
            v_sub_u32 v62, v62, v64
            s_mov_b32 s53, 3072
            v_mul_lo_u32 v63, v63, s53
            v_lshl_add_u32 v3, v62, 7, v63
            s_lshr_b32 s27, s4, 1
            s_mul_i32 s27, s27, 768
            s_mul_i32 s52, s26, {64*3072}
            s_add_u32 s27, s27, s52
            s_mov_b32 s28, {640*3072}
            s_mov_b32 s52, s42
            s_and_b32 s53, s43, 0xffff
            s_mov_b32 s54, 4718592
            s_mov_b32 s55, 0x00020000""")
            e.label(f"{L}_td")
            e(f"""s_cmp_ge_u32 s26, {T_S-1}
            s_cbranch_scc1 {L}_t0
            s_add_u32 s26, s26, 10
            s_add_u32 s27, s27, s28""")
            e.label(f"{L}_t0")
            e(f"s_mov_b32 s25, {OPT['tdelta'] + par}      ; s + delta")
            tcheck(e, L + "p0")
            tcheck(e, L + "p1")
    e(f"""s_and_b32 s56, s3, 1            ; eh
    s_lshr_b32 s57, s3, 1
    s_and_b32 s57, s57, 1           ; kh
    s_lshl_b32 s51, s57, 3
    v_lshlrev_b32 v62, 1, v61
    v_add_u32 v62, s51, v62
    v_xor_b32 v62, v62, v60
    v_lshlrev_b32 v62, 4, v62
    v_lshl_add_u32 v62, v60, 8, v62
    s_lshl_b32 s51, s56, 13
    s_add_u32 s51, s51, {T_QW}
    v_add_u32 v5, s51, v62
    v_xor_b32 v6, 16, v5
    v_lshlrev_b32 v4, 2, v0
    s_lshl_b32 s51, s57, 8
    s_add_u32 s51, s51, {T_ZS + 512*par}
    v_add_u32 v4, s51, v4
    v_lshlrev_b32 v9, 6, v61
    v_add_u32 v9, s51, v9""")
    e(f"""v_lshrrev_b32 v62, 2, v60        ; r
    v_lshl_add_u32 v62, v61, 3, v62  ; 8q + r
    v_mul_u32_u24 v62, 192, v62
    v_and_b32 v63, 3, v60
    v_lshl_add_u32 v62, v63, 3, v62
    s_mul_i32 s51, s57, {32*192}
    s_add_u32 s51, s51, {T_V}
    v_add_u32 v62, s51, v62
    v_and_b32 v63, 1, v61
    v_lshl_add_u32 v10, v63, 5, v62
    v_xor_b32 v63, 1, v63
    v_lshl_add_u32 v11, v63, 5, v62""")
    RAW0 = 18
    RAW1 = [26, 34]
    ZD = [42, 43]
    P = 44
    A = 48
    B = [52, 76]
    ACC = 100
    NZ, SC = 148, 156
    REGZS = not OPT['zdpp']
    if REGZS:
        for i in range(16):
            e(f"v_mov_b32 v{NZ+i}, 0")
    for i in range(48):
        e(f"v_mov_b32 v{ACC+i}, 0")
    for i in range(24):
        e(f"v_mov_b32 v{B[1]+i}, 0")
    for i in range(8):
        e(f"v_mov_b32 v{RAW1[1]+i}, 0")
    e(f"v_mov_b32 v{ZD[1]}, 0")
    e(f"s_mov_b32 s30, {T_STAGE*par}")
    e("s_mov_b32 s31, 6")
    stamp(e, 1)
    if par == 1:
        e("s_barrier")
    def tmr(reg):
        if DIAG and OPT['inner']:
            e(f"""s_memtime s[{reg}:{reg+1}]
            s_waitcnt lgkmcnt(0)""")
    def rlist(X):
        rd = [f"ds_read_b128 v[{RAW0}:{RAW0+3}], v12",
              f"ds_read_b128 v[{RAW0+4}:{RAW0+7}], v13",
              f"ds_read_b128 v[{RAW1[X]}:{RAW1[X]+3}], v12 offset:4096",
              f"ds_read_b128 v[{RAW1[X]+4}:{RAW1[X]+7}], v13 offset:4096"]
        if not REGZS:
            rd.append(f"ds_read_b32 v{ZD[X]}, v4")
        for gt in range(6):
            a_ = 16 if gt % 2 == 0 else 17
            off = 64 * (gt // 2)
            rd.append(f"ds_read_b64_tr_b16 v[{B[X]+4*gt}:{B[X]+4*gt+1}], v{a_} offset:{off}")
            rd.append(f"ds_read_b64_tr_b16 v[{B[X]+4*gt+2}:{B[X]+4*gt+3}], v{a_} offset:{off+768}")
        return rd
    def comp(f, X):
        R = RAW0 if f == 0 else RAW1[X]
        return dequant_ops(R, ZD[X], NZ, SC, P, A) + ["s_nop 1"] + \
            [f"v_mfma_f32_16x16x32_bf16 v[{ACC+24*f+4*gt}:{ACC+24*f+4*gt+3}], v[{A}:{A+3}], v[{B[X]+4*gt}:{B[X]+4*gt+3}], v[{ACC+24*f+4*gt}:{ACC+24*f+4*gt+3}]" for gt in range(6)]
    def mix(rd, cp):
        if OPT['rdfirst']:
            for r in rd: e(r)
            for op in cp: e(op)
            return
        i = 0
        for j, op in enumerate(cp):
            if i < len(rd) and j % 2 == 0:
                e(rd[i]); i += 1
            e(op)
        assert i == len(rd)
    if DIAG:
        e("s_mov_b32 s84, 0\ns_mov_b32 s85, 0")
    def unit(X, tag):
        e("s_barrier")
        tmr(80)
        e("""v_add_u32 v12, s30, v5
        v_add_u32 v13, s30, v6
        v_add_u32 v16, s30, v10
        v_add_u32 v17, s30, v11""")
        cp = comp(1, 1 - X)
        if REGZS:
            zr = [f"ds_read_b128 v[{NZ+4*i}:{NZ+4*i+3}], v9 offset:{16*i}" for i in range(4)]
            cp = cp[:40] + zr + cp[40:]
        mix(rlist(X), cp)
        e(f"""v_add_u32 v4, 1024, v4
        v_add_u32 v9, 1024, v9
        s_add_u32 s30, s30, {2*T_STAGE}
        s_cmp_ge_u32 s30, {T_S*T_STAGE}
        s_cselect_b32 s51, {T_S*T_STAGE}, 0
        s_sub_u32 s30, s30, s51
        s_waitcnt lgkmcnt(0)""")
        tmr(82)
        if DIAG:
            e("s_sub_u32 s82, s82, s80\ns_add_u32 s84, s84, s82")
        e("s_barrier")
        tmr(80)
        if OPT['touch']:
            e("s_add_u32 s25, s25, 2")
            tcheck(e, L + tag)
        for op in comp(0, X):
            e(op)
        tmr(82)
        if DIAG:
            e("s_sub_u32 s82, s82, s80\ns_add_u32 s85, s85, s82")
    e.label(f"{L}_loop")
    unit(0, "la")
    unit(1, "lb")
    e(f"""s_sub_u32 s31, s31, 1
    s_cmp_lg_u32 s31, 0
    s_cbranch_scc1 {L}_loop""")
    if par == 0:
        e("s_barrier")
    for op in comp(1, 1):
        e(op)
    stamp(e, 2)
    e(f"""s_mul_i32 s51, s56, 49152
    s_mul_i32 s52, s57, 12288
    s_add_u32 s51, s51, s52
    s_add_u32 s51, s51, {24576*par}
    v_lshlrev_b32 v15, 4, v0
    v_add_u32 v14, s51, v15
    s_mul_i32 s51, s56, 49152
    v_add_u32 v13, s51, v15
    s_nop 7""")
    for kh_ in range(2):
        j = kh_ + 2 * par
        if kh_ == 0:
            e(f"""s_cmp_eq_u32 s57, 1
            s_cbranch_scc1 {L}_ep1""")
        else:
            e.label(f"{L}_ep1")
        for f in range(2):
            for gt in range(6):
                if gt // 2 != j:
                    e(f"ds_write_b128 v14, v[{ACC+24*f+4*gt}:{ACC+24*f+4*gt+3}] offset:{(f*6+gt)*1024}")
        if j < 3:
            e(f"""s_lshl_b32 s51, s6, 1
            s_add_u32 s51, s51, s56
            s_mul_i32 s54, s7, 120
            s_add_u32 s54, s54, s51
            s_add_u32 s54, s54, {40*j}
            s_lshl_b32 s54, s54, 10
            s_add_u32 s54, s54, {T_WS}
            s_add_u32 s55, s54, 20480""")
        e("s_waitcnt lgkmcnt(0)")
        e("s_barrier")
        if j < 3:
            srcs = [x for x in range(4) if x != j]
            n = 0
            for g2 in range(2):
                gt = 2 * j + g2
                for f in range(2):
                    for si, x in enumerate(srcs):
                        r = 20 + ((g2 * 2 + f) * 3 + si) * 4
                        e(f"ds_read_b128 v[{r}:{r+3}], v13 offset:{x*12288 + (f*6+gt)*1024}")
            for g2 in range(2):
                gt = 2 * j + g2
                for f in range(2):
                    e(f"s_waitcnt lgkmcnt({12 - 3*(g2*2+f+1)})")
                    d = ACC + 24 * f + 4 * gt
                    for si in range(3):
                        r = 20 + ((g2 * 2 + f) * 3 + si) * 4
                        for i in range(4):
                            e(f"v_add_f32 v{d+i}, v{d+i}, v{r+i}")
                    e(f"v_cvt_pk_bf16_f32 v{72+4*g2+2*f}, v{d}, v{d+1}")
                    e(f"v_cvt_pk_bf16_f32 v{73+4*g2+2*f}, v{d+2}, v{d+3}")
                e(f"buffer_store_dwordx4 v[{72+4*g2}:{75+4*g2}], v15, s[16:19], s{54+g2} offen")
        if kh_ == 0:
            stamp_flush(e, 4, 0)
            e("s_endpgm")
    stamp_flush(e, 4, 0)
    e("s_endpgm")

def x_loader(e):
    e("""s_sub_u32 s50, s3, 8
    v_and_b32 v60, 15, v0
    v_lshrrev_b32 v61, 4, v0
    s_mov_b32 s52, 1280""")
    for i in range(4):
        e(f"""v_add_u32 v62, {4*i}, v61
        v_mul_lo_u32 v63, v62, s52
        v_or_b32 v62, {((i>>1)&1)<<2}, v61
        v_lshlrev_b32 v62, 1, v62
        v_xor_b32 v62, v60, v62
        v_lshl_add_u32 v{1+i}, v62, 4, v63""")
        if i:
            e(f"v_subrev_u32 v{1+i}, {1024*i}, v{1+i}")
    e(f"""s_mul_i32 s28, s50, 20480
    s_lshl_b32 s51, s6, 8
    s_add_u32 s28, s28, s51
    s_lshl_b32 s53, s50, 12
    s_add_u32 s53, s53, {X_U}""")
    for i in range(4):
        e(f"""v_lshrrev_b32 v62, 3, v0
        v_add_u32 v62, {8*i}, v62
        v_mul_lo_u32 v63, v62, s52
        v_add_u32 v62, {4*i}, v61
        v_and_b32 v62, 7, v62
        v_and_b32 v64, 7, v0
        v_xor_b32 v62, v64, v62
        v_lshl_add_u32 v{5+i}, v62, 4, v63""")
        if i:
            e(f"v_subrev_u32 v{5+i}, {1024*i}, v{5+i}")
    e(f"""s_lshl_b32 s27, s7, 7
    s_lshl_b32 s51, s50, 5
    s_add_u32 s27, s27, s51
    s_mul_i32 s27, s27, 1280
    s_lshl_b32 s54, s50, 12
    s_add_u32 s54, s54, {X_X}""")
    def issue():
        e("s_add_u32 m0, s29, s53")
        e("s_nop 0")
        for i in range(4):
            off = f" offset:{1024*i}" if i else ""
            e(f"buffer_load_dwordx4 v{1+i}, s[8:11], s28 offen{off} lds")
        e("s_add_u32 m0, s29, s54")
        e(f"s_add_u32 s28, s28, {64*1280}")
        for i in range(4):
            off = f" offset:{1024*i}" if i else ""
            e(f"buffer_load_dwordx4 v{5+i}, s[12:15], s27 offen{off} lds")
        e("s_add_u32 s27, s27, 128")
    loader_loop(e, "XL", X_NST, X_S, X_STAGE, 8, issue)

def x_consumer(e):
    L = "XC"
    if OPT['xtouch']:
        for rnd in range(2):
            e(f"""s_lshl_b32 s51, s5, 3
            s_add_u32 s51, s51, s3
            s_add_u32 s51, s51, {14*OPT['xfirst'] + 80*rnd}
            s_cmp_ge_u32 s51, 140
            s_cbranch_scc1 {L}_td{rnd}
            s_mul_i32 s52, s51, 147
            s_lshr_b32 s52, s52, 11         ; stage = p/14
            s_mul_i32 s53, s52, 14
            s_sub_u32 s51, s51, s53         ; u
            s_cmp_ge_u32 s51, 4
            s_cbranch_scc1 {L}_tu{rnd}
            s_lshl_b32 s51, s51, 6
            v_add_u32 v62, s51, v0          ; row
            s_mov_b32 s53, 1280
            v_mul_lo_u32 v62, v62, s53
            s_mul_i32 s53, s4, {256*1280}
            s_lshl_b32 s52, s52, 7
            s_add_u32 s53, s53, s52
            buffer_load_dword v{1+rnd}, v62, s[12:15], s53 offen
            s_branch {L}_td{rnd}""")
            e.label(f"{L}_tu{rnd}")
            e(f"""s_sub_u32 s51, s51, 4
            s_lshl_b32 s51, s51, 13
            v_lshlrev_b32 v62, 7, v0
            s_mul_i32 s52, s52, {64*1280}
            s_add_u32 s53, s51, s52
            buffer_load_dword v{1+rnd}, v62, s[8:11], s53 offen""")
            e.label(f"{L}_td{rnd}")
    e("""v_and_b32 v60, 15, v0          ; c
    v_lshrrev_b32 v61, 4, v0        ; q
    s_and_b32 s56, s3, 1
    s_lshr_b32 s57, s3, 1
    v_lshrrev_b32 v62, 2, v60        ; r
    v_and_b32 v63, 1, v61
    v_lshl_add_u32 v63, v63, 2, v62  ; g
    v_lshl_add_u32 v62, v61, 3, v62  ; 8q+r
    v_lshlrev_b32 v62, 8, v62
    v_and_b32 v64, 3, v60
    v_lshl_add_u32 v62, v64, 3, v62
    s_lshl_b32 s51, s56, 2""")
    for a in range(4):
        e(f"""s_add_u32 s58, s51, {a}
        v_xor_b32 v64, s58, v63
        v_lshl_add_u32 v{5+a}, v64, 5, v62""")
        if X_U:
            e(f"v_add_u32 v{5+a}, {X_U}, v{5+a}")
    e(f"""v_lshrrev_b32 v62, 1, v60
    v_xor_b32 v62, v62, v61
    v_lshlrev_b32 v62, 4, v62
    v_lshl_add_u32 v62, v60, 7, v62
    s_lshl_b32 s51, s57, 12
    s_add_u32 s51, s51, {X_X}
    v_add_u32 v9, s51, v62
    v_xor_b32 v10, 64, v9""")
    for i in range(32):
        e(f"v_mov_b32 v{96+i}, 0")
    e("s_mov_b32 s30, 0")
    e(f"s_mov_b32 s31, {X_NST}")
    stamp(e, 1)
    e("s_mov_b32 s24, s5")
    e("s_mov_b32 s25, 0")
    e.label(f"{L}_loop")
    e("s_barrier")
    if OPT['touch'] and OPT['tmode'] == 1:
        e(f"""s_and_b32 s51, s25, 7
        s_cmp_lg_u32 s51, s3
        s_cbranch_scc1 {L}_nt
        s_mul_i32 s26, s24, 205
        s_lshr_b32 s26, s26, 10
        s_mul_i32 s51, s26, 5
        s_sub_u32 s51, s24, s51
        s_add_u32 s51, s51, 8
        s_add_u32 s26, s26, {OPT['p0'] or 4}
        s_cmp_ge_u32 s26, 24
        s_cbranch_scc1 {L}_nt""")
        touch_setup(e, L + "x", 3, 20)
        e("buffer_load_dword v2, v3, s[52:55], s27 offen")
        e.label(f"{L}_nt")
        e("""s_add_u32 s24, s24, 10
        s_add_u32 s25, s25, 1""")
    for a in range(6):
        e(f"v_add_u32 v{11+a}, s30, v{5+a}")
    e(f"""s_add_u32 s30, s30, {X_STAGE}
    s_cmp_ge_u32 s30, {X_S*X_STAGE}
    s_cselect_b32 s30, 0, s30""")
    for kh in range(2):
        base = 32 + 32 * kh
        for a in range(4):
            e(f"ds_read_b64_tr_b16 v[{base+4*a}:{base+4*a+1}], v{11+a} offset:{8192*kh}")
            e(f"ds_read_b64_tr_b16 v[{base+4*a+2}:{base+4*a+3}], v{11+a} offset:{8192*kh+1024}")
        for mt in range(2):
            e(f"ds_read_b128 v[{base+16+4*mt}:{base+19+4*mt}], v{15+kh} offset:{2048*mt}")
    for kh in range(2):
        base = 32 + 32 * kh
        e(f"s_waitcnt lgkmcnt({10 if kh == 0 else 0})")
        for a in range(4):
            for mt in range(2):
                d = 96 + 8 * a + 4 * mt
                e(f"v_mfma_f32_16x16x32_bf16 v[{d}:{d+3}], v[{base+4*a}:{base+4*a+3}], v[{base+16+4*mt}:{base+19+4*mt}], v[{d}:{d+3}]")
    e(f"""s_sub_u32 s31, s31, 1
    s_cmp_lg_u32 s31, 0
    s_cbranch_scc1 {L}_loop""")
    stamp(e, 2)
    e(f"""s_lshl_b32 s51, s7, 3
    s_lshl_b32 s52, s57, 1
    s_add_u32 s51, s51, s52
    s_mul_i32 s51, s51, 20
    s_lshl_b32 s52, s6, 2
    s_add_u32 s51, s51, s52
    s_lshl_b32 s52, s56, 1
    s_add_u32 s51, s51, s52
    s_lshl_b32 s54, s51, 10
    s_add_u32 s54, s54, {XR_WS}
    s_add_u32 s55, s54, 20480
    v_lshlrev_b32 v62, 4, v0
    s_nop 7""")
    for mt in range(2):
        for kb in range(2):
            P = 32 + 8 * mt + 4 * kb
            d0 = 96 + 8 * (2 * kb) + 4 * mt
            d1 = 96 + 8 * (2 * kb + 1) + 4 * mt
            e(f"""v_cvt_pk_bf16_f32 v{P}, v{d0}, v{d0+1}
            v_cvt_pk_bf16_f32 v{P+1}, v{d0+2}, v{d0+3}
            v_cvt_pk_bf16_f32 v{P+2}, v{d1}, v{d1+1}
            v_cvt_pk_bf16_f32 v{P+3}, v{d1+2}, v{d1+3}""")
            so = "s54" if mt == 0 else "s55"
            off = f" offset:{1024*kb}" if kb else ""
            e(f"buffer_store_dwordx4 v[{P}:{P+3}], v62, s[16:19], {so} offen{off}")
    stamp_flush(e, 4, 0)
    e("s_endpgm")

def p1_kernel(e):
    e.raw(".p2align 8")
    e.raw(".type p1_kernel,@function")
    e.label("p1_kernel")
    e(f"""s_cmp_ge_u32 s2, {256 if OPT['touch'] and OPT['tmode'] == 1 else 240}
    s_cbranch_scc1 P1_end""")
    stamp(e, 0)
    e("""s_load_dwordx16 s[32:47], s[0:1], 0
    s_load_dwordx2 s[48:49], s[0:1], 64
    v_lshrrev_b32 v1, 6, v0
    v_and_b32 v0, 63, v0
    s_and_b32 s4, s2, 7
    s_lshr_b32 s5, s2, 3
    v_readfirstlane_b32 s3, v1
    s_waitcnt lgkmcnt(0)""")
    srd(e, 16, 48, WS_BYTES)
    P0 = OPT['p0']
    if OPT['touch'] and OPT['tmode'] == 1 and P0:
        e(f"""s_cmp_lt_u32 s3, 4
        s_cbranch_scc1 P0_done
        s_cmp_ge_u32 s3, {4 + P0 // 2}
        s_cbranch_scc1 P0_done
        s_sub_u32 s51, s3, 4
        s_lshl_b32 s51, s51, 5
        s_add_u32 s51, s51, s5
        s_lshr_b32 s26, s51, 4
        s_and_b32 s51, s51, 15""")
        touch_setup(e, "P0", 3, 20)
        e("buffer_load_dword v2, v3, s[52:55], s27 offen")
        e.label("P0_done")
    e("""s_cmp_ge_u32 s5, 30
    s_cbranch_scc1 P1_i
    s_cmp_ge_u32 s5, 20
    s_cbranch_scc1 P1_x""")
    e("""s_mul_i32 s7, s5, 52
    s_lshr_b32 s7, s7, 8          ; i/5
    s_mul_i32 s51, s7, 5
    s_sub_u32 s6, s5, s51         ; i%5
    s_and_b32 s51, s4, 1
    s_mul_i32 s51, s51, 5
    s_add_u32 s6, s6, s51
    s_lshr_b32 s51, s4, 1
    s_lshl_b32 s51, s51, 2
    s_add_u32 s7, s7, s51""")
    srd(e, 8, 34, 3932160)
    srd(e, 12, 42, 4718592)
    e("""s_cmp_ge_u32 s3, 8
    s_cbranch_scc1 P1_tl
    s_cmp_ge_u32 s3, 4
    s_cbranch_scc1 P1_tc1""")
    srd(e, 20, 38, 3072)
    srd(e, 24, 36, 3072)
    t_consumer(e, 0)
    e.label("P1_tc1")
    t_consumer(e, 1)
    e.label("P1_tl")
    t_loader(e)
    e.label("P1_x")
    e("""s_sub_u32 s5, s5, 20
    s_cmp_ge_u32 s5, 5
    s_cselect_b32 s51, 1, 0
    s_mul_i32 s52, s51, 5
    s_sub_u32 s6, s5, s52
    s_lshl_b32 s7, s4, 1
    s_add_u32 s7, s7, s51""")
    srd(e, 8, 40, 819200)
    srd(e, 12, 32, 2621440)
    e("""s_cmp_ge_u32 s3, 8
    s_cbranch_scc1 P1_xl""")
    x_consumer(e)
    e.label("P1_xl")
    x_loader(e)
    e.label("P1_i")
    idle_toucher(e)
    e.label("P1_end")
    e("s_endpgm")

Y_S = 5
Y_STAGE = 28672
Y_NST = 10
P2_LDS = Y_S * Y_STAGE

def p2_kernel(e):
    CUR_K[0] = 1
    e.raw(".p2align 8")
    e.raw(".type p2_kernel,@function")
    e.label("p2_kernel")
    e("""s_cmp_ge_u32 s2, 256
    s_cbranch_scc1 P2_end""")
    stamp(e, 0)
    e("""s_load_dwordx2 s[44:45], s[0:1], 48
    s_load_dwordx2 s[48:49], s[0:1], 64
    v_lshrrev_b32 v1, 6, v0
    v_and_b32 v0, 63, v0
    s_and_b32 s4, s2, 7
    s_lshr_b32 s5, s2, 3
    v_readfirstlane_b32 s3, v1
    v_lshlrev_b32 v1, 4, v0""")
    e("""s_and_b32 s6, s4, 3
    s_lshl_b32 s6, s6, 2
    s_and_b32 s51, s5, 3
    s_add_u32 s6, s6, s51
    s_lshr_b32 s7, s4, 2
    s_lshl_b32 s7, s7, 3
    s_lshr_b32 s51, s5, 2
    s_add_u32 s7, s7, s51
    s_cmp_ge_u32 s3, 4
    s_cbranch_scc0 P2_c""")
    e(f"""s_sub_u32 s50, s3, 4
    s_and_b32 s51, s50, 1
    s_lshr_b32 s52, s50, 1           ; kk
    s_mul_i32 s53, s52, 14336
    s_mul_i32 s55, s51, 3072
    s_add_u32 s54, s53, 6144
    s_add_u32 s53, s53, s55          ; T lds base
    s_lshl_b32 s55, s51, 12
    s_add_u32 s54, s54, s55          ; xr lds base
    s_mul_i32 s55, s51, 3
    s_mul_i32 s56, s7, 6
    s_add_u32 s55, s55, s56
    s_mul_i32 s55, s55, 20
    s_add_u32 s55, s55, s52
    s_lshl_b32 s28, s55, 10
    s_add_u32 s28, s28, {T_WS}
    s_lshl_b32 s55, s51, 2
    s_lshl_b32 s56, s6, 3
    s_add_u32 s55, s55, s56
    s_mul_i32 s55, s55, 20
    s_add_u32 s55, s55, s52
    s_lshl_b32 s27, s55, 10
    s_add_u32 s27, s27, {XR_WS}""")
    for i in range(1, 4):
        e(f"v_add_u32 v{1+i}, {19456*i}, v1")
    e("s_waitcnt lgkmcnt(0)")
    srd(e, 16, 48, WS_BYTES)
    def issue():
        e("s_add_u32 m0, s29, s53")
        e("s_nop 0")
        for i in range(3):
            off = f" offset:{1024*i}" if i else ""
            e(f"buffer_load_dwordx4 v{1+i}, s[16:19], s28 offen{off} lds")
        e("s_add_u32 m0, s29, s54")
        e("s_add_u32 s28, s28, 2048")
        for i in range(4):
            off = f" offset:{1024*i}" if i else ""
            e(f"buffer_load_dwordx4 v{1+i}, s[16:19], s27 offen{off} lds")
        e("s_add_u32 s27, s27, 2048")
    loader_loop(e, "YL", Y_NST, Y_S, Y_STAGE, 7, issue)
    e.label("P2_c")
    ACC = 64
    FB = [8, 112]
    for i in range(48):
        e(f"v_mov_b32 v{ACC+i}, 0")
    e("""s_lshl_b32 s51, s3, 11
    s_add_u32 s51, s51, 6144
    v_add_u32 v2, s51, v1
    s_waitcnt lgkmcnt(0)""")
    srd(e, 16, 48, WS_BYTES)
    srd(e, 8, 44, 6291456)
    e("s_mov_b32 s30, 0")

    def rlist(kk, b):
        l = []
        for mi in range(2):
            l.append(f"ds_read_b128 v[{b+24+4*mi}:{b+27+4*mi}], v4 offset:{kk*14336 + mi*1024}")
        for gt in range(6):
            l.append(f"ds_read_b128 v[{b+4*gt}:{b+4*gt+3}], v3 offset:{kk*14336 + gt*1024}")
        return l

    def block(b, rl):
        i = 0
        for gt in range(6):
            for mi in range(2):
                d = ACC + (gt * 2 + mi) * 4
                e(f"v_mfma_f32_16x16x32_bf16 v[{d}:{d+3}], v[{b+4*gt}:{b+4*gt+3}], v[{b+24+4*mi}:{b+27+4*mi}], v[{d}:{d+3}]")
                if i < len(rl):
                    e(rl[i]); i += 1

    def newslot():
        e(f"""v_add_u32 v3, s30, v1
        v_add_u32 v4, s30, v2
        s_add_u32 s30, s30, {Y_STAGE}
        s_cmp_ge_u32 s30, {Y_S*Y_STAGE}
        s_cselect_b32 s30, 0, s30""")

    e("s_barrier")
    stamp(e, 1)
    newslot()
    for r in rlist(0, FB[0]):
        e(r)
    e(f"s_mov_b32 s31, {Y_NST-1}")
    e.label("P2_loop")
    e("s_waitcnt lgkmcnt(0)")
    block(FB[0], rlist(1, FB[1]))
    e("s_waitcnt lgkmcnt(0)")
    e("s_barrier")
    newslot()
    block(FB[1], rlist(0, FB[0]))
    e("""s_sub_u32 s31, s31, 1
    s_cmp_lg_u32 s31, 0
    s_cbranch_scc1 P2_loop""")
    e("s_waitcnt lgkmcnt(0)")
    block(FB[0], rlist(1, FB[1]))
    e("s_waitcnt lgkmcnt(0)")
    block(FB[1], [])
    stamp(e, 2)
    e("""v_and_b32 v3, 15, v0
    v_lshrrev_b32 v4, 4, v0
    s_mov_b32 s52, 3072
    v_mul_lo_u32 v3, v3, s52
    v_and_b32 v5, 1, v4
    v_lshrrev_b32 v4, 1, v4
    v_lshlrev_b32 v5, 5, v5
    v_lshl_add_u32 v5, v4, 4, v5
    v_add_u32 v3, v3, v5
    s_lshl_b32 s51, s6, 7
    s_lshl_b32 s52, s3, 5
    s_add_u32 s51, s51, s52
    s_mul_i32 s54, s51, 3072
    s_mul_i32 s52, s7, 192
    s_add_u32 s54, s54, s52
    s_add_u32 s55, s54, 49152
    s_nop 7""")
    for mi in range(2):
        for a in range(3):
            P = 8 + (mi * 3 + a) * 4
            dA = ACC + ((2 * a) * 2 + mi) * 4
            dB = ACC + ((2 * a + 1) * 2 + mi) * 4
            e(f"""v_cvt_pk_bf16_f32 v{P}, v{dA}, v{dA+1}
            v_cvt_pk_bf16_f32 v{P+1}, v{dA+2}, v{dA+3}
            v_cvt_pk_bf16_f32 v{P+2}, v{dB}, v{dB+1}
            v_cvt_pk_bf16_f32 v{P+3}, v{dB+2}, v{dB+3}
            s_nop 1
            v_permlane16_swap_b32 v{P}, v{P+2}
            v_permlane16_swap_b32 v{P+1}, v{P+3}""")
            so = "s54" if mi == 0 else "s55"
            off = f" offset:{64*a}" if a else ""
            e("s_nop 1")
            e(f"buffer_store_dwordx4 v[{P}:{P+3}], v3, s[8:11], {so} offen{off}")
    stamp_flush(e, 4, 1)
    e.label("P2_end")
    e("s_endpgm")

def main(out):
    e = E()
    e.raw(HEADER.rstrip('\n'))
    e.raw(f"; @launch kernel=p1_kernel grid=({256 if OPT['touch'] and OPT['tmode'] == 1 else 240},1,1) block=(768,1,1) lds={P1_LDS}")
    e.raw(f"; @launch kernel=p2_kernel grid=(256,1,1) block=(512,1,1) lds={P2_LDS}")
    e.raw('.amdgcn_target "amdgcn-amd-amdhsa--gfx950"')
    e.raw(".text")
    e.raw(".globl p1_kernel")
    e.raw(".globl p2_kernel")
    p1_kernel(e)
    p2_kernel(e)
    e.raw('.section .rodata,"a"')
    for name, vg, acc in (("p1_kernel", 168, 168), ("p2_kernel", 144, 144)):
        e.raw(".p2align 6")
        e.raw(f""".amdhsa_kernel {name}
  .amdhsa_next_free_vgpr {vg}
  .amdhsa_next_free_sgpr 96
  .amdhsa_accum_offset {acc}
  .amdhsa_group_segment_fixed_size 0
  .amdhsa_kernarg_size 72
  .amdhsa_user_sgpr_count 2
  .amdhsa_user_sgpr_kernarg_segment_ptr 1
  .amdhsa_system_sgpr_workgroup_id_x 1
  .amdhsa_float_denorm_mode_32 3
.end_amdhsa_kernel""")
    open(out, 'w').write(e.text())

if __name__ == '__main__':
    for a in sys.argv[2:]:
        if a == 'diag':
            DIAG = True
        elif '=' in a:
            k, v = a.split('=')
            OPT[k] = int(v)
    main(sys.argv[1] if len(sys.argv) > 1 else 'standalone__weight_only_int_quip__prompt.s')
```

```python
import sys

HEADER = open('standalone__weight_only_int_quip__prompt.s.ref').read().split('; Override launch')[0]

XR_WS = 0
T_WS = 2621440
WS_BYTES = 268435456
OPT = dict(ldprio=1, noload=0, nocomp=0, touch=1, tdelta=8, xdelta=6, nt=0, nttouch=0, xtouch=0, samek=0, dbg=0, drop=0, split=16, zdpp=1, sdpp=1, rdfirst=1, inner=0, tmode=1, protouch=1, p0=8, xfirst=1, st1=1, st2=1, ytouch=0, xrate=2, bal=1, p0lo=0, ylo=20, yhi=80, tlead=3)

CUR_K = [0]
class E:
    def __init__(self):
        self.l = []
    def __call__(self, s):
        for line in s.strip('\n').split('\n'):
            t = line.strip()
            if OPT['noload'] and t.endswith(' lds'): continue
            if t.startswith('buffer_store') and not DIAG:
                pol = {0: '', 1: ' sc1', 2: ' nt', 3: ' sc0 sc1', 4: ' sc1 nt'}[OPT['st1'] if CUR_K[0] == 0 else OPT['st2']]
                t = t + pol
            if (OPT['drop'] & 1) and t.startswith('ds_read_b64_tr'): continue
            if (OPT['drop'] & 2) and t.endswith('; DQ'): continue
            if (OPT['drop'] & 8) and (t.startswith('ds_read_b128') or t.startswith('ds_read_b32')): continue
            if (OPT['drop'] & 4) and t.startswith('v_mfma'): continue
            if OPT['samek'] and (t.startswith('s_add_u32 s28, s28,') or t.startswith('s_add_u32 s27, s27,')): continue
            if OPT['nt'] and t.endswith(' lds') and ('s[8:11]' in t or 's[12:15]' in t): t = t[:-4] + ' nt lds'
            if OPT['nttouch'] and t.startswith('buffer_load_dword v'): t = t + ' nt'
            if OPT['nocomp'] and (t.startswith('ds_read') or t.startswith('v_mfma') or '_dpp' in t or t.startswith('v_cvt')): continue
            self.l.append('    ' + t)
    def label(self, s):
        self.l.append(s + ':')
    def raw(self, s):
        self.l.append(s)
    def text(self):
        return '\n'.join(self.l) + '\n'

DIAG = False
STAMP_WS = 64 << 20
def dbg_entry(e):
    if not OPT['dbg']: return
    e("""s_memrealtime s[90:91]
    s_memtime s[86:87]
    s_load_dwordx2 s[92:93], s[0:1], 56
    s_waitcnt lgkmcnt(0)
    s_mov_b32 s88, s92
    s_and_b32 s89, s93, 0xffff
    s_not_b32 s94, s90
    s_mov_b32 s90, 256
    s_mov_b32 s91, 0x00020000""")
DBGN = [0]
DBG_WS = 100 << 20
def dbg_exit(e, kern):
    if not OPT['dbg']: return
    DBGN[0] += 1
    lab = f"DBGX{DBGN[0]}"
    e(f"""s_and_b32 s95, s3, 3
    s_cmp_lg_u32 s95, 0
    s_cbranch_scc1 {lab}
    s_waitcnt vmcnt(0)
    s_memrealtime s[92:93]
    s_waitcnt lgkmcnt(0)
    s_not_b32 s94, s94
    v_mov_b32 v2, 0
    v_mov_b32 v4, s94
    v_mov_b32 v5, s92
    s_lshl_b32 s95, s2, 4
    s_lshl_b32 s93, s3, 1
    s_add_u32 s95, s95, s93
    s_add_u32 s95, s95, {DBG_WS + kern * 8192}
    buffer_store_dwordx2 v[4:5], v2, s[16:19], s95 offen""")
    if kern == 1:
        e(f"""s_or_b32 s95, s2, s3
        s_cmp_lg_u32 s95, 0
        s_cbranch_scc1 {lab}
        v_lshlrev_b32 v2, 4, v0""")
        for i in range(4):
            if i == 3:
                e("v_min_u32 v2, 752, v2")
            e(f"s_mov_b32 s95, {DBG_WS + i * 1024}")
            e(f"buffer_load_dwordx4 v[{8+4*i}:{11+4*i}], v2, s[16:19], s95 offen")
        e("s_waitcnt vmcnt(0)")
        for i in range(4):
            e(f"v_max_u32 v{9+4*i}, v{9+4*i}, v{11+4*i}")
            e(f"v_sub_u32 v{10+4*i}, v{9+4*i}, v{8+4*i}")
        e("""v_min_u32 v24, v8, v12
        v_min_u32 v24, v24, v16
        v_min_u32 v24, v24, v20
        v_max_u32 v25, v8, v12
        v_max_u32 v25, v25, v16
        v_max_u32 v25, v25, v20
        v_min_u32 v26, v9, v13
        v_min_u32 v26, v26, v17
        v_min_u32 v26, v26, v21
        v_max_u32 v27, v9, v13
        v_max_u32 v27, v27, v17
        v_max_u32 v27, v27, v21
        v_max_u32 v28, v10, v14
        v_max_u32 v28, v28, v18
        v_max_u32 v28, v28, v22
        s_mov_b32 s70, -1
        s_mov_b32 s71, 0
        s_mov_b32 s72, -1
        s_mov_b32 s73, 0
        s_mov_b32 s74, 0
        s_nop 1""")
        for l in range(64):
            e(f"""v_readlane_b32 s75, v24, {l}
            v_readlane_b32 s76, v25, {l}
            v_readlane_b32 s77, v26, {l}
            v_readlane_b32 s78, v27, {l}
            v_readlane_b32 s79, v28, {l}
            s_nop 3
            s_min_u32 s70, s70, s75
            s_max_u32 s71, s71, s76
            s_min_u32 s72, s72, s77
            s_max_u32 s73, s73, s78
            s_max_u32 s74, s74, s79""")
        e("""v_mov_b32 v2, 0
        v_mov_b32 v4, s70
        v_mov_b32 v5, s71
        v_mov_b32 v6, s72
        v_mov_b32 v7, s73
        buffer_store_dwordx4 v[4:7], v2, s[88:91], 0 offen
        v_mov_b32 v8, s74
        v_mov_b32 v9, s94
        v_mov_b32 v10, s92
        v_mov_b32 v11, 0
        buffer_store_dwordx4 v[8:11], v2, s[88:91], 0 offen offset:16""")
    e.label(lab)

def stamp(e, i):
    if i == 0 and OPT['dbg']: dbg_entry(e)
    if not DIAG: return
    e(f"""s_memtime s[{64+4*i}:{65+4*i}]
    s_memrealtime s[{66+4*i}:{67+4*i}]
    s_waitcnt lgkmcnt(0)""")
def stamp_flush(e, n, kern):
    if OPT['dbg']: dbg_exit(e, kern)
    if not DIAG: return
    e(f"""s_waitcnt vmcnt(0)""")
    stamp(e, n - 1)
    e(f"""s_lshl_b32 s60, s2, 4
    s_add_u32 s60, s60, s3
    s_lshl_b32 s60, s60, 7
    s_add_u32 s60, s60, {STAMP_WS + kern * (1 << 20)}
    v_mov_b32 v2, 0
    s_getreg_b32 s61, hwreg(HW_REG_XCC_ID)
    s_getreg_b32 s62, hwreg(HW_REG_HW_ID)
    v_mov_b32 v4, s61
    v_mov_b32 v5, s62
    buffer_store_dwordx2 v[4:5], v2, s[16:19], s60 offen offset:112
    s_waitcnt vmcnt(0)
    v_mov_b32 v4, s84
    v_mov_b32 v5, s85
    buffer_store_dwordx2 v[4:5], v2, s[16:19], s60 offen offset:96
    s_waitcnt vmcnt(0)""")
    for i in range(n):
        e(f"""v_mov_b32 v4, s{64+4*i}
        v_mov_b32 v5, s{65+4*i}
        v_mov_b32 v6, s{66+4*i}
        v_mov_b32 v7, s{67+4*i}
        buffer_store_dwordx4 v[4:7], v2, s[16:19], s60 offen offset:{16*i}
        s_waitcnt vmcnt(0)""")

def srd(e, d, lo, nbytes):
    e(f"""s_mov_b32 s{d}, s{lo}
    s_and_b32 s{d+1}, s{lo+1}, 0xffff
    s_mov_b32 s{d+2}, {nbytes}
    s_mov_b32 s{d+3}, 0x00020000""")

T_S = 5
T_STAGE = 28672
T_QW = 0
T_V = 16384
T_ZS = T_S * T_STAGE
T_NST = 24
X_S = 4
X_STAGE = 32768
X_U = 0
X_X = 16384
X_NST = 10
P1_LDS = T_ZS + 12288

def loader_loop(e, L, nst, RING, stage_bytes, npieces, issue, lead=None):
    S = (lead + 1) if lead else RING
    if OPT['ldprio']:
        e(f"s_setprio {OPT['ldprio']}")
    def rec():
        if DIAG:
            e("""s_memtime s[62:63]
            s_waitcnt lgkmcnt(0)
            v_mov_b32 v21, s62
            v_cmp_eq_u32 vcc, s61, v0
            s_nop 1
            v_cndmask_b32 v20, v20, v21, vcc
            s_add_u32 s61, s61, 1""")
    def adv():
        e(f"""s_add_u32 s29, s29, {stage_bytes}
        s_cmp_ge_u32 s29, {RING*stage_bytes}
        s_cselect_b32 s29, 0, s29""")
    e("s_mov_b32 s29, 0")
    if DIAG:
        e("s_mov_b32 s61, 0\nv_mov_b32 v20, 0")
        rec()
    issued = 0
    first = min(2, S - 1)
    for _ in range(first):
        issue(); adv(); issued += 1
    s = 0
    while issued < s + S - 1:
        e(f"s_waitcnt vmcnt({npieces*(issued-1-s)})")
        e("s_barrier")
        rec()
        for _ in range(2):
            if issued < s + S:
                issue(); adv(); issued += 1
        s += 1
    nloop = nst - issued
    e(f"s_mov_b32 s31, {nloop}")
    e.label(f"{L}_ldloop")
    e(f"s_waitcnt vmcnt({npieces*(S-2)})")
    e("s_barrier")
    rec()
    issue()
    adv()
    e(f"""s_sub_u32 s31, s31, 1
    s_cmp_lg_u32 s31, 0
    s_cbranch_scc1 {L}_ldloop""")
    s += nloop
    for ss in range(s, nst):
        e(f"s_waitcnt vmcnt({npieces*(nst-1-ss)})")
        e("s_barrier")
        rec()
    if DIAG:
        kern = 1 if L == "YL" else 0
        e(f"""s_lshl_b32 s60, s2, 2
        s_add_u32 s60, s60, s50
        s_lshl_b32 s60, s60, 8
        s_add_u32 s60, s60, {STAMP_WS + (4 + kern) * (1 << 20)}
        v_lshlrev_b32 v21, 2, v0
        buffer_store_dword v20, v21, s[16:19], s60 offen""")
    e("s_endpgm")

def dequant_ops(R, ZD, NZ, SC, P, A):
    ops = []
    for i in range(8):
        ops.append(f"v_cvt_f32_i32 v{R+i}, v{R+i}")
    for i in range(8):
        if OPT['zdpp']:
            ops.append(f"v_add_f32_dpp v{R+i}, v{ZD}, v{R+i} row_newbcast:{i} row_mask:0xf bank_mask:0xf")
        else:
            ops.append(f"v_add_f32 v{R+i}, v{NZ+i}, v{R+i}")
    for i in range(4):
        ops.append(f"v_cvt_pk_bf16_f32 v{P+i}, v{R+2*i}, v{R+2*i+1}")
    for i in range(4):
        ops.append(f"v_lshlrev_b32 v{R+2*i}, 16, v{P+i}")
        ops.append(f"v_and_b32 v{R+2*i+1}, 0xffff0000, v{P+i}")
    for i in range(8):
        if OPT['sdpp']:
            ops.append(f"v_mul_f32_dpp v{R+i}, v{ZD}, v{R+i} row_newbcast:{8+i} row_mask:0xf bank_mask:0xf")
        else:
            ops.append(f"v_mul_f32 v{R+i}, v{SC+i}, v{R+i}")
    for i in range(4):
        ops.append(f"v_cvt_pk_bf16_f32 v{A+i}, v{R+2*i}, v{R+2*i+1}")
    return [o + ' ; DQ' for o in ops]

def t_loader(e):
    e("""s_sub_u32 s50, s3, 8
    v_and_b32 v60, 15, v0
    v_lshrrev_b32 v61, 4, v0
    s_mov_b32 s52, 6144""")
    for i in range(4):
        e(f"""v_add_u32 v62, {4*i}, v61
        v_mul_lo_u32 v63, v62, s52
        v_xor_b32 v62, v60, v62
        v_lshl_add_u32 v{1+i}, v62, 4, v63""")
        if i:
            e(f"v_subrev_u32 v{1+i}, {1024*i}, v{1+i}")
    e(f"""s_lshl_b32 s28, s6, 6
    s_lshl_b32 s51, s50, 4
    s_add_u32 s28, s28, s51
    s_mul_i32 s28, s28, 6144
    s_lshl_b32 s53, s50, 12
    s_add_u32 s53, s53, {T_QW}
    s_mov_b32 s52, 3072""")
    for j in range(3):
        e(f"""v_add_u32 v62, {64*j}, v0
        v_mul_u32_u24 v63, 171, v62
        v_lshrrev_b32 v63, 11, v63
        v_mul_u32_u24 v64, 12, v63
        v_sub_u32 v62, v62, v64
        v_lshrrev_b32 v64, 3, v63
        v_and_b32 v64, 1, v64
        v_lshlrev_b32 v64, 1, v64
        v_xor_b32 v62, v62, v64
        v_mul_lo_u32 v63, v63, s52
        v_lshl_add_u32 v{5+j}, v62, 4, v63""")
        if j:
            e(f"v_subrev_u32 v{5+j}, {1024*j}, v{5+j}")
    e(f"""s_mul_i32 s27, s50, 49152
    s_mul_i32 s51, s7, 192
    s_add_u32 s27, s27, s51
    s_mul_i32 s54, s50, 3072
    s_add_u32 s54, s54, {T_V}""")
    def issue():
        e("s_add_u32 m0, s29, s53")
        e("s_nop 0")
        for i in range(4):
            off = f" offset:{1024*i}" if i else ""
            e(f"buffer_load_dwordx4 v{1+i}, s[8:11], s28 offen{off} lds")
        e("s_add_u32 m0, s29, s54")
        e("s_add_u32 s28, s28, 256")
        for j in range(3):
            off = f" offset:{1024*j}" if j else ""
            e(f"buffer_load_dwordx4 v{5+j}, s[12:15], s27 offen{off} lds")
        e(f"s_add_u32 s27, s27, {64*3072}")
    loader_loop(e, "TL", T_NST, T_S, T_STAGE, 7, issue, lead=OPT["tlead"])

def touch_setup(e, tag, vo, t):
    e(f"""s_cmp_ge_u32 s51, 10
    s_cbranch_scc1 {tag}_tv
    s_lshl_b32 s51, s51, 6
    v_add_u32 v{t}, s51, v0
    v_lshrrev_b32 v{t+1}, 1, v{t}
    v_and_b32 v{t}, 1, v{t}
    s_mov_b32 s53, 6144
    v_mul_lo_u32 v{t+1}, v{t+1}, s53
    v_lshl_add_u32 v{vo}, v{t}, 7, v{t+1}
    s_and_b32 s27, s4, 1
    s_mul_i32 s27, s27, {320*6144}
    s_lshl_b32 s52, s26, 8
    s_add_u32 s27, s27, s52
    s_mov_b32 s52, s34
    s_and_b32 s53, s35, 0xffff
    s_mov_b32 s54, 3932160
    s_mov_b32 s55, 0x00020000
    s_branch {tag}_td""")
    e.label(f"{tag}_tv")
    e(f"""s_sub_u32 s51, s51, 10
    s_lshl_b32 s51, s51, 6
    v_add_u32 v{t}, s51, v0
    v_mul_u32_u24 v{t+1}, 171, v{t}
    v_lshrrev_b32 v{t+1}, 10, v{t+1}
    v_mul_u32_u24 v{t+2}, 6, v{t+1}
    v_sub_u32 v{t}, v{t}, v{t+2}
    s_mov_b32 s53, 3072
    v_mul_lo_u32 v{t+1}, v{t+1}, s53
    v_lshl_add_u32 v{vo}, v{t}, 7, v{t+1}
    s_lshr_b32 s27, s4, 1
    s_mul_i32 s27, s27, 768
    s_mul_i32 s52, s26, {64*3072}
    s_add_u32 s27, s27, s52
    s_mov_b32 s52, s42
    s_and_b32 s53, s43, 0xffff
    s_mov_b32 s54, 4718592
    s_mov_b32 s55, 0x00020000""")
    e.label(f"{tag}_td")

def idle_toucher(e):
    e("""s_cmp_lg_u32 s3, 0
    s_cbranch_scc1 P1_end
    s_sub_u32 s24, s5, 30""")
    e.label("IT_loop")
    e("""s_mul_i32 s26, s24, 171
    s_lshr_b32 s26, s26, 9
    s_mul_i32 s51, s26, 3
    s_sub_u32 s51, s24, s51
    s_add_u32 s51, s51, 13
    s_add_u32 s26, s26, """ + str(OPT['p0'] or 4))
    touch_setup(e, "IT", 3, 20)
    e("""buffer_load_dword v2, v3, s[52:55], s27 offen
    s_add_u32 s24, s24, 2
    s_cmp_lt_u32 s24, """ + str(3 * (24 - (OPT['p0'] or 4))) + """
    s_cbranch_scc1 IT_loop
    s_endpgm""")

def tcheck(e, tag, step=None):
    if step is None:
        step = 100 if OPT['tmode'] == 1 else 10
    e(f"""s_cmp_gt_u32 s26, s25
    s_cbranch_scc1 {tag}_nt
    s_cmp_ge_u32 s26, {T_NST}
    s_cbranch_scc1 {tag}_nt
    buffer_load_dword v2, v3, s[52:55], s27 offen
    s_add_u32 s26, s26, {step}
    s_add_u32 s27, s27, s28""")
    e.label(f"{tag}_nt")

def t_consumer(e, par):
    L = f"TC{par}"
    e("""s_and_b32 s50, s3, 3
    v_and_b32 v60, 15, v0          ; c
    v_lshrrev_b32 v61, 4, v0        ; q""")
    if par == 0:
        e(f"""s_cmp_ge_u32 s3, 3
        s_cbranch_scc1 {L}_nozs
        s_lshl_b32 s51, s3, 10
        v_lshlrev_b32 v62, 4, v0
        v_add_u32 v62, s51, v62
        buffer_load_dwordx4 v[64:67], v62, s[20:23], 0 offen
        buffer_load_dwordx4 v[68:71], v62, s[24:27], 0 offen
        s_waitcnt vmcnt(0)""")
        for i in range(4):
            e(f"""v_lshlrev_b32 v{16+2*i}, 16, v{64+i}
            v_and_b32 v{17+2*i}, 0xffff0000, v{64+i}
            v_lshlrev_b32 v{24+2*i}, 16, v{68+i}
            v_and_b32 v{25+2*i}, 0xffff0000, v{68+i}""")
        for i in range(8):
            e(f"v_xor_b32 v{16+i}, 0x80000000, v{16+i}")
        e(f"""s_lshl_b32 s51, s3, 12
        v_lshlrev_b32 v62, 6, v0
        v_add_u32 v62, s51, v62
        v_add_u32 v62, {T_ZS}, v62
        ds_write_b128 v62, v[16:19]
        ds_write_b128 v62, v[20:23] offset:16
        ds_write_b128 v62, v[24:27] offset:32
        ds_write_b128 v62, v[28:31] offset:48
        s_waitcnt lgkmcnt(0)""")
        e.label(f"{L}_nozs")
    if OPT['touch'] and OPT['tmode'] == 1:
        e(f"""s_add_u32 s26, s5, {OPT['p0'] or 4}
        s_mov_b32 s51, s3""")
        touch_setup(e, L, 3, 62)
        e(f"""s_mov_b32 s28, 0
        s_mov_b32 s25, {OPT['tdelta'] + par}""")
        if OPT['protouch']:
            tcheck(e, L + "p0", 100)
    elif OPT['touch']:
            e(f"""s_lshl_b32 s51, s5, 3
            s_add_u32 s51, s51, s3
            s_lshr_b32 s26, s51, 4          ; sigma0
            s_and_b32 s51, s51, 15          ; u
            s_cmp_ge_u32 s51, 10
            s_cbranch_scc1 {L}_tv
            s_lshl_b32 s51, s51, 6
            v_add_u32 v62, s51, v0          ; t
            v_lshrrev_b32 v63, 1, v62       ; row
            v_and_b32 v62, 1, v62
            s_mov_b32 s53, 6144
            v_mul_lo_u32 v63, v63, s53
            v_lshl_add_u32 v3, v62, 7, v63
            s_and_b32 s27, s4, 1
            s_mul_i32 s27, s27, {320*6144}
            s_lshl_b32 s52, s26, 8
            s_add_u32 s27, s27, s52
            s_mov_b32 s28, 2560
            s_mov_b32 s52, s34
            s_and_b32 s53, s35, 0xffff
            s_mov_b32 s54, 3932160
            s_mov_b32 s55, 0x00020000
            s_branch {L}_td""")
            e.label(f"{L}_tv")
            e(f"""s_sub_u32 s51, s51, 10
            s_lshl_b32 s51, s51, 6
            v_add_u32 v62, s51, v0          ; t in 0..383
            v_mul_u32_u24 v63, 171, v62
            v_lshrrev_b32 v63, 10, v63      ; row = t/6
            v_mul_u32_u24 v64, 6, v63
            v_sub_u32 v62, v62, v64
            s_mov_b32 s53, 3072
            v_mul_lo_u32 v63, v63, s53
            v_lshl_add_u32 v3, v62, 7, v63
            s_lshr_b32 s27, s4, 1
            s_mul_i32 s27, s27, 768
            s_mul_i32 s52, s26, {64*3072}
            s_add_u32 s27, s27, s52
            s_mov_b32 s28, {640*3072}
            s_mov_b32 s52, s42
            s_and_b32 s53, s43, 0xffff
            s_mov_b32 s54, 4718592
            s_mov_b32 s55, 0x00020000""")
            e.label(f"{L}_td")
            e(f"""s_cmp_ge_u32 s26, {T_S-1}
            s_cbranch_scc1 {L}_t0
            s_add_u32 s26, s26, 10
            s_add_u32 s27, s27, s28""")
            e.label(f"{L}_t0")
            e(f"s_mov_b32 s25, {OPT['tdelta'] + par}      ; s + delta")
            tcheck(e, L + "p0")
            tcheck(e, L + "p1")
    e(f"""s_and_b32 s56, s3, 1            ; eh
    s_lshr_b32 s57, s3, 1
    s_and_b32 s57, s57, 1           ; kh
    s_lshl_b32 s51, s57, 3
    v_lshlrev_b32 v62, 1, v61
    v_add_u32 v62, s51, v62
    v_xor_b32 v62, v62, v60
    v_lshlrev_b32 v62, 4, v62
    v_lshl_add_u32 v62, v60, 8, v62
    s_lshl_b32 s51, s56, 13
    s_add_u32 s51, s51, {T_QW}
    v_add_u32 v5, s51, v62
    v_xor_b32 v6, 16, v5
    v_lshlrev_b32 v4, 2, v0
    s_lshl_b32 s51, s57, 8
    s_add_u32 s51, s51, {T_ZS + 512*par}
    v_add_u32 v4, s51, v4
    v_lshlrev_b32 v9, 6, v61
    v_add_u32 v9, s51, v9""")
    e(f"""v_lshrrev_b32 v62, 2, v60        ; r
    v_lshl_add_u32 v62, v61, 3, v62  ; 8q + r
    v_mul_u32_u24 v62, 192, v62
    v_and_b32 v63, 3, v60
    v_lshl_add_u32 v62, v63, 3, v62
    s_mul_i32 s51, s57, {32*192}
    s_add_u32 s51, s51, {T_V}
    v_add_u32 v62, s51, v62
    v_and_b32 v63, 1, v61
    v_lshl_add_u32 v10, v63, 5, v62
    v_xor_b32 v63, 1, v63
    v_lshl_add_u32 v11, v63, 5, v62""")
    RAW0 = 18
    RAW1 = [26, 34]
    ZD = [42, 43]
    P = 44
    A = 48
    B = [52, 76]
    ACC = 100
    NZ, SC = 148, 156
    REGZS = not OPT['zdpp']
    if REGZS:
        for i in range(16):
            e(f"v_mov_b32 v{NZ+i}, 0")
    for i in range(48):
        e(f"v_mov_b32 v{ACC+i}, 0")
    for i in range(24):
        e(f"v_mov_b32 v{B[1]+i}, 0")
    for i in range(8):
        e(f"v_mov_b32 v{RAW1[1]+i}, 0")
    e(f"v_mov_b32 v{ZD[1]}, 0")
    e(f"s_mov_b32 s30, {T_STAGE*par}")
    e("s_mov_b32 s31, 6")
    stamp(e, 1)
    if par == 1:
        e("s_barrier")
    def tmr(reg):
        if DIAG and OPT['inner']:
            e(f"""s_memtime s[{reg}:{reg+1}]
            s_waitcnt lgkmcnt(0)""")
    def rlist(X):
        rd = [f"ds_read_b128 v[{RAW0}:{RAW0+3}], v12",
              f"ds_read_b128 v[{RAW0+4}:{RAW0+7}], v13",
              f"ds_read_b128 v[{RAW1[X]}:{RAW1[X]+3}], v12 offset:4096",
              f"ds_read_b128 v[{RAW1[X]+4}:{RAW1[X]+7}], v13 offset:4096"]
        if not REGZS:
            rd.append(f"ds_read_b32 v{ZD[X]}, v4")
        for gt in range(6):
            a_ = 16 if gt % 2 == 0 else 17
            off = 64 * (gt // 2)
            rd.append(f"ds_read_b64_tr_b16 v[{B[X]+4*gt}:{B[X]+4*gt+1}], v{a_} offset:{off}")
            rd.append(f"ds_read_b64_tr_b16 v[{B[X]+4*gt+2}:{B[X]+4*gt+3}], v{a_} offset:{off+768}")
        return rd
    def comp(f, X):
        R = RAW0 if f == 0 else RAW1[X]
        return dequant_ops(R, ZD[X], NZ, SC, P, A) + ["s_nop 1"] + \
            [f"v_mfma_f32_16x16x32_bf16 v[{ACC+24*f+4*gt}:{ACC+24*f+4*gt+3}], v[{A}:{A+3}], v[{B[X]+4*gt}:{B[X]+4*gt+3}], v[{ACC+24*f+4*gt}:{ACC+24*f+4*gt+3}]" for gt in range(6)]
    def mix(rd, cp):
        if OPT['rdfirst']:
            for r in rd: e(r)
            for op in cp: e(op)
            return
        i = 0
        for j, op in enumerate(cp):
            if i < len(rd) and j % 2 == 0:
                e(rd[i]); i += 1
            e(op)
        assert i == len(rd)
    if DIAG:
        e("s_mov_b32 s84, 0\ns_mov_b32 s85, 0")
    A1 = 164
    def mfl(f, Ar, X):
        return [f"v_mfma_f32_16x16x32_bf16 v[{ACC+24*f+4*gt}:{ACC+24*f+4*gt+3}], v[{Ar}:{Ar+3}], v[{B[X]+4*gt}:{B[X]+4*gt+3}], v[{ACC+24*f+4*gt}:{ACC+24*f+4*gt+3}]" for gt in range(6)]
    if OPT['bal']:
        for i in range(4):
            e(f"v_mov_b32 v{A1+i}, 0")
    def unit(X, tag):
        e("s_barrier")
        tmr(80)
        e("""v_add_u32 v12, s30, v5
        v_add_u32 v13, s30, v6
        v_add_u32 v16, s30, v10
        v_add_u32 v17, s30, v11""")
        if OPT['bal']:
            rd = rlist(X)
            m = mfl(1, A1, 1 - X)
            i = 0
            for j, r in enumerate(rd):
                e(r)
                if j >= 5 and j % 2 == 1 and i < 6:
                    e(m[i]); i += 1
            assert i == 6
        else:
            cp = comp(1, 1 - X)
            if REGZS:
                zr = [f"ds_read_b128 v[{NZ+4*i}:{NZ+4*i+3}], v9 offset:{16*i}" for i in range(4)]
                cp = cp[:40] + zr + cp[40:]
            mix(rlist(X), cp)
        e(f"""v_add_u32 v4, 1024, v4
        v_add_u32 v9, 1024, v9
        s_add_u32 s30, s30, {2*T_STAGE}
        s_cmp_ge_u32 s30, {T_S*T_STAGE}
        s_cselect_b32 s51, {T_S*T_STAGE}, 0
        s_sub_u32 s30, s30, s51
        s_waitcnt lgkmcnt(0)""")
        tmr(82)
        if DIAG:
            e("s_sub_u32 s82, s82, s80\ns_add_u32 s84, s84, s82")
        e("s_barrier")
        tmr(80)
        if OPT['touch']:
            e("s_add_u32 s25, s25, 2")
            tcheck(e, L + tag)
        if OPT['bal']:
            for op in dequant_ops(RAW0, ZD[X], NZ, SC, P, A):
                e(op)
            d1 = dequant_ops(RAW1[X], ZD[X], NZ, SC, P, A1)
            m = mfl(0, A, X)
            e(d1[0]); e(d1[1])
            k = 2
            for gt in range(6):
                e(m[gt])
                for op in d1[k:k+7]:
                    e(op)
                k += 7
        else:
            for op in comp(0, X):
                e(op)
        tmr(82)
        if DIAG:
            e("s_sub_u32 s82, s82, s80\ns_add_u32 s85, s85, s82")
    e.label(f"{L}_loop")
    unit(0, "la")
    unit(1, "lb")
    e(f"""s_sub_u32 s31, s31, 1
    s_cmp_lg_u32 s31, 0
    s_cbranch_scc1 {L}_loop""")
    if par == 0:
        e("s_barrier")
    if OPT['bal']:
        e("s_nop 1")
        for op in mfl(1, A1, 1):
            e(op)
    else:
        for op in comp(1, 1):
            e(op)
    stamp(e, 2)
    e(f"""s_mul_i32 s51, s56, 49152
    s_mul_i32 s52, s57, 12288
    s_add_u32 s51, s51, s52
    s_add_u32 s51, s51, {24576*par}
    v_lshlrev_b32 v15, 4, v0
    v_add_u32 v14, s51, v15
    s_mul_i32 s51, s56, 49152
    v_add_u32 v13, s51, v15
    s_nop 7""")
    for kh_ in range(2):
        j = kh_ + 2 * par
        if kh_ == 0:
            e(f"""s_cmp_eq_u32 s57, 1
            s_cbranch_scc1 {L}_ep1""")
        else:
            e.label(f"{L}_ep1")
        for f in range(2):
            for gt in range(6):
                if gt // 2 != j:
                    e(f"ds_write_b128 v14, v[{ACC+24*f+4*gt}:{ACC+24*f+4*gt+3}] offset:{(f*6+gt)*1024}")
        if j < 3:
            e(f"""s_lshl_b32 s51, s6, 1
            s_add_u32 s51, s51, s56
            s_mul_i32 s54, s7, 120
            s_add_u32 s54, s54, s51
            s_add_u32 s54, s54, {40*j}
            s_lshl_b32 s54, s54, 10
            s_add_u32 s54, s54, {T_WS}
            s_add_u32 s55, s54, 20480""")
        e("s_waitcnt lgkmcnt(0)")
        e("s_barrier")
        if j < 3:
            srcs = [x for x in range(4) if x != j]
            n = 0
            for g2 in range(2):
                gt = 2 * j + g2
                for f in range(2):
                    for si, x in enumerate(srcs):
                        r = 20 + ((g2 * 2 + f) * 3 + si) * 4
                        e(f"ds_read_b128 v[{r}:{r+3}], v13 offset:{x*12288 + (f*6+gt)*1024}")
            for g2 in range(2):
                gt = 2 * j + g2
                for f in range(2):
                    e(f"s_waitcnt lgkmcnt({12 - 3*(g2*2+f+1)})")
                    d = ACC + 24 * f + 4 * gt
                    for si in range(3):
                        r = 20 + ((g2 * 2 + f) * 3 + si) * 4
                        for i in range(4):
                            e(f"v_add_f32 v{d+i}, v{d+i}, v{r+i}")
                    e(f"v_cvt_pk_bf16_f32 v{72+4*g2+2*f}, v{d}, v{d+1}")
                    e(f"v_cvt_pk_bf16_f32 v{73+4*g2+2*f}, v{d+2}, v{d+3}")
                e(f"buffer_store_dwordx4 v[{72+4*g2}:{75+4*g2}], v15, s[16:19], s{54+g2} offen")
        if kh_ == 0:
            stamp_flush(e, 4, 0)
            e("s_endpgm")
    stamp_flush(e, 4, 0)
    e("s_endpgm")

def x_loader(e):
    e("""s_sub_u32 s50, s3, 8
    v_and_b32 v60, 15, v0
    v_lshrrev_b32 v61, 4, v0
    s_mov_b32 s52, 1280""")
    for i in range(4):
        e(f"""v_add_u32 v62, {4*i}, v61
        v_mul_lo_u32 v63, v62, s52
        v_or_b32 v62, {((i>>1)&1)<<2}, v61
        v_lshlrev_b32 v62, 1, v62
        v_xor_b32 v62, v60, v62
        v_lshl_add_u32 v{1+i}, v62, 4, v63""")
        if i:
            e(f"v_subrev_u32 v{1+i}, {1024*i}, v{1+i}")
    e(f"""s_mul_i32 s28, s50, 20480
    s_lshl_b32 s51, s6, 8
    s_add_u32 s28, s28, s51
    s_lshl_b32 s53, s50, 12
    s_add_u32 s53, s53, {X_U}""")
    for i in range(4):
        e(f"""v_lshrrev_b32 v62, 3, v0
        v_add_u32 v62, {8*i}, v62
        v_mul_lo_u32 v63, v62, s52
        v_add_u32 v62, {4*i}, v61
        v_and_b32 v62, 7, v62
        v_and_b32 v64, 7, v0
        v_xor_b32 v62, v64, v62
        v_lshl_add_u32 v{5+i}, v62, 4, v63""")
        if i:
            e(f"v_subrev_u32 v{5+i}, {1024*i}, v{5+i}")
    e(f"""s_lshl_b32 s27, s7, 7
    s_lshl_b32 s51, s50, 5
    s_add_u32 s27, s27, s51
    s_mul_i32 s27, s27, 1280
    s_lshl_b32 s54, s50, 12
    s_add_u32 s54, s54, {X_X}""")
    def issue():
        e("s_add_u32 m0, s29, s53")
        e("s_nop 0")
        for i in range(4):
            off = f" offset:{1024*i}" if i else ""
            e(f"buffer_load_dwordx4 v{1+i}, s[8:11], s28 offen{off} lds")
        e("s_add_u32 m0, s29, s54")
        e(f"s_add_u32 s28, s28, {64*1280}")
        for i in range(4):
            off = f" offset:{1024*i}" if i else ""
            e(f"buffer_load_dwordx4 v{5+i}, s[12:15], s27 offen{off} lds")
        e("s_add_u32 s27, s27, 128")
    loader_loop(e, "XL", X_NST, X_S, X_STAGE, 8, issue)

def x_consumer(e):
    L = "XC"
    if OPT['xtouch']:
        for rnd in range(2):
            e(f"""s_lshl_b32 s51, s5, 3
            s_add_u32 s51, s51, s3
            s_add_u32 s51, s51, {14*OPT['xfirst'] + 80*rnd}
            s_cmp_ge_u32 s51, 140
            s_cbranch_scc1 {L}_td{rnd}
            s_mul_i32 s52, s51, 147
            s_lshr_b32 s52, s52, 11         ; stage = p/14
            s_mul_i32 s53, s52, 14
            s_sub_u32 s51, s51, s53         ; u
            s_cmp_ge_u32 s51, 4
            s_cbranch_scc1 {L}_tu{rnd}
            s_lshl_b32 s51, s51, 6
            v_add_u32 v62, s51, v0          ; row
            s_mov_b32 s53, 1280
            v_mul_lo_u32 v62, v62, s53
            s_mul_i32 s53, s4, {256*1280}
            s_lshl_b32 s52, s52, 7
            s_add_u32 s53, s53, s52
            buffer_load_dword v{1+rnd}, v62, s[12:15], s53 offen
            s_branch {L}_td{rnd}""")
            e.label(f"{L}_tu{rnd}")
            e(f"""s_sub_u32 s51, s51, 4
            s_lshl_b32 s51, s51, 13
            v_lshlrev_b32 v62, 7, v0
            s_mul_i32 s52, s52, {64*1280}
            s_add_u32 s53, s51, s52
            buffer_load_dword v{1+rnd}, v62, s[8:11], s53 offen""")
            e.label(f"{L}_td{rnd}")
    e("""v_and_b32 v60, 15, v0          ; c
    v_lshrrev_b32 v61, 4, v0        ; q
    s_and_b32 s56, s3, 1
    s_lshr_b32 s57, s3, 1
    v_lshrrev_b32 v62, 2, v60        ; r
    v_and_b32 v63, 1, v61
    v_lshl_add_u32 v63, v63, 2, v62  ; g
    v_lshl_add_u32 v62, v61, 3, v62  ; 8q+r
    v_lshlrev_b32 v62, 8, v62
    v_and_b32 v64, 3, v60
    v_lshl_add_u32 v62, v64, 3, v62
    s_lshl_b32 s51, s56, 2""")
    for a in range(4):
        e(f"""s_add_u32 s58, s51, {a}
        v_xor_b32 v64, s58, v63
        v_lshl_add_u32 v{5+a}, v64, 5, v62""")
        if X_U:
            e(f"v_add_u32 v{5+a}, {X_U}, v{5+a}")
    e(f"""v_lshrrev_b32 v62, 1, v60
    v_xor_b32 v62, v62, v61
    v_lshlrev_b32 v62, 4, v62
    v_lshl_add_u32 v62, v60, 7, v62
    s_lshl_b32 s51, s57, 12
    s_add_u32 s51, s51, {X_X}
    v_add_u32 v9, s51, v62
    v_xor_b32 v10, 64, v9""")
    for i in range(32):
        e(f"v_mov_b32 v{96+i}, 0")
    e("s_mov_b32 s30, 0")
    e(f"s_mov_b32 s31, {X_NST}")
    stamp(e, 1)
    e("s_mov_b32 s24, s5")
    e("s_mov_b32 s25, 0")
    e.label(f"{L}_loop")
    e("s_barrier")
    if OPT['touch'] and OPT['tmode'] == 1:
        for r in range(OPT['xrate']):
            e(f"""s_and_b32 s51, s25, 7
            s_cmp_lg_u32 s51, s3
            s_cbranch_scc1 {L}_nt{r}
            s_mul_i32 s26, s24, 205
            s_lshr_b32 s26, s26, 10
            s_mul_i32 s51, s26, 5
            s_sub_u32 s51, s24, s51
            s_add_u32 s51, s51, 8
            s_add_u32 s26, s26, {OPT['p0'] or 4}
            s_cmp_ge_u32 s26, 24
            s_cbranch_scc1 {L}_nt{r}""")
            touch_setup(e, L + f"x{r}", 3, 20)
            e("buffer_load_dword v2, v3, s[52:55], s27 offen")
            e.label(f"{L}_nt{r}")
            e("""s_add_u32 s24, s24, 10
            s_add_u32 s25, s25, 1""")
    for a in range(6):
        e(f"v_add_u32 v{11+a}, s30, v{5+a}")
    e(f"""s_add_u32 s30, s30, {X_STAGE}
    s_cmp_ge_u32 s30, {X_S*X_STAGE}
    s_cselect_b32 s30, 0, s30""")
    for kh in range(2):
        base = 32 + 32 * kh
        for a in range(4):
            e(f"ds_read_b64_tr_b16 v[{base+4*a}:{base+4*a+1}], v{11+a} offset:{8192*kh}")
            e(f"ds_read_b64_tr_b16 v[{base+4*a+2}:{base+4*a+3}], v{11+a} offset:{8192*kh+1024}")
        for mt in range(2):
            e(f"ds_read_b128 v[{base+16+4*mt}:{base+19+4*mt}], v{15+kh} offset:{2048*mt}")
    for kh in range(2):
        base = 32 + 32 * kh
        e(f"s_waitcnt lgkmcnt({10 if kh == 0 else 0})")
        for a in range(4):
            for mt in range(2):
                d = 96 + 8 * a + 4 * mt
                e(f"v_mfma_f32_16x16x32_bf16 v[{d}:{d+3}], v[{base+4*a}:{base+4*a+3}], v[{base+16+4*mt}:{base+19+4*mt}], v[{d}:{d+3}]")
    e(f"""s_sub_u32 s31, s31, 1
    s_cmp_lg_u32 s31, 0
    s_cbranch_scc1 {L}_loop""")
    stamp(e, 2)
    e(f"""s_lshl_b32 s51, s7, 3
    s_lshl_b32 s52, s57, 1
    s_add_u32 s51, s51, s52
    s_mul_i32 s51, s51, 20
    s_lshl_b32 s52, s6, 2
    s_add_u32 s51, s51, s52
    s_lshl_b32 s52, s56, 1
    s_add_u32 s51, s51, s52
    s_lshl_b32 s54, s51, 10
    s_add_u32 s54, s54, {XR_WS}
    s_add_u32 s55, s54, 20480
    v_lshlrev_b32 v62, 4, v0
    s_nop 7""")
    for mt in range(2):
        for kb in range(2):
            P = 32 + 8 * mt + 4 * kb
            d0 = 96 + 8 * (2 * kb) + 4 * mt
            d1 = 96 + 8 * (2 * kb + 1) + 4 * mt
            e(f"""v_cvt_pk_bf16_f32 v{P}, v{d0}, v{d0+1}
            v_cvt_pk_bf16_f32 v{P+1}, v{d0+2}, v{d0+3}
            v_cvt_pk_bf16_f32 v{P+2}, v{d1}, v{d1+1}
            v_cvt_pk_bf16_f32 v{P+3}, v{d1+2}, v{d1+3}""")
            so = "s54" if mt == 0 else "s55"
            off = f" offset:{1024*kb}" if kb else ""
            e(f"buffer_store_dwordx4 v[{P}:{P+3}], v62, s[16:19], {so} offen{off}")
    stamp_flush(e, 4, 0)
    e("s_endpgm")

def p1_kernel(e):
    e.raw(".p2align 8")
    e.raw(".type p1_kernel,@function")
    e.label("p1_kernel")
    e(f"""s_cmp_ge_u32 s2, {256 if OPT['touch'] and OPT['tmode'] == 1 else 240}
    s_cbranch_scc1 P1_end""")
    stamp(e, 0)
    e("""s_load_dwordx16 s[32:47], s[0:1], 0
    s_load_dwordx2 s[48:49], s[0:1], 64
    v_lshrrev_b32 v1, 6, v0
    v_and_b32 v0, 63, v0
    s_and_b32 s4, s2, 7
    s_lshr_b32 s5, s2, 3
    v_readfirstlane_b32 s3, v1
    s_waitcnt lgkmcnt(0)""")
    srd(e, 16, 48, WS_BYTES)
    P0 = OPT['p0']
    if OPT['touch'] and OPT['tmode'] == 1 and P0:
        e(f"""s_cmp_lt_u32 s3, 4
        s_cbranch_scc1 P0_done
        s_cmp_ge_u32 s3, {4 + (P0 - OPT['p0lo']) // 2}
        s_cbranch_scc1 P0_done
        s_sub_u32 s51, s3, 4
        s_lshl_b32 s51, s51, 5
        s_add_u32 s51, s51, s5
        s_lshr_b32 s26, s51, 4
        s_add_u32 s26, s26, {OPT['p0lo']}
        s_and_b32 s51, s51, 15""")
        touch_setup(e, "P0", 3, 20)
        e("buffer_load_dword v2, v3, s[52:55], s27 offen")
        e.label("P0_done")
    e("""s_cmp_ge_u32 s5, 30
    s_cbranch_scc1 P1_i
    s_cmp_ge_u32 s5, 20
    s_cbranch_scc1 P1_x""")
    e("""s_mul_i32 s7, s5, 52
    s_lshr_b32 s7, s7, 8          ; i/5
    s_mul_i32 s51, s7, 5
    s_sub_u32 s6, s5, s51         ; i%5
    s_and_b32 s51, s4, 1
    s_mul_i32 s51, s51, 5
    s_add_u32 s6, s6, s51
    s_lshr_b32 s51, s4, 1
    s_lshl_b32 s51, s51, 2
    s_add_u32 s7, s7, s51""")
    srd(e, 8, 34, 3932160)
    srd(e, 12, 42, 4718592)
    e("""s_cmp_ge_u32 s3, 8
    s_cbranch_scc1 P1_tl
    s_cmp_ge_u32 s3, 4
    s_cbranch_scc1 P1_tc1""")
    srd(e, 20, 38, 3072)
    srd(e, 24, 36, 3072)
    t_consumer(e, 0)
    e.label("P1_tc1")
    t_consumer(e, 1)
    e.label("P1_tl")
    t_loader(e)
    e.label("P1_x")
    e("""s_sub_u32 s5, s5, 20
    s_cmp_ge_u32 s5, 5
    s_cselect_b32 s51, 1, 0
    s_mul_i32 s52, s51, 5
    s_sub_u32 s6, s5, s52
    s_lshl_b32 s7, s4, 1
    s_add_u32 s7, s7, s51""")
    srd(e, 8, 40, 819200)
    srd(e, 12, 32, 2621440)
    e("""s_cmp_ge_u32 s3, 8
    s_cbranch_scc1 P1_xl""")
    x_consumer(e)
    e.label("P1_xl")
    x_loader(e)
    e.label("P1_i")
    idle_toucher(e)
    e.label("P1_end")
    e("s_endpgm")

Y_S = 5
Y_STAGE = 28672
Y_NST = 10
P2_LDS = Y_S * Y_STAGE

def p2_kernel(e):
    CUR_K[0] = 1
    e.raw(".p2align 8")
    e.raw(".type p2_kernel,@function")
    e.label("p2_kernel")
    e("""s_cmp_ge_u32 s2, 256
    s_cbranch_scc1 P2_end""")
    stamp(e, 0)
    e("""s_load_dwordx2 s[44:45], s[0:1], 48
    s_load_dwordx2 s[48:49], s[0:1], 64
    v_lshrrev_b32 v1, 6, v0
    v_and_b32 v0, 63, v0
    s_and_b32 s4, s2, 7
    s_lshr_b32 s5, s2, 3
    v_readfirstlane_b32 s3, v1
    v_lshlrev_b32 v1, 4, v0""")
    e("""s_and_b32 s6, s4, 3
    s_lshl_b32 s6, s6, 2
    s_and_b32 s51, s5, 3
    s_add_u32 s6, s6, s51
    s_lshr_b32 s7, s4, 2
    s_lshl_b32 s7, s7, 3
    s_lshr_b32 s51, s5, 2
    s_add_u32 s7, s7, s51
    s_cmp_ge_u32 s3, 4
    s_cbranch_scc0 P2_c""")
    e(f"""s_sub_u32 s50, s3, 4
    s_and_b32 s51, s50, 1
    s_lshr_b32 s52, s50, 1           ; kk
    s_mul_i32 s53, s52, 14336
    s_mul_i32 s55, s51, 3072
    s_add_u32 s54, s53, 6144
    s_add_u32 s53, s53, s55          ; T lds base
    s_lshl_b32 s55, s51, 12
    s_add_u32 s54, s54, s55          ; xr lds base
    s_mul_i32 s55, s51, 3
    s_mul_i32 s56, s7, 6
    s_add_u32 s55, s55, s56
    s_mul_i32 s55, s55, 20
    s_add_u32 s55, s55, s52
    s_lshl_b32 s28, s55, 10
    s_add_u32 s28, s28, {T_WS}
    s_lshl_b32 s55, s51, 2
    s_lshl_b32 s56, s6, 3
    s_add_u32 s55, s55, s56
    s_mul_i32 s55, s55, 20
    s_add_u32 s55, s55, s52
    s_lshl_b32 s27, s55, 10
    s_add_u32 s27, s27, {XR_WS}""")
    for i in range(1, 4):
        e(f"v_add_u32 v{1+i}, {19456*i}, v1")
    e("s_waitcnt lgkmcnt(0)")
    srd(e, 16, 48, WS_BYTES)
    def issue():
        e("s_add_u32 m0, s29, s53")
        e("s_nop 0")
        for i in range(3):
            off = f" offset:{1024*i}" if i else ""
            e(f"buffer_load_dwordx4 v{1+i}, s[16:19], s28 offen{off} lds")
        e("s_add_u32 m0, s29, s54")
        e("s_add_u32 s28, s28, 2048")
        for i in range(4):
            off = f" offset:{1024*i}" if i else ""
            e(f"buffer_load_dwordx4 v{1+i}, s[16:19], s27 offen{off} lds")
        e("s_add_u32 s27, s27, 2048")
    loader_loop(e, "YL", Y_NST, Y_S, Y_STAGE, 7, issue)
    e.label("P2_c")
    ACC = 64
    FB = [8, 112]
    for i in range(48):
        e(f"v_mov_b32 v{ACC+i}, 0")
    e("""s_lshl_b32 s51, s3, 11
    s_add_u32 s51, s51, 6144
    v_add_u32 v2, s51, v1
    s_waitcnt lgkmcnt(0)""")
    srd(e, 16, 48, WS_BYTES)
    srd(e, 8, 44, 6291456)
    e("s_mov_b32 s30, 0")
    if OPT['ytouch']:
        e("""v_lshrrev_b32 v5, 3, v0
        s_mov_b32 s52, 20480
        v_mul_lo_u32 v5, v5, s52
        v_and_b32 v6, 7, v0
        v_lshl_add_u32 v5, v6, 7, v5""")
        for rnd in range(1):
            e(f"""s_lshl_b32 s51, s3, 5
            s_add_u32 s51, s51, s5
            s_add_u32 s51, s51, {OPT['ylo']}
            s_cmp_ge_u32 s51, {OPT['yhi']}
            s_cbranch_scc1 YT_d{rnd}
            s_mul_i32 s52, s51, 205
            s_lshr_b32 s52, s52, 11          ; kb = p/10
            s_mul_i32 s53, s52, 10
            s_sub_u32 s53, s51, s53          ; grp
            s_lshl_b32 s52, s52, 10
            s_cmp_ge_u32 s53, 4
            s_cbranch_scc1 YT_t{rnd}
            s_and_b32 s54, s4, 3
            s_lshl_b32 s54, s54, 2
            s_add_u32 s54, s54, s53
            s_mul_i32 s54, s54, {8*20480}
            s_add_u32 s54, s54, {XR_WS}
            s_branch YT_l{rnd}""")
            e.label(f"YT_t{rnd}")
            e(f"""s_sub_u32 s53, s53, 4
            s_lshr_b32 s54, s4, 2
            s_mul_i32 s54, s54, 6
            s_add_u32 s54, s54, s53
            s_mul_i32 s54, s54, {8*20480}
            s_add_u32 s54, s54, {T_WS}""")
            e.label(f"YT_l{rnd}")
            e(f"""s_add_u32 s54, s54, s52
            buffer_load_dword v7, v5, s[16:19], s54 offen""")
            e.label(f"YT_d{rnd}")

    def rlist(kk, b):
        l = []
        for mi in range(2):
            l.append(f"ds_read_b128 v[{b+24+4*mi}:{b+27+4*mi}], v4 offset:{kk*14336 + mi*1024}")
        for gt in range(6):
            l.append(f"ds_read_b128 v[{b+4*gt}:{b+4*gt+3}], v3 offset:{kk*14336 + gt*1024}")
        return l

    def block(b, rl):
        i = 0
        for gt in range(6):
            for mi in range(2):
                d = ACC + (gt * 2 + mi) * 4
                e(f"v_mfma_f32_16x16x32_bf16 v[{d}:{d+3}], v[{b+4*gt}:{b+4*gt+3}], v[{b+24+4*mi}:{b+27+4*mi}], v[{d}:{d+3}]")
                if i < len(rl):
                    e(rl[i]); i += 1

    def newslot():
        e(f"""v_add_u32 v3, s30, v1
        v_add_u32 v4, s30, v2
        s_add_u32 s30, s30, {Y_STAGE}
        s_cmp_ge_u32 s30, {Y_S*Y_STAGE}
        s_cselect_b32 s30, 0, s30""")

    e("s_barrier")
    stamp(e, 1)
    newslot()
    for r in rlist(0, FB[0]):
        e(r)
    e(f"s_mov_b32 s31, {Y_NST-1}")
    e.label("P2_loop")
    e("s_waitcnt lgkmcnt(0)")
    block(FB[0], rlist(1, FB[1]))
    e("s_waitcnt lgkmcnt(0)")
    e("s_barrier")
    newslot()
    block(FB[1], rlist(0, FB[0]))
    e("""s_sub_u32 s31, s31, 1
    s_cmp_lg_u32 s31, 0
    s_cbranch_scc1 P2_loop""")
    e("s_waitcnt lgkmcnt(0)")
    block(FB[0], rlist(1, FB[1]))
    e("s_waitcnt lgkmcnt(0)")
    block(FB[1], [])
    stamp(e, 2)
    e("""v_and_b32 v3, 15, v0
    v_lshrrev_b32 v4, 4, v0
    s_mov_b32 s52, 3072
    v_mul_lo_u32 v3, v3, s52
    v_and_b32 v5, 1, v4
    v_lshrrev_b32 v4, 1, v4
    v_lshlrev_b32 v5, 5, v5
    v_lshl_add_u32 v5, v4, 4, v5
    v_add_u32 v3, v3, v5
    s_lshl_b32 s51, s6, 7
    s_lshl_b32 s52, s3, 5
    s_add_u32 s51, s51, s52
    s_mul_i32 s54, s51, 3072
    s_mul_i32 s52, s7, 192
    s_add_u32 s54, s54, s52
    s_add_u32 s55, s54, 49152
    s_nop 7""")
    for mi in range(2):
        for a in range(3):
            P = 8 + (mi * 3 + a) * 4
            dA = ACC + ((2 * a) * 2 + mi) * 4
            dB = ACC + ((2 * a + 1) * 2 + mi) * 4
            e(f"""v_cvt_pk_bf16_f32 v{P}, v{dA}, v{dA+1}
            v_cvt_pk_bf16_f32 v{P+1}, v{dA+2}, v{dA+3}
            v_cvt_pk_bf16_f32 v{P+2}, v{dB}, v{dB+1}
            v_cvt_pk_bf16_f32 v{P+3}, v{dB+2}, v{dB+3}
            s_nop 1
            v_permlane16_swap_b32 v{P}, v{P+2}
            v_permlane16_swap_b32 v{P+1}, v{P+3}""")
            so = "s54" if mi == 0 else "s55"
            off = f" offset:{64*a}" if a else ""
            e("s_nop 1")
            e(f"buffer_store_dwordx4 v[{P}:{P+3}], v3, s[8:11], {so} offen{off}")
    stamp_flush(e, 4, 1)
    e.label("P2_end")
    e("s_endpgm")

def main(out):
    e = E()
    e.raw(HEADER.rstrip('\n'))
    e.raw(f"; @launch kernel=p1_kernel grid=({256 if OPT['touch'] and OPT['tmode'] == 1 else 240},1,1) block=(768,1,1) lds={P1_LDS}")
    e.raw(f"; @launch kernel=p2_kernel grid=(256,1,1) block=(512,1,1) lds={P2_LDS}")
    e.raw('.amdgcn_target "amdgcn-amd-amdhsa--gfx950"')
    e.raw(".text")
    e.raw(".globl p1_kernel")
    e.raw(".globl p2_kernel")
    p1_kernel(e)
    p2_kernel(e)
    e.raw('.section .rodata,"a"')
    for name, vg, acc in (("p1_kernel", 168, 168), ("p2_kernel", 144, 144)):
        e.raw(".p2align 6")
        e.raw(f""".amdhsa_kernel {name}
  .amdhsa_next_free_vgpr {vg}
  .amdhsa_next_free_sgpr 96
  .amdhsa_accum_offset {acc}
  .amdhsa_group_segment_fixed_size 0
  .amdhsa_kernarg_size 72
  .amdhsa_user_sgpr_count 2
  .amdhsa_user_sgpr_kernarg_segment_ptr 1
  .amdhsa_system_sgpr_workgroup_id_x 1
  .amdhsa_float_denorm_mode_32 3
.end_amdhsa_kernel""")
    open(out, 'w').write(e.text())

if __name__ == '__main__':
    for a in sys.argv[2:]:
        if a == 'diag':
            DIAG = True
        elif '=' in a:
            k, v = a.split('=')
            OPT[k] = int(v)
    main(sys.argv[1] if len(sys.argv) > 1 else 'standalone__weight_only_int_quip__prompt.s')
```

```python
import sys

HEADER = open('standalone__weight_only_int_quip__prompt.s.ref').read().split('; Override launch')[0]

XR_WS = 0
T_WS = 2621440
WS_BYTES = 268435456
OPT = dict(ldprio=1, noload=0, nocomp=0, touch=1, tdelta=8, xdelta=6, nt=0, nttouch=0, xtouch=0, samek=0, dbg=0, drop=0, split=16, zdpp=1, sdpp=1, rdfirst=1, inner=0, tmode=1, protouch=1, p0=8, xfirst=1, st1=1, st2=1, ytouch=0, xrate=2, bal=1, p0lo=0, p0r=1, ylead=3, xlead=2, ylo=20, yhi=80, tlead=2)

CUR_K = [0]
class E:
    def __init__(self):
        self.l = []
    def __call__(self, s):
        for line in s.strip('\n').split('\n'):
            t = line.strip()
            if OPT['noload'] and t.endswith(' lds'): continue
            if t.startswith('buffer_store') and not DIAG:
                pol = {0: '', 1: ' sc1', 2: ' nt', 3: ' sc0 sc1', 4: ' sc1 nt'}[OPT['st1'] if CUR_K[0] == 0 else OPT['st2']]
                t = t + pol
            if (OPT['drop'] & 1) and t.startswith('ds_read_b64_tr'): continue
            if (OPT['drop'] & 2) and t.endswith('; DQ'): continue
            if (OPT['drop'] & 8) and (t.startswith('ds_read_b128') or t.startswith('ds_read_b32')): continue
            if (OPT['drop'] & 4) and t.startswith('v_mfma'): continue
            if OPT['samek'] and (t.startswith('s_add_u32 s28, s28,') or t.startswith('s_add_u32 s27, s27,')): continue
            if OPT['nt'] and t.endswith(' lds') and ('s[8:11]' in t or 's[12:15]' in t): t = t[:-4] + ' nt lds'
            if OPT['nttouch'] and t.startswith('buffer_load_dword v'): t = t + ' nt'
            if OPT['nocomp'] and (t.startswith('ds_read') or t.startswith('v_mfma') or '_dpp' in t or t.startswith('v_cvt')): continue
            self.l.append('    ' + t)
    def label(self, s):
        self.l.append(s + ':')
    def raw(self, s):
        self.l.append(s)
    def text(self):
        return '\n'.join(self.l) + '\n'

DIAG = False
STAMP_WS = 64 << 20
def dbg_entry(e):
    if not OPT['dbg']: return
    e("""s_memrealtime s[90:91]
    s_memtime s[86:87]
    s_load_dwordx2 s[92:93], s[0:1], 56
    s_waitcnt lgkmcnt(0)
    s_mov_b32 s88, s92
    s_and_b32 s89, s93, 0xffff
    s_not_b32 s94, s90
    s_mov_b32 s90, 256
    s_mov_b32 s91, 0x00020000""")
DBGN = [0]
DBG_WS = 100 << 20
def dbg_exit(e, kern):
    if not OPT['dbg']: return
    DBGN[0] += 1
    lab = f"DBGX{DBGN[0]}"
    e(f"""s_and_b32 s95, s3, 3
    s_cmp_lg_u32 s95, 0
    s_cbranch_scc1 {lab}
    s_waitcnt vmcnt(0)
    s_memrealtime s[92:93]
    s_waitcnt lgkmcnt(0)
    s_not_b32 s94, s94
    v_mov_b32 v2, 0
    v_mov_b32 v4, s94
    v_mov_b32 v5, s92
    s_lshl_b32 s95, s2, 4
    s_lshl_b32 s93, s3, 1
    s_add_u32 s95, s95, s93
    s_add_u32 s95, s95, {DBG_WS + kern * 8192}
    buffer_store_dwordx2 v[4:5], v2, s[16:19], s95 offen""")
    if kern == 1:
        e(f"""s_or_b32 s95, s2, s3
        s_cmp_lg_u32 s95, 0
        s_cbranch_scc1 {lab}
        v_lshlrev_b32 v2, 4, v0""")
        for i in range(4):
            if i == 3:
                e("v_min_u32 v2, 752, v2")
            e(f"s_mov_b32 s95, {DBG_WS + i * 1024}")
            e(f"buffer_load_dwordx4 v[{8+4*i}:{11+4*i}], v2, s[16:19], s95 offen")
        e("s_waitcnt vmcnt(0)")
        for i in range(4):
            e(f"v_max_u32 v{9+4*i}, v{9+4*i}, v{11+4*i}")
            e(f"v_sub_u32 v{10+4*i}, v{9+4*i}, v{8+4*i}")
        e("""v_min_u32 v24, v8, v12
        v_min_u32 v24, v24, v16
        v_min_u32 v24, v24, v20
        v_max_u32 v25, v8, v12
        v_max_u32 v25, v25, v16
        v_max_u32 v25, v25, v20
        v_min_u32 v26, v9, v13
        v_min_u32 v26, v26, v17
        v_min_u32 v26, v26, v21
        v_max_u32 v27, v9, v13
        v_max_u32 v27, v27, v17
        v_max_u32 v27, v27, v21
        v_max_u32 v28, v10, v14
        v_max_u32 v28, v28, v18
        v_max_u32 v28, v28, v22
        s_mov_b32 s70, -1
        s_mov_b32 s71, 0
        s_mov_b32 s72, -1
        s_mov_b32 s73, 0
        s_mov_b32 s74, 0
        s_nop 1""")
        for l in range(64):
            e(f"""v_readlane_b32 s75, v24, {l}
            v_readlane_b32 s76, v25, {l}
            v_readlane_b32 s77, v26, {l}
            v_readlane_b32 s78, v27, {l}
            v_readlane_b32 s79, v28, {l}
            s_nop 3
            s_min_u32 s70, s70, s75
            s_max_u32 s71, s71, s76
            s_min_u32 s72, s72, s77
            s_max_u32 s73, s73, s78
            s_max_u32 s74, s74, s79""")
        e("""v_mov_b32 v2, 0
        v_mov_b32 v4, s70
        v_mov_b32 v5, s71
        v_mov_b32 v6, s72
        v_mov_b32 v7, s73
        buffer_store_dwordx4 v[4:7], v2, s[88:91], 0 offen
        v_mov_b32 v8, s74
        v_mov_b32 v9, s94
        v_mov_b32 v10, s92
        v_mov_b32 v11, 0
        buffer_store_dwordx4 v[8:11], v2, s[88:91], 0 offen offset:16""")
    e.label(lab)

def stamp(e, i):
    if i == 0 and OPT['dbg']: dbg_entry(e)
    if not DIAG: return
    e(f"""s_memtime s[{64+4*i}:{65+4*i}]
    s_memrealtime s[{66+4*i}:{67+4*i}]
    s_waitcnt lgkmcnt(0)""")
def stamp_flush(e, n, kern):
    if OPT['dbg']: dbg_exit(e, kern)
    if not DIAG: return
    e(f"""s_waitcnt vmcnt(0)""")
    stamp(e, n - 1)
    e(f"""s_lshl_b32 s60, s2, 4
    s_add_u32 s60, s60, s3
    s_lshl_b32 s60, s60, 7
    s_add_u32 s60, s60, {STAMP_WS + kern * (1 << 20)}
    v_mov_b32 v2, 0
    s_getreg_b32 s61, hwreg(HW_REG_XCC_ID)
    s_getreg_b32 s62, hwreg(HW_REG_HW_ID)
    v_mov_b32 v4, s61
    v_mov_b32 v5, s62
    buffer_store_dwordx2 v[4:5], v2, s[16:19], s60 offen offset:112
    s_waitcnt vmcnt(0)
    v_mov_b32 v4, s84
    v_mov_b32 v5, s85
    buffer_store_dwordx2 v[4:5], v2, s[16:19], s60 offen offset:96
    s_waitcnt vmcnt(0)""")
    for i in range(n):
        e(f"""v_mov_b32 v4, s{64+4*i}
        v_mov_b32 v5, s{65+4*i}
        v_mov_b32 v6, s{66+4*i}
        v_mov_b32 v7, s{67+4*i}
        buffer_store_dwordx4 v[4:7], v2, s[16:19], s60 offen offset:{16*i}
        s_waitcnt vmcnt(0)""")

def srd(e, d, lo, nbytes):
    e(f"""s_mov_b32 s{d}, s{lo}
    s_and_b32 s{d+1}, s{lo+1}, 0xffff
    s_mov_b32 s{d+2}, {nbytes}
    s_mov_b32 s{d+3}, 0x00020000""")

T_S = 5
T_STAGE = 28672
T_QW = 0
T_V = 16384
T_ZS = T_S * T_STAGE
T_NST = 24
X_S = 4
X_STAGE = 32768
X_U = 0
X_X = 16384
X_NST = 10
P1_LDS = T_ZS + 12288

def loader_loop(e, L, nst, RING, stage_bytes, npieces, issue, lead=None):
    S = (lead + 1) if lead else RING
    if OPT['ldprio']:
        e(f"s_setprio {OPT['ldprio']}")
    def rec():
        if DIAG:
            e("""s_memtime s[62:63]
            s_waitcnt lgkmcnt(0)
            v_mov_b32 v21, s62
            v_cmp_eq_u32 vcc, s61, v0
            s_nop 1
            v_cndmask_b32 v20, v20, v21, vcc
            s_add_u32 s61, s61, 1""")
    def adv():
        e(f"""s_add_u32 s29, s29, {stage_bytes}
        s_cmp_ge_u32 s29, {RING*stage_bytes}
        s_cselect_b32 s29, 0, s29""")
    e("s_mov_b32 s29, 0")
    if DIAG:
        e("s_mov_b32 s61, 0\nv_mov_b32 v20, 0")
        rec()
    issued = 0
    first = min(2, S - 1)
    for _ in range(first):
        issue(); adv(); issued += 1
    s = 0
    while issued < s + S - 1:
        e(f"s_waitcnt vmcnt({npieces*(issued-1-s)})")
        e("s_barrier")
        rec()
        for _ in range(2):
            if issued < s + S:
                issue(); adv(); issued += 1
        s += 1
    nloop = nst - issued
    e(f"s_mov_b32 s31, {nloop}")
    e.label(f"{L}_ldloop")
    e(f"s_waitcnt vmcnt({npieces*(S-2)})")
    e("s_barrier")
    rec()
    issue()
    adv()
    e(f"""s_sub_u32 s31, s31, 1
    s_cmp_lg_u32 s31, 0
    s_cbranch_scc1 {L}_ldloop""")
    s += nloop
    for ss in range(s, nst):
        e(f"s_waitcnt vmcnt({npieces*(nst-1-ss)})")
        e("s_barrier")
        rec()
    if DIAG:
        kern = 1 if L == "YL" else 0
        e(f"""s_lshl_b32 s60, s2, 2
        s_add_u32 s60, s60, s50
        s_lshl_b32 s60, s60, 8
        s_add_u32 s60, s60, {STAMP_WS + (4 + kern) * (1 << 20)}
        v_lshlrev_b32 v21, 2, v0
        buffer_store_dword v20, v21, s[16:19], s60 offen""")
    e("s_endpgm")

def dequant_ops(R, ZD, NZ, SC, P, A):
    ops = []
    for i in range(8):
        ops.append(f"v_cvt_f32_i32 v{R+i}, v{R+i}")
    for i in range(8):
        if OPT['zdpp']:
            ops.append(f"v_add_f32_dpp v{R+i}, v{ZD}, v{R+i} row_newbcast:{i} row_mask:0xf bank_mask:0xf")
        else:
            ops.append(f"v_add_f32 v{R+i}, v{NZ+i}, v{R+i}")
    for i in range(4):
        ops.append(f"v_cvt_pk_bf16_f32 v{P+i}, v{R+2*i}, v{R+2*i+1}")
    for i in range(4):
        ops.append(f"v_lshlrev_b32 v{R+2*i}, 16, v{P+i}")
        ops.append(f"v_and_b32 v{R+2*i+1}, 0xffff0000, v{P+i}")
    for i in range(8):
        if OPT['sdpp']:
            ops.append(f"v_mul_f32_dpp v{R+i}, v{ZD}, v{R+i} row_newbcast:{8+i} row_mask:0xf bank_mask:0xf")
        else:
            ops.append(f"v_mul_f32 v{R+i}, v{SC+i}, v{R+i}")
    for i in range(4):
        ops.append(f"v_cvt_pk_bf16_f32 v{A+i}, v{R+2*i}, v{R+2*i+1}")
    return [o + ' ; DQ' for o in ops]

def t_loader(e):
    e("""s_sub_u32 s50, s3, 8
    v_and_b32 v60, 15, v0
    v_lshrrev_b32 v61, 4, v0
    s_mov_b32 s52, 6144""")
    for i in range(4):
        e(f"""v_add_u32 v62, {4*i}, v61
        v_mul_lo_u32 v63, v62, s52
        v_xor_b32 v62, v60, v62
        v_lshl_add_u32 v{1+i}, v62, 4, v63""")
        if i:
            e(f"v_subrev_u32 v{1+i}, {1024*i}, v{1+i}")
    e(f"""s_lshl_b32 s28, s6, 6
    s_lshl_b32 s51, s50, 4
    s_add_u32 s28, s28, s51
    s_mul_i32 s28, s28, 6144
    s_lshl_b32 s53, s50, 12
    s_add_u32 s53, s53, {T_QW}
    s_mov_b32 s52, 3072""")
    for j in range(3):
        e(f"""v_add_u32 v62, {64*j}, v0
        v_mul_u32_u24 v63, 171, v62
        v_lshrrev_b32 v63, 11, v63
        v_mul_u32_u24 v64, 12, v63
        v_sub_u32 v62, v62, v64
        v_lshrrev_b32 v64, 3, v63
        v_and_b32 v64, 1, v64
        v_lshlrev_b32 v64, 1, v64
        v_xor_b32 v62, v62, v64
        v_mul_lo_u32 v63, v63, s52
        v_lshl_add_u32 v{5+j}, v62, 4, v63""")
        if j:
            e(f"v_subrev_u32 v{5+j}, {1024*j}, v{5+j}")
    e(f"""s_mul_i32 s27, s50, 49152
    s_mul_i32 s51, s7, 192
    s_add_u32 s27, s27, s51
    s_mul_i32 s54, s50, 3072
    s_add_u32 s54, s54, {T_V}
    s_waitcnt lgkmcnt(0)""")
    srd(e, 8, 34, 3932160)
    srd(e, 12, 42, 4718592)
    if DIAG:
        srd(e, 16, 48, WS_BYTES)
    def issue():
        e("s_add_u32 m0, s29, s53")
        e("s_nop 0")
        for i in range(4):
            off = f" offset:{1024*i}" if i else ""
            e(f"buffer_load_dwordx4 v{1+i}, s[8:11], s28 offen{off} lds")
        e("s_add_u32 m0, s29, s54")
        e("s_add_u32 s28, s28, 256")
        for j in range(3):
            off = f" offset:{1024*j}" if j else ""
            e(f"buffer_load_dwordx4 v{5+j}, s[12:15], s27 offen{off} lds")
        e(f"s_add_u32 s27, s27, {64*3072}")
    loader_loop(e, "TL", T_NST, T_S, T_STAGE, 7, issue, lead=OPT["tlead"])

def touch_setup(e, tag, vo, t):
    e(f"""s_cmp_ge_u32 s51, 10
    s_cbranch_scc1 {tag}_tv
    s_lshl_b32 s51, s51, 6
    v_add_u32 v{t}, s51, v0
    v_lshrrev_b32 v{t+1}, 1, v{t}
    v_and_b32 v{t}, 1, v{t}
    s_mov_b32 s53, 6144
    v_mul_lo_u32 v{t+1}, v{t+1}, s53
    v_lshl_add_u32 v{vo}, v{t}, 7, v{t+1}
    s_and_b32 s27, s4, 1
    s_mul_i32 s27, s27, {320*6144}
    s_lshl_b32 s52, s26, 8
    s_add_u32 s27, s27, s52
    s_mov_b32 s52, s34
    s_and_b32 s53, s35, 0xffff
    s_mov_b32 s54, 3932160
    s_mov_b32 s55, 0x00020000
    s_branch {tag}_td""")
    e.label(f"{tag}_tv")
    e(f"""s_sub_u32 s51, s51, 10
    s_lshl_b32 s51, s51, 6
    v_add_u32 v{t}, s51, v0
    v_mul_u32_u24 v{t+1}, 171, v{t}
    v_lshrrev_b32 v{t+1}, 10, v{t+1}
    v_mul_u32_u24 v{t+2}, 6, v{t+1}
    v_sub_u32 v{t}, v{t}, v{t+2}
    s_mov_b32 s53, 3072
    v_mul_lo_u32 v{t+1}, v{t+1}, s53
    v_lshl_add_u32 v{vo}, v{t}, 7, v{t+1}
    s_lshr_b32 s27, s4, 1
    s_mul_i32 s27, s27, 768
    s_mul_i32 s52, s26, {64*3072}
    s_add_u32 s27, s27, s52
    s_mov_b32 s52, s42
    s_and_b32 s53, s43, 0xffff
    s_mov_b32 s54, 4718592
    s_mov_b32 s55, 0x00020000""")
    e.label(f"{tag}_td")

def idle_toucher(e):
    e("""s_cmp_lg_u32 s3, 0
    s_cbranch_scc1 P1_end
    s_sub_u32 s24, s5, 30""")
    e.label("IT_loop")
    e("""s_mul_i32 s26, s24, 171
    s_lshr_b32 s26, s26, 9
    s_mul_i32 s51, s26, 3
    s_sub_u32 s51, s24, s51
    s_add_u32 s51, s51, 13
    s_add_u32 s26, s26, """ + str(OPT['p0'] or 4))
    touch_setup(e, "IT", 3, 20)
    e("""buffer_load_dword v2, v3, s[52:55], s27 offen
    s_add_u32 s24, s24, 2
    s_cmp_lt_u32 s24, """ + str(3 * (24 - (OPT['p0'] or 4))) + """
    s_cbranch_scc1 IT_loop
    s_endpgm""")

def tcheck(e, tag, step=None):
    if step is None:
        step = 100 if OPT['tmode'] == 1 else 10
    e(f"""s_cmp_gt_u32 s26, s25
    s_cbranch_scc1 {tag}_nt
    s_cmp_ge_u32 s26, {T_NST}
    s_cbranch_scc1 {tag}_nt
    buffer_load_dword v2, v3, s[52:55], s27 offen
    s_add_u32 s26, s26, {step}
    s_add_u32 s27, s27, s28""")
    e.label(f"{tag}_nt")

def t_consumer(e, par):
    L = f"TC{par}"
    e("""s_and_b32 s50, s3, 3
    v_and_b32 v60, 15, v0          ; c
    v_lshrrev_b32 v61, 4, v0        ; q""")
    if par == 0:
        e(f"""s_cmp_ge_u32 s3, 3
        s_cbranch_scc1 {L}_nozs
        s_lshl_b32 s51, s3, 10
        v_lshlrev_b32 v62, 4, v0
        v_add_u32 v62, s51, v62
        buffer_load_dwordx4 v[64:67], v62, s[20:23], 0 offen
        buffer_load_dwordx4 v[68:71], v62, s[24:27], 0 offen
        s_waitcnt vmcnt(0)""")
        for i in range(4):
            e(f"""v_lshlrev_b32 v{16+2*i}, 16, v{64+i}
            v_and_b32 v{17+2*i}, 0xffff0000, v{64+i}
            v_lshlrev_b32 v{24+2*i}, 16, v{68+i}
            v_and_b32 v{25+2*i}, 0xffff0000, v{68+i}""")
        for i in range(8):
            e(f"v_xor_b32 v{16+i}, 0x80000000, v{16+i}")
        e(f"""s_lshl_b32 s51, s3, 12
        v_lshlrev_b32 v62, 6, v0
        v_add_u32 v62, s51, v62
        v_add_u32 v62, {T_ZS}, v62
        ds_write_b128 v62, v[16:19]
        ds_write_b128 v62, v[20:23] offset:16
        ds_write_b128 v62, v[24:27] offset:32
        ds_write_b128 v62, v[28:31] offset:48
        s_waitcnt lgkmcnt(0)""")
        e.label(f"{L}_nozs")
    if OPT['touch'] and OPT['tmode'] == 1:
        e(f"""s_add_u32 s26, s5, {OPT['p0'] or 4}
        s_mov_b32 s51, s3""")
        touch_setup(e, L, 3, 62)
        e(f"""s_mov_b32 s28, 0
        s_mov_b32 s25, {OPT['tdelta'] + par}""")
        if OPT['protouch']:
            tcheck(e, L + "p0", 100)
    elif OPT['touch']:
            e(f"""s_lshl_b32 s51, s5, 3
            s_add_u32 s51, s51, s3
            s_lshr_b32 s26, s51, 4          ; sigma0
            s_and_b32 s51, s51, 15          ; u
            s_cmp_ge_u32 s51, 10
            s_cbranch_scc1 {L}_tv
            s_lshl_b32 s51, s51, 6
            v_add_u32 v62, s51, v0          ; t
            v_lshrrev_b32 v63, 1, v62       ; row
            v_and_b32 v62, 1, v62
            s_mov_b32 s53, 6144
            v_mul_lo_u32 v63, v63, s53
            v_lshl_add_u32 v3, v62, 7, v63
            s_and_b32 s27, s4, 1
            s_mul_i32 s27, s27, {320*6144}
            s_lshl_b32 s52, s26, 8
            s_add_u32 s27, s27, s52
            s_mov_b32 s28, 2560
            s_mov_b32 s52, s34
            s_and_b32 s53, s35, 0xffff
            s_mov_b32 s54, 3932160
            s_mov_b32 s55, 0x00020000
            s_branch {L}_td""")
            e.label(f"{L}_tv")
            e(f"""s_sub_u32 s51, s51, 10
            s_lshl_b32 s51, s51, 6
            v_add_u32 v62, s51, v0          ; t in 0..383
            v_mul_u32_u24 v63, 171, v62
            v_lshrrev_b32 v63, 10, v63      ; row = t/6
            v_mul_u32_u24 v64, 6, v63
            v_sub_u32 v62, v62, v64
            s_mov_b32 s53, 3072
            v_mul_lo_u32 v63, v63, s53
            v_lshl_add_u32 v3, v62, 7, v63
            s_lshr_b32 s27, s4, 1
            s_mul_i32 s27, s27, 768
            s_mul_i32 s52, s26, {64*3072}
            s_add_u32 s27, s27, s52
            s_mov_b32 s28, {640*3072}
            s_mov_b32 s52, s42
            s_and_b32 s53, s43, 0xffff
            s_mov_b32 s54, 4718592
            s_mov_b32 s55, 0x00020000""")
            e.label(f"{L}_td")
            e(f"""s_cmp_ge_u32 s26, {T_S-1}
            s_cbranch_scc1 {L}_t0
            s_add_u32 s26, s26, 10
            s_add_u32 s27, s27, s28""")
            e.label(f"{L}_t0")
            e(f"s_mov_b32 s25, {OPT['tdelta'] + par}      ; s + delta")
            tcheck(e, L + "p0")
            tcheck(e, L + "p1")
    e(f"""s_and_b32 s56, s3, 1            ; eh
    s_lshr_b32 s57, s3, 1
    s_and_b32 s57, s57, 1           ; kh
    s_lshl_b32 s51, s57, 3
    v_lshlrev_b32 v62, 1, v61
    v_add_u32 v62, s51, v62
    v_xor_b32 v62, v62, v60
    v_lshlrev_b32 v62, 4, v62
    v_lshl_add_u32 v62, v60, 8, v62
    s_lshl_b32 s51, s56, 13
    s_add_u32 s51, s51, {T_QW}
    v_add_u32 v5, s51, v62
    v_xor_b32 v6, 16, v5
    v_lshlrev_b32 v4, 2, v0
    s_lshl_b32 s51, s57, 8
    s_add_u32 s51, s51, {T_ZS + 512*par}
    v_add_u32 v4, s51, v4
    v_lshlrev_b32 v9, 6, v61
    v_add_u32 v9, s51, v9""")
    e(f"""v_lshrrev_b32 v62, 2, v60        ; r
    v_lshl_add_u32 v62, v61, 3, v62  ; 8q + r
    v_mul_u32_u24 v62, 192, v62
    v_and_b32 v63, 3, v60
    v_lshl_add_u32 v62, v63, 3, v62
    s_mul_i32 s51, s57, {32*192}
    s_add_u32 s51, s51, {T_V}
    v_add_u32 v62, s51, v62
    v_and_b32 v63, 1, v61
    v_lshl_add_u32 v10, v63, 5, v62
    v_xor_b32 v63, 1, v63
    v_lshl_add_u32 v11, v63, 5, v62""")
    RAW0 = 18
    RAW1 = [26, 34]
    ZD = [42, 43]
    P = 44
    A = 48
    B = [52, 76]
    ACC = 100
    NZ, SC = 148, 156
    REGZS = not OPT['zdpp']
    if REGZS:
        for i in range(16):
            e(f"v_mov_b32 v{NZ+i}, 0")
    for i in range(48):
        e(f"v_mov_b32 v{ACC+i}, 0")
    for i in range(24):
        e(f"v_mov_b32 v{B[1]+i}, 0")
    for i in range(8):
        e(f"v_mov_b32 v{RAW1[1]+i}, 0")
    e(f"v_mov_b32 v{ZD[1]}, 0")
    e(f"s_mov_b32 s30, {T_STAGE*par}")
    e("s_mov_b32 s31, 6")
    stamp(e, 1)
    if par == 1:
        e("s_barrier")
    def tmr(reg):
        if DIAG and OPT['inner']:
            e(f"""s_memtime s[{reg}:{reg+1}]
            s_waitcnt lgkmcnt(0)""")
    def rlist(X):
        rd = [f"ds_read_b128 v[{RAW0}:{RAW0+3}], v12",
              f"ds_read_b128 v[{RAW0+4}:{RAW0+7}], v13",
              f"ds_read_b128 v[{RAW1[X]}:{RAW1[X]+3}], v12 offset:4096",
              f"ds_read_b128 v[{RAW1[X]+4}:{RAW1[X]+7}], v13 offset:4096"]
        if not REGZS:
            rd.append(f"ds_read_b32 v{ZD[X]}, v4")
        for gt in range(6):
            a_ = 16 if gt % 2 == 0 else 17
            off = 64 * (gt // 2)
            rd.append(f"ds_read_b64_tr_b16 v[{B[X]+4*gt}:{B[X]+4*gt+1}], v{a_} offset:{off}")
            rd.append(f"ds_read_b64_tr_b16 v[{B[X]+4*gt+2}:{B[X]+4*gt+3}], v{a_} offset:{off+768}")
        return rd
    def comp(f, X):
        R = RAW0 if f == 0 else RAW1[X]
        return dequant_ops(R, ZD[X], NZ, SC, P, A) + ["s_nop 1"] + \
            [f"v_mfma_f32_16x16x32_bf16 v[{ACC+24*f+4*gt}:{ACC+24*f+4*gt+3}], v[{A}:{A+3}], v[{B[X]+4*gt}:{B[X]+4*gt+3}], v[{ACC+24*f+4*gt}:{ACC+24*f+4*gt+3}]" for gt in range(6)]
    def mix(rd, cp):
        if OPT['rdfirst']:
            for r in rd: e(r)
            for op in cp: e(op)
            return
        i = 0
        for j, op in enumerate(cp):
            if i < len(rd) and j % 2 == 0:
                e(rd[i]); i += 1
            e(op)
        assert i == len(rd)
    if DIAG:
        e("s_mov_b32 s84, 0\ns_mov_b32 s85, 0")
    A1 = 164
    def mfl(f, Ar, X):
        return [f"v_mfma_f32_16x16x32_bf16 v[{ACC+24*f+4*gt}:{ACC+24*f+4*gt+3}], v[{Ar}:{Ar+3}], v[{B[X]+4*gt}:{B[X]+4*gt+3}], v[{ACC+24*f+4*gt}:{ACC+24*f+4*gt+3}]" for gt in range(6)]
    if OPT['bal']:
        for i in range(4):
            e(f"v_mov_b32 v{A1+i}, 0")
    def unit(X, tag):
        e("s_barrier")
        tmr(80)
        e("""v_add_u32 v12, s30, v5
        v_add_u32 v13, s30, v6
        v_add_u32 v16, s30, v10
        v_add_u32 v17, s30, v11""")
        if OPT['bal']:
            rd = rlist(X)
            m = mfl(1, A1, 1 - X)
            i = 0
            for j, r in enumerate(rd):
                e(r)
                if j >= 5 and j % 2 == 1 and i < 6:
                    e(m[i]); i += 1
            assert i == 6
        else:
            cp = comp(1, 1 - X)
            if REGZS:
                zr = [f"ds_read_b128 v[{NZ+4*i}:{NZ+4*i+3}], v9 offset:{16*i}" for i in range(4)]
                cp = cp[:40] + zr + cp[40:]
            mix(rlist(X), cp)
        e(f"""v_add_u32 v4, 1024, v4
        v_add_u32 v9, 1024, v9
        s_add_u32 s30, s30, {2*T_STAGE}
        s_cmp_ge_u32 s30, {T_S*T_STAGE}
        s_cselect_b32 s51, {T_S*T_STAGE}, 0
        s_sub_u32 s30, s30, s51
        s_waitcnt lgkmcnt(0)""")
        tmr(82)
        if DIAG:
            e("s_sub_u32 s82, s82, s80\ns_add_u32 s84, s84, s82")
        e("s_barrier")
        tmr(80)
        if OPT['touch']:
            e("s_add_u32 s25, s25, 2")
            tcheck(e, L + tag)
        if OPT['bal']:
            for op in dequant_ops(RAW0, ZD[X], NZ, SC, P, A):
                e(op)
            d1 = dequant_ops(RAW1[X], ZD[X], NZ, SC, P, A1)
            m = mfl(0, A, X)
            e(d1[0]); e(d1[1])
            k = 2
            for gt in range(6):
                e(m[gt])
                for op in d1[k:k+7]:
                    e(op)
                k += 7
        else:
            for op in comp(0, X):
                e(op)
        tmr(82)
        if DIAG:
            e("s_sub_u32 s82, s82, s80\ns_add_u32 s85, s85, s82")
    e.label(f"{L}_loop")
    unit(0, "la")
    unit(1, "lb")
    e(f"""s_sub_u32 s31, s31, 1
    s_cmp_lg_u32 s31, 0
    s_cbranch_scc1 {L}_loop""")
    if par == 0:
        e("s_barrier")
    if OPT['bal']:
        e("s_nop 1")
        for op in mfl(1, A1, 1):
            e(op)
    else:
        for op in comp(1, 1):
            e(op)
    stamp(e, 2)
    e(f"""s_mul_i32 s51, s56, 49152
    s_mul_i32 s52, s57, 12288
    s_add_u32 s51, s51, s52
    s_add_u32 s51, s51, {24576*par}
    v_lshlrev_b32 v15, 4, v0
    v_add_u32 v14, s51, v15
    s_mul_i32 s51, s56, 49152
    v_add_u32 v13, s51, v15
    s_nop 7""")
    for kh_ in range(2):
        j = kh_ + 2 * par
        if kh_ == 0:
            e(f"""s_cmp_eq_u32 s57, 1
            s_cbranch_scc1 {L}_ep1""")
        else:
            e.label(f"{L}_ep1")
        for f in range(2):
            for gt in range(6):
                if gt // 2 != j:
                    e(f"ds_write_b128 v14, v[{ACC+24*f+4*gt}:{ACC+24*f+4*gt+3}] offset:{(f*6+gt)*1024}")
        if j < 3:
            e(f"""s_lshl_b32 s51, s6, 1
            s_add_u32 s51, s51, s56
            s_mul_i32 s54, s7, 120
            s_add_u32 s54, s54, s51
            s_add_u32 s54, s54, {40*j}
            s_lshl_b32 s54, s54, 10
            s_add_u32 s54, s54, {T_WS}
            s_add_u32 s55, s54, 20480""")
        e("s_waitcnt lgkmcnt(0)")
        e("s_barrier")
        if j < 3:
            srcs = [x for x in range(4) if x != j]
            n = 0
            for g2 in range(2):
                gt = 2 * j + g2
                for f in range(2):
                    for si, x in enumerate(srcs):
                        r = 20 + ((g2 * 2 + f) * 3 + si) * 4
                        e(f"ds_read_b128 v[{r}:{r+3}], v13 offset:{x*12288 + (f*6+gt)*1024}")
            for g2 in range(2):
                gt = 2 * j + g2
                for f in range(2):
                    e(f"s_waitcnt lgkmcnt({12 - 3*(g2*2+f+1)})")
                    d = ACC + 24 * f + 4 * gt
                    for si in range(3):
                        r = 20 + ((g2 * 2 + f) * 3 + si) * 4
                        for i in range(4):
                            e(f"v_add_f32 v{d+i}, v{d+i}, v{r+i}")
                    e(f"v_cvt_pk_bf16_f32 v{72+4*g2+2*f}, v{d}, v{d+1}")
                    e(f"v_cvt_pk_bf16_f32 v{73+4*g2+2*f}, v{d+2}, v{d+3}")
                e(f"buffer_store_dwordx4 v[{72+4*g2}:{75+4*g2}], v15, s[16:19], s{54+g2} offen")
        if kh_ == 0:
            stamp_flush(e, 4, 0)
            e("s_endpgm")
    stamp_flush(e, 4, 0)
    e("s_endpgm")

def x_loader(e):
    e("""s_sub_u32 s50, s3, 8
    v_and_b32 v60, 15, v0
    v_lshrrev_b32 v61, 4, v0
    s_mov_b32 s52, 1280""")
    for i in range(4):
        e(f"""v_add_u32 v62, {4*i}, v61
        v_mul_lo_u32 v63, v62, s52
        v_or_b32 v62, {((i>>1)&1)<<2}, v61
        v_lshlrev_b32 v62, 1, v62
        v_xor_b32 v62, v60, v62
        v_lshl_add_u32 v{1+i}, v62, 4, v63""")
        if i:
            e(f"v_subrev_u32 v{1+i}, {1024*i}, v{1+i}")
    e(f"""s_mul_i32 s28, s50, 20480
    s_lshl_b32 s51, s6, 8
    s_add_u32 s28, s28, s51
    s_lshl_b32 s53, s50, 12
    s_add_u32 s53, s53, {X_U}""")
    for i in range(4):
        e(f"""v_lshrrev_b32 v62, 3, v0
        v_add_u32 v62, {8*i}, v62
        v_mul_lo_u32 v63, v62, s52
        v_add_u32 v62, {4*i}, v61
        v_and_b32 v62, 7, v62
        v_and_b32 v64, 7, v0
        v_xor_b32 v62, v64, v62
        v_lshl_add_u32 v{5+i}, v62, 4, v63""")
        if i:
            e(f"v_subrev_u32 v{5+i}, {1024*i}, v{5+i}")
    e(f"""s_lshl_b32 s27, s7, 7
    s_lshl_b32 s51, s50, 5
    s_add_u32 s27, s27, s51
    s_mul_i32 s27, s27, 1280
    s_lshl_b32 s54, s50, 12
    s_add_u32 s54, s54, {X_X}
    s_waitcnt lgkmcnt(0)""")
    srd(e, 8, 40, 819200)
    srd(e, 12, 32, 2621440)
    if DIAG:
        srd(e, 16, 48, WS_BYTES)
    def issue():
        e("s_add_u32 m0, s29, s53")
        e("s_nop 0")
        for i in range(4):
            off = f" offset:{1024*i}" if i else ""
            e(f"buffer_load_dwordx4 v{1+i}, s[8:11], s28 offen{off} lds")
        e("s_add_u32 m0, s29, s54")
        e(f"s_add_u32 s28, s28, {64*1280}")
        for i in range(4):
            off = f" offset:{1024*i}" if i else ""
            e(f"buffer_load_dwordx4 v{5+i}, s[12:15], s27 offen{off} lds")
        e("s_add_u32 s27, s27, 128")
    loader_loop(e, "XL", X_NST, X_S, X_STAGE, 8, issue, lead=OPT["xlead"])

def x_consumer(e):
    L = "XC"
    if OPT['xtouch']:
        for rnd in range(2):
            e(f"""s_lshl_b32 s51, s5, 3
            s_add_u32 s51, s51, s3
            s_add_u32 s51, s51, {14*OPT['xfirst'] + 80*rnd}
            s_cmp_ge_u32 s51, 140
            s_cbranch_scc1 {L}_td{rnd}
            s_mul_i32 s52, s51, 147
            s_lshr_b32 s52, s52, 11         ; stage = p/14
            s_mul_i32 s53, s52, 14
            s_sub_u32 s51, s51, s53         ; u
            s_cmp_ge_u32 s51, 4
            s_cbranch_scc1 {L}_tu{rnd}
            s_lshl_b32 s51, s51, 6
            v_add_u32 v62, s51, v0          ; row
            s_mov_b32 s53, 1280
            v_mul_lo_u32 v62, v62, s53
            s_mul_i32 s53, s4, {256*1280}
            s_lshl_b32 s52, s52, 7
            s_add_u32 s53, s53, s52
            buffer_load_dword v{1+rnd}, v62, s[12:15], s53 offen
            s_branch {L}_td{rnd}""")
            e.label(f"{L}_tu{rnd}")
            e(f"""s_sub_u32 s51, s51, 4
            s_lshl_b32 s51, s51, 13
            v_lshlrev_b32 v62, 7, v0
            s_mul_i32 s52, s52, {64*1280}
            s_add_u32 s53, s51, s52
            buffer_load_dword v{1+rnd}, v62, s[8:11], s53 offen""")
            e.label(f"{L}_td{rnd}")
    e("""v_and_b32 v60, 15, v0          ; c
    v_lshrrev_b32 v61, 4, v0        ; q
    s_and_b32 s56, s3, 1
    s_lshr_b32 s57, s3, 1
    v_lshrrev_b32 v62, 2, v60        ; r
    v_and_b32 v63, 1, v61
    v_lshl_add_u32 v63, v63, 2, v62  ; g
    v_lshl_add_u32 v62, v61, 3, v62  ; 8q+r
    v_lshlrev_b32 v62, 8, v62
    v_and_b32 v64, 3, v60
    v_lshl_add_u32 v62, v64, 3, v62
    s_lshl_b32 s51, s56, 2""")
    for a in range(4):
        e(f"""s_add_u32 s58, s51, {a}
        v_xor_b32 v64, s58, v63
        v_lshl_add_u32 v{5+a}, v64, 5, v62""")
        if X_U:
            e(f"v_add_u32 v{5+a}, {X_U}, v{5+a}")
    e(f"""v_lshrrev_b32 v62, 1, v60
    v_xor_b32 v62, v62, v61
    v_lshlrev_b32 v62, 4, v62
    v_lshl_add_u32 v62, v60, 7, v62
    s_lshl_b32 s51, s57, 12
    s_add_u32 s51, s51, {X_X}
    v_add_u32 v9, s51, v62
    v_xor_b32 v10, 64, v9""")
    for i in range(32):
        e(f"v_mov_b32 v{96+i}, 0")
    e("s_mov_b32 s30, 0")
    e(f"s_mov_b32 s31, {X_NST}")
    stamp(e, 1)
    e("s_mov_b32 s24, s5")
    e("s_mov_b32 s25, 0")
    e.label(f"{L}_loop")
    e("s_barrier")
    if OPT['touch'] and OPT['tmode'] == 1:
        for r in range(OPT['xrate']):
            e(f"""s_and_b32 s51, s25, 7
            s_cmp_lg_u32 s51, s3
            s_cbranch_scc1 {L}_nt{r}
            s_mul_i32 s26, s24, 205
            s_lshr_b32 s26, s26, 10
            s_mul_i32 s51, s26, 5
            s_sub_u32 s51, s24, s51
            s_add_u32 s51, s51, 8
            s_add_u32 s26, s26, {OPT['p0'] or 4}
            s_cmp_ge_u32 s26, 24
            s_cbranch_scc1 {L}_nt{r}""")
            touch_setup(e, L + f"x{r}", 3, 20)
            e("buffer_load_dword v2, v3, s[52:55], s27 offen")
            e.label(f"{L}_nt{r}")
            e("""s_add_u32 s24, s24, 10
            s_add_u32 s25, s25, 1""")
    for a in range(6):
        e(f"v_add_u32 v{11+a}, s30, v{5+a}")
    e(f"""s_add_u32 s30, s30, {X_STAGE}
    s_cmp_ge_u32 s30, {X_S*X_STAGE}
    s_cselect_b32 s30, 0, s30""")
    for kh in range(2):
        base = 32 + 32 * kh
        for a in range(4):
            e(f"ds_read_b64_tr_b16 v[{base+4*a}:{base+4*a+1}], v{11+a} offset:{8192*kh}")
            e(f"ds_read_b64_tr_b16 v[{base+4*a+2}:{base+4*a+3}], v{11+a} offset:{8192*kh+1024}")
        for mt in range(2):
            e(f"ds_read_b128 v[{base+16+4*mt}:{base+19+4*mt}], v{15+kh} offset:{2048*mt}")
    for kh in range(2):
        base = 32 + 32 * kh
        e(f"s_waitcnt lgkmcnt({10 if kh == 0 else 0})")
        for a in range(4):
            for mt in range(2):
                d = 96 + 8 * a + 4 * mt
                e(f"v_mfma_f32_16x16x32_bf16 v[{d}:{d+3}], v[{base+4*a}:{base+4*a+3}], v[{base+16+4*mt}:{base+19+4*mt}], v[{d}:{d+3}]")
    e(f"""s_sub_u32 s31, s31, 1
    s_cmp_lg_u32 s31, 0
    s_cbranch_scc1 {L}_loop""")
    stamp(e, 2)
    e(f"""s_lshl_b32 s51, s7, 3
    s_lshl_b32 s52, s57, 1
    s_add_u32 s51, s51, s52
    s_mul_i32 s51, s51, 20
    s_lshl_b32 s52, s6, 2
    s_add_u32 s51, s51, s52
    s_lshl_b32 s52, s56, 1
    s_add_u32 s51, s51, s52
    s_lshl_b32 s54, s51, 10
    s_add_u32 s54, s54, {XR_WS}
    s_add_u32 s55, s54, 20480
    v_lshlrev_b32 v62, 4, v0
    s_nop 7""")
    for mt in range(2):
        for kb in range(2):
            P = 32 + 8 * mt + 4 * kb
            d0 = 96 + 8 * (2 * kb) + 4 * mt
            d1 = 96 + 8 * (2 * kb + 1) + 4 * mt
            e(f"""v_cvt_pk_bf16_f32 v{P}, v{d0}, v{d0+1}
            v_cvt_pk_bf16_f32 v{P+1}, v{d0+2}, v{d0+3}
            v_cvt_pk_bf16_f32 v{P+2}, v{d1}, v{d1+1}
            v_cvt_pk_bf16_f32 v{P+3}, v{d1+2}, v{d1+3}""")
            so = "s54" if mt == 0 else "s55"
            off = f" offset:{1024*kb}" if kb else ""
            e(f"buffer_store_dwordx4 v[{P}:{P+3}], v62, s[16:19], {so} offen{off}")
    stamp_flush(e, 4, 0)
    e("s_endpgm")

def t_ids(e):
    e("""s_mul_i32 s7, s5, 52
    s_lshr_b32 s7, s7, 8          ; i/5
    s_mul_i32 s51, s7, 5
    s_sub_u32 s6, s5, s51         ; i%5
    s_and_b32 s51, s4, 1
    s_mul_i32 s51, s51, 5
    s_add_u32 s6, s6, s51
    s_lshr_b32 s51, s4, 1
    s_lshl_b32 s51, s51, 2
    s_add_u32 s7, s7, s51""")

def x_ids(e):
    e("""s_sub_u32 s5, s5, 20
    s_cmp_ge_u32 s5, 5
    s_cselect_b32 s51, 1, 0
    s_mul_i32 s52, s51, 5
    s_sub_u32 s6, s5, s52
    s_lshl_b32 s7, s4, 1
    s_add_u32 s7, s7, s51""")

def p1_kernel(e):
    e.raw(".p2align 8")
    e.raw(".type p1_kernel,@function")
    e.label("p1_kernel")
    e(f"""s_cmp_ge_u32 s2, {256 if OPT['touch'] and OPT['tmode'] == 1 else 240}
    s_cbranch_scc1 P1_end""")
    stamp(e, 0)
    e("""s_load_dwordx16 s[32:47], s[0:1], 0
    s_load_dwordx2 s[48:49], s[0:1], 64
    v_lshrrev_b32 v1, 6, v0
    v_and_b32 v0, 63, v0
    s_and_b32 s4, s2, 7
    s_lshr_b32 s5, s2, 3
    v_readfirstlane_b32 s3, v1
    s_nop 3
    s_cmp_lt_u32 s3, 8
    s_cbranch_scc1 P1_cons
    s_cmp_ge_u32 s5, 30
    s_cbranch_scc1 P1_end
    s_cmp_ge_u32 s5, 20
    s_cbranch_scc1 P1_xl""")
    t_ids(e)
    t_loader(e)
    e.label("P1_xl")
    x_ids(e)
    x_loader(e)
    e.label("P1_cons")
    e("s_waitcnt lgkmcnt(0)")
    srd(e, 16, 48, WS_BYTES)
    P0 = OPT['p0']
    if OPT['touch'] and OPT['tmode'] == 1 and P0:
        R = OPT['p0r']
        nw = (P0 - OPT['p0lo']) // 2 // R
        e(f"""s_cmp_lt_u32 s3, 4
        s_cbranch_scc1 P0_done
        s_cmp_ge_u32 s3, {4 + nw}
        s_cbranch_scc1 P0_done""")
        for r in range(R):
            e(f"""s_sub_u32 s51, s3, {4 - nw*r}
            s_lshl_b32 s51, s51, 5
            s_add_u32 s51, s51, s5
            s_lshr_b32 s26, s51, 4
            s_add_u32 s26, s26, {OPT['p0lo']}
            s_and_b32 s51, s51, 15""")
            touch_setup(e, f"P0{r}", 3, 20)
            if r:
                e("s_waitcnt vmcnt(0)")
            e("buffer_load_dword v2, v3, s[52:55], s27 offen")
        e.label("P0_done")
    e("""s_cmp_ge_u32 s5, 30
    s_cbranch_scc1 P1_i
    s_cmp_ge_u32 s5, 20
    s_cbranch_scc1 P1_x""")
    t_ids(e)
    e("""s_cmp_ge_u32 s3, 4
    s_cbranch_scc1 P1_tc1""")
    srd(e, 20, 38, 3072)
    srd(e, 24, 36, 3072)
    t_consumer(e, 0)
    e.label("P1_tc1")
    t_consumer(e, 1)
    e.label("P1_x")
    x_ids(e)
    if OPT['xtouch']:
        srd(e, 8, 40, 819200)
        srd(e, 12, 32, 2621440)
    x_consumer(e)
    e.label("P1_i")
    idle_toucher(e)
    e.label("P1_end")
    e("s_endpgm")

Y_S = 5
Y_STAGE = 28672
Y_NST = 10
P2_LDS = Y_S * Y_STAGE

def p2_kernel(e):
    CUR_K[0] = 1
    e.raw(".p2align 8")
    e.raw(".type p2_kernel,@function")
    e.label("p2_kernel")
    e("""s_cmp_ge_u32 s2, 256
    s_cbranch_scc1 P2_end""")
    stamp(e, 0)
    e("""s_load_dwordx2 s[44:45], s[0:1], 48
    s_load_dwordx2 s[48:49], s[0:1], 64
    v_lshrrev_b32 v1, 6, v0
    v_and_b32 v0, 63, v0
    s_and_b32 s4, s2, 7
    s_lshr_b32 s5, s2, 3
    v_readfirstlane_b32 s3, v1
    v_lshlrev_b32 v1, 4, v0""")
    e("""s_and_b32 s6, s4, 3
    s_lshl_b32 s6, s6, 2
    s_and_b32 s51, s5, 3
    s_add_u32 s6, s6, s51
    s_lshr_b32 s7, s4, 2
    s_lshl_b32 s7, s7, 3
    s_lshr_b32 s51, s5, 2
    s_add_u32 s7, s7, s51
    s_cmp_ge_u32 s3, 4
    s_cbranch_scc0 P2_c""")
    e(f"""s_sub_u32 s50, s3, 4
    s_and_b32 s51, s50, 1
    s_lshr_b32 s52, s50, 1           ; kk
    s_mul_i32 s53, s52, 14336
    s_mul_i32 s55, s51, 3072
    s_add_u32 s54, s53, 6144
    s_add_u32 s53, s53, s55          ; T lds base
    s_lshl_b32 s55, s51, 12
    s_add_u32 s54, s54, s55          ; xr lds base
    s_mul_i32 s55, s51, 3
    s_mul_i32 s56, s7, 6
    s_add_u32 s55, s55, s56
    s_mul_i32 s55, s55, 20
    s_add_u32 s55, s55, s52
    s_lshl_b32 s28, s55, 10
    s_add_u32 s28, s28, {T_WS}
    s_lshl_b32 s55, s51, 2
    s_lshl_b32 s56, s6, 3
    s_add_u32 s55, s55, s56
    s_mul_i32 s55, s55, 20
    s_add_u32 s55, s55, s52
    s_lshl_b32 s27, s55, 10
    s_add_u32 s27, s27, {XR_WS}""")
    for i in range(1, 4):
        e(f"v_add_u32 v{1+i}, {19456*i}, v1")
    e("s_waitcnt lgkmcnt(0)")
    srd(e, 16, 48, WS_BYTES)
    def issue():
        e("s_add_u32 m0, s29, s53")
        e("s_nop 0")
        for i in range(3):
            off = f" offset:{1024*i}" if i else ""
            e(f"buffer_load_dwordx4 v{1+i}, s[16:19], s28 offen{off} lds")
        e("s_add_u32 m0, s29, s54")
        e("s_add_u32 s28, s28, 2048")
        for i in range(4):
            off = f" offset:{1024*i}" if i else ""
            e(f"buffer_load_dwordx4 v{1+i}, s[16:19], s27 offen{off} lds")
        e("s_add_u32 s27, s27, 2048")
    loader_loop(e, "YL", Y_NST, Y_S, Y_STAGE, 7, issue, lead=OPT["ylead"])
    e.label("P2_c")
    ACC = 64
    FB = [8, 112]
    for i in range(48):
        e(f"v_mov_b32 v{ACC+i}, 0")
    e("""s_lshl_b32 s51, s3, 11
    s_add_u32 s51, s51, 6144
    v_add_u32 v2, s51, v1
    s_waitcnt lgkmcnt(0)""")
    srd(e, 16, 48, WS_BYTES)
    srd(e, 8, 44, 6291456)
    e("s_mov_b32 s30, 0")
    if OPT['ytouch']:
        e("""v_lshrrev_b32 v5, 3, v0
        s_mov_b32 s52, 20480
        v_mul_lo_u32 v5, v5, s52
        v_and_b32 v6, 7, v0
        v_lshl_add_u32 v5, v6, 7, v5""")
        for rnd in range(1):
            e(f"""s_lshl_b32 s51, s3, 5
            s_add_u32 s51, s51, s5
            s_add_u32 s51, s51, {OPT['ylo']}
            s_cmp_ge_u32 s51, {OPT['yhi']}
            s_cbranch_scc1 YT_d{rnd}
            s_mul_i32 s52, s51, 205
            s_lshr_b32 s52, s52, 11          ; kb = p/10
            s_mul_i32 s53, s52, 10
            s_sub_u32 s53, s51, s53          ; grp
            s_lshl_b32 s52, s52, 10
            s_cmp_ge_u32 s53, 4
            s_cbranch_scc1 YT_t{rnd}
            s_and_b32 s54, s4, 3
            s_lshl_b32 s54, s54, 2
            s_add_u32 s54, s54, s53
            s_mul_i32 s54, s54, {8*20480}
            s_add_u32 s54, s54, {XR_WS}
            s_branch YT_l{rnd}""")
            e.label(f"YT_t{rnd}")
            e(f"""s_sub_u32 s53, s53, 4
            s_lshr_b32 s54, s4, 2
            s_mul_i32 s54, s54, 6
            s_add_u32 s54, s54, s53
            s_mul_i32 s54, s54, {8*20480}
            s_add_u32 s54, s54, {T_WS}""")
            e.label(f"YT_l{rnd}")
            e(f"""s_add_u32 s54, s54, s52
            buffer_load_dword v7, v5, s[16:19], s54 offen""")
            e.label(f"YT_d{rnd}")

    def rlist(kk, b):
        l = []
        for mi in range(2):
            l.append(f"ds_read_b128 v[{b+24+4*mi}:{b+27+4*mi}], v4 offset:{kk*14336 + mi*1024}")
        for gt in range(6):
            l.append(f"ds_read_b128 v[{b+4*gt}:{b+4*gt+3}], v3 offset:{kk*14336 + gt*1024}")
        return l

    def block(b, rl):
        i = 0
        for gt in range(6):
            for mi in range(2):
                d = ACC + (gt * 2 + mi) * 4
                e(f"v_mfma_f32_16x16x32_bf16 v[{d}:{d+3}], v[{b+4*gt}:{b+4*gt+3}], v[{b+24+4*mi}:{b+27+4*mi}], v[{d}:{d+3}]")
                if i < len(rl):
                    e(rl[i]); i += 1

    def newslot():
        e(f"""v_add_u32 v3, s30, v1
        v_add_u32 v4, s30, v2
        s_add_u32 s30, s30, {Y_STAGE}
        s_cmp_ge_u32 s30, {Y_S*Y_STAGE}
        s_cselect_b32 s30, 0, s30""")

    e("s_barrier")
    stamp(e, 1)
    newslot()
    for r in rlist(0, FB[0]):
        e(r)
    e(f"s_mov_b32 s31, {Y_NST-1}")
    e.label("P2_loop")
    e("s_waitcnt lgkmcnt(0)")
    block(FB[0], rlist(1, FB[1]))
    e("s_waitcnt lgkmcnt(0)")
    e("s_barrier")
    newslot()
    block(FB[1], rlist(0, FB[0]))
    e("""s_sub_u32 s31, s31, 1
    s_cmp_lg_u32 s31, 0
    s_cbranch_scc1 P2_loop""")
    e("s_waitcnt lgkmcnt(0)")
    block(FB[0], rlist(1, FB[1]))
    e("s_waitcnt lgkmcnt(0)")
    block(FB[1], [])
    stamp(e, 2)
    e("""v_and_b32 v3, 15, v0
    v_lshrrev_b32 v4, 4, v0
    s_mov_b32 s52, 3072
    v_mul_lo_u32 v3, v3, s52
    v_and_b32 v5, 1, v4
    v_lshrrev_b32 v4, 1, v4
    v_lshlrev_b32 v5, 5, v5
    v_lshl_add_u32 v5, v4, 4, v5
    v_add_u32 v3, v3, v5
    s_lshl_b32 s51, s6, 7
    s_lshl_b32 s52, s3, 5
    s_add_u32 s51, s51, s52
    s_mul_i32 s54, s51, 3072
    s_mul_i32 s52, s7, 192
    s_add_u32 s54, s54, s52
    s_add_u32 s55, s54, 49152
    s_nop 7""")
    for mi in range(2):
        for a in range(3):
            P = 8 + (mi * 3 + a) * 4
            dA = ACC + ((2 * a) * 2 + mi) * 4
            dB = ACC + ((2 * a + 1) * 2 + mi) * 4
            e(f"""v_cvt_pk_bf16_f32 v{P}, v{dA}, v{dA+1}
            v_cvt_pk_bf16_f32 v{P+1}, v{dA+2}, v{dA+3}
            v_cvt_pk_bf16_f32 v{P+2}, v{dB}, v{dB+1}
            v_cvt_pk_bf16_f32 v{P+3}, v{dB+2}, v{dB+3}
            s_nop 1
            v_permlane16_swap_b32 v{P}, v{P+2}
            v_permlane16_swap_b32 v{P+1}, v{P+3}""")
            so = "s54" if mi == 0 else "s55"
            off = f" offset:{64*a}" if a else ""
            e("s_nop 1")
            e(f"buffer_store_dwordx4 v[{P}:{P+3}], v3, s[8:11], {so} offen{off}")
    stamp_flush(e, 4, 1)
    e.label("P2_end")
    e("s_endpgm")

def main(out):
    e = E()
    e.raw(HEADER.rstrip('\n'))
    e.raw(f"; @launch kernel=p1_kernel grid=({256 if OPT['touch'] and OPT['tmode'] == 1 else 240},1,1) block=(768,1,1) lds={P1_LDS}")
    e.raw(f"; @launch kernel=p2_kernel grid=(256,1,1) block=(512,1,1) lds={P2_LDS}")
    e.raw('.amdgcn_target "amdgcn-amd-amdhsa--gfx950"')
    e.raw(".text")
    e.raw(".globl p1_kernel")
    e.raw(".globl p2_kernel")
    p1_kernel(e)
    p2_kernel(e)
    e.raw('.section .rodata,"a"')
    for name, vg, acc in (("p1_kernel", 168, 168), ("p2_kernel", 144, 144)):
        e.raw(".p2align 6")
        e.raw(f""".amdhsa_kernel {name}
  .amdhsa_next_free_vgpr {vg}
  .amdhsa_next_free_sgpr 96
  .amdhsa_accum_offset {acc}
  .amdhsa_group_segment_fixed_size 0
  .amdhsa_kernarg_size 72
  .amdhsa_user_sgpr_count 2
  .amdhsa_user_sgpr_kernarg_segment_ptr 1
  .amdhsa_system_sgpr_workgroup_id_x 1
  .amdhsa_float_denorm_mode_32 3
.end_amdhsa_kernel""")
    open(out, 'w').write(e.text())

if __name__ == '__main__':
    for a in sys.argv[2:]:
        if a == 'diag':
            DIAG = True
        elif '=' in a:
            k, v = a.split('=')
            OPT[k] = int(v)
    main(sys.argv[1] if len(sys.argv) > 1 else 'standalone__weight_only_int_quip__prompt.s')
```

```python
import sys

HEADER = open('standalone__weight_only_int_quip__prompt.s.ref').read().split('; Override launch')[0]

XR_WS = 0
T_WS = 2621440
WS_BYTES = 268435456
OPT = dict(ldprio=1, noload=0, nocomp=0, touch=1, tdelta=10, xdelta=6, nt=0, nttouch=0, xtouch=0, samek=0, dbg=0, drop=0, split=16, zdpp=1, sdpp=1, rdfirst=1, inner=0, tmode=1, protouch=1, p0=8, xfirst=1, st1=1, st2=1, ytouch=0, xrate=3, bal=1, p0lo=0, p0r=1, ylead=3, tlb=0, xpipe=1, mv=0, tu=4, xu=8, xlead=2, ylo=20, yhi=80, tlead=2)

CUR_K = [0]
class E:
    def __init__(self):
        self.l = []
    def __call__(self, s):
        for line in s.strip('\n').split('\n'):
            t = line.strip()
            if OPT['noload'] and t.endswith(' lds'): continue
            if t.startswith('buffer_store') and not DIAG:
                pol = {0: '', 1: ' sc1', 2: ' nt', 3: ' sc0 sc1', 4: ' sc1 nt'}[OPT['st1'] if CUR_K[0] == 0 else OPT['st2']]
                t = t + pol
            if (OPT['drop'] & 1) and t.startswith('ds_read_b64_tr'): continue
            if (OPT['drop'] & 2) and t.endswith('; DQ'): continue
            if (OPT['drop'] & 8) and (t.startswith('ds_read_b128') or t.startswith('ds_read_b32')): continue
            if (OPT['drop'] & 4) and t.startswith('v_mfma'): continue
            if OPT['samek'] and (t.startswith('s_add_u32 s28, s28,') or t.startswith('s_add_u32 s27, s27,')): continue
            if OPT['nt'] and t.endswith(' lds') and ('s[8:11]' in t or 's[12:15]' in t): t = t[:-4] + ' nt lds'
            if OPT['nttouch'] and t.startswith('buffer_load_dword v'): t = t + ' nt'
            if OPT['nocomp'] and (t.startswith('ds_read') or t.startswith('v_mfma') or '_dpp' in t or t.startswith('v_cvt')): continue
            self.l.append('    ' + t)
    def label(self, s):
        self.l.append(s + ':')
    def raw(self, s):
        self.l.append(s)
    def text(self):
        return '\n'.join(self.l) + '\n'

DIAG = False
STAMP_WS = 64 << 20
def dbg_entry(e):
    if not OPT['dbg']: return
    e("""s_memrealtime s[90:91]
    s_memtime s[86:87]
    s_load_dwordx2 s[92:93], s[0:1], 56
    s_waitcnt lgkmcnt(0)
    s_mov_b32 s88, s92
    s_and_b32 s89, s93, 0xffff
    s_not_b32 s94, s90
    s_mov_b32 s90, 256
    s_mov_b32 s91, 0x00020000""")
DBGN = [0]
DBG_WS = 100 << 20
def dbg_exit(e, kern):
    if not OPT['dbg']: return
    DBGN[0] += 1
    lab = f"DBGX{DBGN[0]}"
    e(f"""s_and_b32 s95, s3, 3
    s_cmp_lg_u32 s95, 0
    s_cbranch_scc1 {lab}
    s_waitcnt vmcnt(0)
    s_memrealtime s[92:93]
    s_waitcnt lgkmcnt(0)
    s_not_b32 s94, s94
    v_mov_b32 v2, 0
    v_mov_b32 v4, s94
    v_mov_b32 v5, s92
    s_lshl_b32 s95, s2, 4
    s_lshl_b32 s93, s3, 1
    s_add_u32 s95, s95, s93
    s_add_u32 s95, s95, {DBG_WS + kern * 8192}
    buffer_store_dwordx2 v[4:5], v2, s[16:19], s95 offen""")
    if kern == 1:
        e(f"""s_or_b32 s95, s2, s3
        s_cmp_lg_u32 s95, 0
        s_cbranch_scc1 {lab}
        v_lshlrev_b32 v2, 4, v0""")
        for i in range(4):
            if i == 3:
                e("v_min_u32 v2, 752, v2")
            e(f"s_mov_b32 s95, {DBG_WS + i * 1024}")
            e(f"buffer_load_dwordx4 v[{8+4*i}:{11+4*i}], v2, s[16:19], s95 offen")
        e("s_waitcnt vmcnt(0)")
        for i in range(4):
            e(f"v_max_u32 v{9+4*i}, v{9+4*i}, v{11+4*i}")
            e(f"v_sub_u32 v{10+4*i}, v{9+4*i}, v{8+4*i}")
        e("""v_min_u32 v24, v8, v12
        v_min_u32 v24, v24, v16
        v_min_u32 v24, v24, v20
        v_max_u32 v25, v8, v12
        v_max_u32 v25, v25, v16
        v_max_u32 v25, v25, v20
        v_min_u32 v26, v9, v13
        v_min_u32 v26, v26, v17
        v_min_u32 v26, v26, v21
        v_max_u32 v27, v9, v13
        v_max_u32 v27, v27, v17
        v_max_u32 v27, v27, v21
        v_max_u32 v28, v10, v14
        v_max_u32 v28, v28, v18
        v_max_u32 v28, v28, v22
        s_mov_b32 s70, -1
        s_mov_b32 s71, 0
        s_mov_b32 s72, -1
        s_mov_b32 s73, 0
        s_mov_b32 s74, 0
        s_nop 1""")
        for l in range(64):
            e(f"""v_readlane_b32 s75, v24, {l}
            v_readlane_b32 s76, v25, {l}
            v_readlane_b32 s77, v26, {l}
            v_readlane_b32 s78, v27, {l}
            v_readlane_b32 s79, v28, {l}
            s_nop 3
            s_min_u32 s70, s70, s75
            s_max_u32 s71, s71, s76
            s_min_u32 s72, s72, s77
            s_max_u32 s73, s73, s78
            s_max_u32 s74, s74, s79""")
        e("""v_mov_b32 v2, 0
        v_mov_b32 v4, s70
        v_mov_b32 v5, s71
        v_mov_b32 v6, s72
        v_mov_b32 v7, s73
        buffer_store_dwordx4 v[4:7], v2, s[88:91], 0 offen
        v_mov_b32 v8, s74
        v_mov_b32 v9, s94
        v_mov_b32 v10, s92
        v_mov_b32 v11, 0
        buffer_store_dwordx4 v[8:11], v2, s[88:91], 0 offen offset:16""")
    e.label(lab)

def stamp(e, i):
    if i == 0 and OPT['dbg']: dbg_entry(e)
    if not DIAG: return
    e(f"""s_memtime s[{64+4*i}:{65+4*i}]
    s_memrealtime s[{66+4*i}:{67+4*i}]
    s_waitcnt lgkmcnt(0)""")
def stamp_flush(e, n, kern):
    if OPT['dbg']: dbg_exit(e, kern)
    if not DIAG: return
    e(f"""s_waitcnt vmcnt(0)""")
    stamp(e, n - 1)
    e(f"""s_lshl_b32 s60, s2, 4
    s_add_u32 s60, s60, s3
    s_lshl_b32 s60, s60, 7
    s_add_u32 s60, s60, {STAMP_WS + kern * (1 << 20)}
    v_mov_b32 v2, 0
    s_getreg_b32 s61, hwreg(HW_REG_XCC_ID)
    s_getreg_b32 s62, hwreg(HW_REG_HW_ID)
    v_mov_b32 v4, s61
    v_mov_b32 v5, s62
    buffer_store_dwordx2 v[4:5], v2, s[16:19], s60 offen offset:112
    s_waitcnt vmcnt(0)
    v_mov_b32 v4, s84
    v_mov_b32 v5, s85
    buffer_store_dwordx2 v[4:5], v2, s[16:19], s60 offen offset:96
    s_waitcnt vmcnt(0)""")
    for i in range(n):
        e(f"""v_mov_b32 v4, s{64+4*i}
        v_mov_b32 v5, s{65+4*i}
        v_mov_b32 v6, s{66+4*i}
        v_mov_b32 v7, s{67+4*i}
        buffer_store_dwordx4 v[4:7], v2, s[16:19], s60 offen offset:{16*i}
        s_waitcnt vmcnt(0)""")

def srd(e, d, lo, nbytes):
    e(f"""s_mov_b32 s{d}, s{lo}
    s_and_b32 s{d+1}, s{lo+1}, 0xffff
    s_mov_b32 s{d+2}, {nbytes}
    s_mov_b32 s{d+3}, 0x00020000""")

T_S = 5
T_STAGE = 28672
T_QW = 0
T_V = 16384
T_ZS = T_S * T_STAGE
T_NST = 24
X_S = 4
X_STAGE = 32768
X_U = 0
X_X = 16384
X_NST = 10
P1_LDS = T_ZS + 12288

def loader_loop(e, L, nst, RING, stage_bytes, npieces, issue, lead=None):
    S = (lead + 1) if lead else RING
    if OPT['ldprio']:
        e(f"s_setprio {OPT['ldprio']}")
    def rec():
        if DIAG:
            e("""s_memtime s[62:63]
            s_waitcnt lgkmcnt(0)
            v_mov_b32 v21, s62
            v_cmp_eq_u32 vcc, s61, v0
            s_nop 1
            v_cndmask_b32 v20, v20, v21, vcc
            s_add_u32 s61, s61, 1""")
    def adv():
        e(f"""s_add_u32 s29, s29, {stage_bytes}
        s_cmp_ge_u32 s29, {RING*stage_bytes}
        s_cselect_b32 s29, 0, s29""")
    e("s_mov_b32 s29, 0")
    if DIAG:
        e("s_mov_b32 s61, 0\nv_mov_b32 v20, 0")
        rec()
    issued = 0
    first = min(2, S - 1)
    for _ in range(first):
        issue(); adv(); issued += 1
    s = 0
    while issued < s + S - 1:
        e(f"s_waitcnt vmcnt({npieces*(issued-1-s)})")
        e("s_barrier")
        rec()
        for _ in range(2):
            if issued < s + S:
                issue(); adv(); issued += 1
        s += 1
    nloop = nst - issued
    e(f"s_mov_b32 s31, {nloop}")
    e.label(f"{L}_ldloop")
    e(f"s_waitcnt vmcnt({npieces*(S-2)})")
    e("s_barrier")
    rec()
    issue()
    adv()
    e(f"""s_sub_u32 s31, s31, 1
    s_cmp_lg_u32 s31, 0
    s_cbranch_scc1 {L}_ldloop""")
    s += nloop
    for ss in range(s, nst):
        e(f"s_waitcnt vmcnt({npieces*(nst-1-ss)})")
        e("s_barrier")
        rec()
    if DIAG:
        kern = 1 if L == "YL" else 0
        e(f"""s_lshl_b32 s60, s2, 2
        s_add_u32 s60, s60, s50
        s_lshl_b32 s60, s60, 8
        s_add_u32 s60, s60, {STAMP_WS + (4 + kern) * (1 << 20)}
        v_lshlrev_b32 v21, 2, v0
        buffer_store_dword v20, v21, s[16:19], s60 offen""")
    e("s_endpgm")

def dequant_ops(R, ZD, NZ, SC, P, A):
    ops = []
    for i in range(8):
        ops.append(f"v_cvt_f32_i32 v{R+i}, v{R+i}")
    for i in range(8):
        if OPT['zdpp']:
            ops.append(f"v_add_f32_dpp v{R+i}, v{ZD}, v{R+i} row_newbcast:{i} row_mask:0xf bank_mask:0xf")
        else:
            ops.append(f"v_add_f32 v{R+i}, v{NZ+i}, v{R+i}")
    for i in range(4):
        ops.append(f"v_cvt_pk_bf16_f32 v{P+i}, v{R+2*i}, v{R+2*i+1}")
    for i in range(4):
        ops.append(f"v_lshlrev_b32 v{R+2*i}, 16, v{P+i}")
        ops.append(f"v_and_b32 v{R+2*i+1}, 0xffff0000, v{P+i}")
    for i in range(8):
        if OPT['sdpp']:
            ops.append(f"v_mul_f32_dpp v{R+i}, v{ZD}, v{R+i} row_newbcast:{8+i} row_mask:0xf bank_mask:0xf")
        else:
            ops.append(f"v_mul_f32 v{R+i}, v{SC+i}, v{R+i}")
    for i in range(4):
        ops.append(f"v_cvt_pk_bf16_f32 v{A+i}, v{R+2*i}, v{R+2*i+1}")
    return [o + ' ; DQ' for o in ops]

def t_loader(e):
    e("""s_sub_u32 s50, s3, 8
    v_and_b32 v60, 15, v0
    v_lshrrev_b32 v61, 4, v0
    s_mov_b32 s52, 6144""")
    for i in range(4):
        e(f"""v_add_u32 v62, {4*i}, v61
        v_mul_lo_u32 v63, v62, s52
        v_xor_b32 v62, v60, v62
        v_lshl_add_u32 v{1+i}, v62, 4, v63""")
        if i:
            e(f"v_subrev_u32 v{1+i}, {1024*i}, v{1+i}")
    e(f"""s_lshl_b32 s28, s6, 6
    s_lshl_b32 s51, s50, 4
    s_add_u32 s28, s28, s51
    s_mul_i32 s28, s28, 6144
    s_lshl_b32 s53, s50, 12
    s_add_u32 s53, s53, {T_QW}
    s_mov_b32 s52, 3072""")
    for j in range(3):
        e(f"""v_add_u32 v62, {64*j}, v0
        v_mul_u32_u24 v63, 171, v62
        v_lshrrev_b32 v63, 11, v63
        v_mul_u32_u24 v64, 12, v63
        v_sub_u32 v62, v62, v64
        v_lshrrev_b32 v64, 3, v63
        v_and_b32 v64, 1, v64
        v_lshlrev_b32 v64, 1, v64
        v_xor_b32 v62, v62, v64
        v_mul_lo_u32 v63, v63, s52
        v_lshl_add_u32 v{5+j}, v62, 4, v63""")
        if j:
            e(f"v_subrev_u32 v{5+j}, {1024*j}, v{5+j}")
    e(f"""s_mul_i32 s27, s50, 49152
    s_mul_i32 s51, s7, 192
    s_add_u32 s27, s27, s51
    s_mul_i32 s54, s50, 3072
    s_add_u32 s54, s54, {T_V}
    s_waitcnt lgkmcnt(0)""")
    srd(e, 8, 34, 3932160)
    srd(e, 12, 42, 4718592)
    if DIAG:
        srd(e, 16, 48, WS_BYTES)
    def issue():
        e("s_add_u32 m0, s29, s53")
        e("s_nop 0")
        for i in range(4):
            off = f" offset:{1024*i}" if i else ""
            e(f"buffer_load_dwordx4 v{1+i}, s[8:11], s28 offen{off} lds")
        e("s_add_u32 m0, s29, s54")
        e("s_add_u32 s28, s28, 256")
        for j in range(3):
            off = f" offset:{1024*j}" if j else ""
            e(f"buffer_load_dwordx4 v{5+j}, s[12:15], s27 offen{off} lds")
        e(f"s_add_u32 s27, s27, {64*3072}")
    loader_loop(e, "TL", T_NST, T_S, T_STAGE, 7, issue, lead=OPT["tlead"])

def magic(d, n):
    for sh in range(8, 20):
        m = (1 << sh) // d + 1
        if all((x * m) >> sh == x // d for x in range(n)):
            return m, sh
    raise ValueError

def touch_setup(e, tag, vo, t):
    e(f"""s_cmp_ge_u32 s51, 10
    s_cbranch_scc1 {tag}_tv
    s_lshl_b32 s51, s51, 6
    v_add_u32 v{t}, s51, v0
    v_lshrrev_b32 v{t+1}, 1, v{t}
    v_and_b32 v{t}, 1, v{t}
    s_mov_b32 s53, 6144
    v_mul_lo_u32 v{t+1}, v{t+1}, s53
    v_lshl_add_u32 v{vo}, v{t}, 7, v{t+1}
    s_and_b32 s27, s4, 1
    s_mul_i32 s27, s27, {320*6144}
    s_lshl_b32 s52, s26, 8
    s_add_u32 s27, s27, s52
    s_mov_b32 s52, s34
    s_and_b32 s53, s35, 0xffff
    s_mov_b32 s54, 3932160
    s_mov_b32 s55, 0x00020000
    s_branch {tag}_td""")
    e.label(f"{tag}_tv")
    e(f"""s_sub_u32 s51, s51, 10
    s_lshl_b32 s51, s51, 6
    v_add_u32 v{t}, s51, v0
    v_mul_u32_u24 v{t+1}, 171, v{t}
    v_lshrrev_b32 v{t+1}, 10, v{t+1}
    v_mul_u32_u24 v{t+2}, 6, v{t+1}
    v_sub_u32 v{t}, v{t}, v{t+2}
    s_mov_b32 s53, 3072
    v_mul_lo_u32 v{t+1}, v{t+1}, s53
    v_lshl_add_u32 v{vo}, v{t}, 7, v{t+1}
    s_lshr_b32 s27, s4, 1
    s_mul_i32 s27, s27, 768
    s_mul_i32 s52, s26, {64*3072}
    s_add_u32 s27, s27, s52
    s_mov_b32 s52, s42
    s_and_b32 s53, s43, 0xffff
    s_mov_b32 s54, 4718592
    s_mov_b32 s55, 0x00020000""")
    e.label(f"{tag}_td")

def idle_toucher(e):
    e("""s_cmp_lg_u32 s3, 0
    s_cbranch_scc1 P1_end
    s_sub_u32 s24, s5, 30""")
    e.label("IT_loop")
    iu = 16 - OPT['tu'] - OPT['xu']
    e(f"""s_mul_i32 s26, s24, {magic(iu, 200)[0]}
    s_lshr_b32 s26, s26, {magic(iu, 200)[1]}
    s_mul_i32 s51, s26, {iu}
    s_sub_u32 s51, s24, s51
    s_add_u32 s51, s51, {16 - iu}
    s_add_u32 s26, s26, """ + str(OPT['p0'] or 4))
    touch_setup(e, "IT", 3, 20)
    e("""buffer_load_dword v2, v3, s[52:55], s27 offen
    s_add_u32 s24, s24, 2
    s_cmp_lt_u32 s24, """ + str(iu * (24 - (OPT['p0'] or 4))) + """
    s_cbranch_scc1 IT_loop
    s_endpgm""")

def tcheck(e, tag, step=None):
    if step is None:
        step = 100 if OPT['tmode'] == 1 else 10
    e(f"""s_cmp_gt_u32 s26, s25
    s_cbranch_scc1 {tag}_nt
    s_cmp_ge_u32 s26, {T_NST}
    s_cbranch_scc1 {tag}_nt
    buffer_load_dword v2, v3, s[52:55], s27 offen
    s_add_u32 s26, s26, {step}
    s_add_u32 s27, s27, s28""")
    e.label(f"{tag}_nt")

def t_consumer(e, par):
    L = f"TC{par}"
    e("""s_and_b32 s50, s3, 3
    v_and_b32 v60, 15, v0          ; c
    v_lshrrev_b32 v61, 4, v0        ; q""")
    if par == 0:
        e(f"""s_cmp_ge_u32 s3, 3
        s_cbranch_scc1 {L}_nozs
        s_lshl_b32 s51, s3, 10
        v_lshlrev_b32 v62, 4, v0
        v_add_u32 v62, s51, v62
        buffer_load_dwordx4 v[64:67], v62, s[20:23], 0 offen
        buffer_load_dwordx4 v[68:71], v62, s[24:27], 0 offen
        s_waitcnt vmcnt(0)""")
        for i in range(4):
            e(f"""v_lshlrev_b32 v{16+2*i}, 16, v{64+i}
            v_and_b32 v{17+2*i}, 0xffff0000, v{64+i}
            v_lshlrev_b32 v{24+2*i}, 16, v{68+i}
            v_and_b32 v{25+2*i}, 0xffff0000, v{68+i}""")
        for i in range(8):
            e(f"v_xor_b32 v{16+i}, 0x80000000, v{16+i}")
        e(f"""s_lshl_b32 s51, s3, 12
        v_lshlrev_b32 v62, 6, v0
        v_add_u32 v62, s51, v62
        v_add_u32 v62, {T_ZS}, v62
        ds_write_b128 v62, v[16:19]
        ds_write_b128 v62, v[20:23] offset:16
        ds_write_b128 v62, v[24:27] offset:32
        ds_write_b128 v62, v[28:31] offset:48
        s_waitcnt lgkmcnt(0)""")
        e.label(f"{L}_nozs")
    if OPT['touch'] and OPT['tmode'] == 1:
        e(f"""s_add_u32 s26, s5, {OPT['p0'] or 4}
        s_mov_b32 s51, s3""")
        touch_setup(e, L, 3, 62)
        e(f"""s_cmp_ge_u32 s3, {OPT['tu']}
        s_cselect_b32 s26, 100, s26
        s_mov_b32 s28, 0
        s_mov_b32 s25, {OPT['tdelta'] + par}""")
        if OPT['protouch']:
            tcheck(e, L + "p0", 100)
    elif OPT['touch']:
            e(f"""s_lshl_b32 s51, s5, 3
            s_add_u32 s51, s51, s3
            s_lshr_b32 s26, s51, 4          ; sigma0
            s_and_b32 s51, s51, 15          ; u
            s_cmp_ge_u32 s51, 10
            s_cbranch_scc1 {L}_tv
            s_lshl_b32 s51, s51, 6
            v_add_u32 v62, s51, v0          ; t
            v_lshrrev_b32 v63, 1, v62       ; row
            v_and_b32 v62, 1, v62
            s_mov_b32 s53, 6144
            v_mul_lo_u32 v63, v63, s53
            v_lshl_add_u32 v3, v62, 7, v63
            s_and_b32 s27, s4, 1
            s_mul_i32 s27, s27, {320*6144}
            s_lshl_b32 s52, s26, 8
            s_add_u32 s27, s27, s52
            s_mov_b32 s28, 2560
            s_mov_b32 s52, s34
            s_and_b32 s53, s35, 0xffff
            s_mov_b32 s54, 3932160
            s_mov_b32 s55, 0x00020000
            s_branch {L}_td""")
            e.label(f"{L}_tv")
            e(f"""s_sub_u32 s51, s51, 10
            s_lshl_b32 s51, s51, 6
            v_add_u32 v62, s51, v0          ; t in 0..383
            v_mul_u32_u24 v63, 171, v62
            v_lshrrev_b32 v63, 10, v63      ; row = t/6
            v_mul_u32_u24 v64, 6, v63
            v_sub_u32 v62, v62, v64
            s_mov_b32 s53, 3072
            v_mul_lo_u32 v63, v63, s53
            v_lshl_add_u32 v3, v62, 7, v63
            s_lshr_b32 s27, s4, 1
            s_mul_i32 s27, s27, 768
            s_mul_i32 s52, s26, {64*3072}
            s_add_u32 s27, s27, s52
            s_mov_b32 s28, {640*3072}
            s_mov_b32 s52, s42
            s_and_b32 s53, s43, 0xffff
            s_mov_b32 s54, 4718592
            s_mov_b32 s55, 0x00020000""")
            e.label(f"{L}_td")
            e(f"""s_cmp_ge_u32 s26, {T_S-1}
            s_cbranch_scc1 {L}_t0
            s_add_u32 s26, s26, 10
            s_add_u32 s27, s27, s28""")
            e.label(f"{L}_t0")
            e(f"s_mov_b32 s25, {OPT['tdelta'] + par}      ; s + delta")
            tcheck(e, L + "p0")
            tcheck(e, L + "p1")
    if OPT['tlb']:
        e(f"""s_mul_i32 s51, s7, {120*1024}
        s_add_u32 s51, s51, {T_WS}
        v_mov_b32 v62, 0
        buffer_load_dword v1, v62, s[16:19], s51 offen""")
    e(f"""s_and_b32 s56, s3, 1            ; eh
    s_lshr_b32 s57, s3, 1
    s_and_b32 s57, s57, 1           ; kh
    s_lshl_b32 s51, s57, 3
    v_lshlrev_b32 v62, 1, v61
    v_add_u32 v62, s51, v62
    v_xor_b32 v62, v62, v60
    v_lshlrev_b32 v62, 4, v62
    v_lshl_add_u32 v62, v60, 8, v62
    s_lshl_b32 s51, s56, 13
    s_add_u32 s51, s51, {T_QW}
    v_add_u32 v5, s51, v62
    v_xor_b32 v6, 16, v5
    v_lshlrev_b32 v4, 2, v0
    s_lshl_b32 s51, s57, 8
    s_add_u32 s51, s51, {T_ZS + 512*par}
    v_add_u32 v4, s51, v4
    v_lshlrev_b32 v9, 6, v61
    v_add_u32 v9, s51, v9""")
    e(f"""v_lshrrev_b32 v62, 2, v60        ; r
    v_lshl_add_u32 v62, v61, 3, v62  ; 8q + r
    v_mul_u32_u24 v62, 192, v62
    v_and_b32 v63, 3, v60
    v_lshl_add_u32 v62, v63, 3, v62
    s_mul_i32 s51, s57, {32*192}
    s_add_u32 s51, s51, {T_V}
    v_add_u32 v62, s51, v62
    v_and_b32 v63, 1, v61
    v_lshl_add_u32 v10, v63, 5, v62
    v_xor_b32 v63, 1, v63
    v_lshl_add_u32 v11, v63, 5, v62""")
    RAW0 = 18
    RAW1 = [26, 34]
    ZD = [42, 43]
    P = 44
    A = 48
    B = [52, 76]
    ACC = 100
    NZ, SC = 148, 156
    REGZS = not OPT['zdpp']
    if REGZS:
        for i in range(16):
            e(f"v_mov_b32 v{NZ+i}, 0")
    for i in range(48):
        e(f"v_mov_b32 v{ACC+i}, 0")
    for i in range(24):
        e(f"v_mov_b32 v{B[1]+i}, 0")
    for i in range(8):
        e(f"v_mov_b32 v{RAW1[1]+i}, 0")
    e(f"v_mov_b32 v{ZD[1]}, 0")
    e(f"s_mov_b32 s30, {T_STAGE*par}")
    e("s_mov_b32 s31, 6")
    stamp(e, 1)
    if par == 1:
        e("s_barrier")
    def tmr(reg):
        if DIAG and OPT['inner']:
            e(f"""s_memtime s[{reg}:{reg+1}]
            s_waitcnt lgkmcnt(0)""")
    def rlist(X):
        rd = [f"ds_read_b128 v[{RAW0}:{RAW0+3}], v12",
              f"ds_read_b128 v[{RAW0+4}:{RAW0+7}], v13",
              f"ds_read_b128 v[{RAW1[X]}:{RAW1[X]+3}], v12 offset:4096",
              f"ds_read_b128 v[{RAW1[X]+4}:{RAW1[X]+7}], v13 offset:4096"]
        if not REGZS:
            rd.append(f"ds_read_b32 v{ZD[X]}, v4")
        for gt in range(6):
            a_ = 16 if gt % 2 == 0 else 17
            off = 64 * (gt // 2)
            rd.append(f"ds_read_b64_tr_b16 v[{B[X]+4*gt}:{B[X]+4*gt+1}], v{a_} offset:{off}")
            rd.append(f"ds_read_b64_tr_b16 v[{B[X]+4*gt+2}:{B[X]+4*gt+3}], v{a_} offset:{off+768}")
        return rd
    def comp(f, X):
        R = RAW0 if f == 0 else RAW1[X]
        return dequant_ops(R, ZD[X], NZ, SC, P, A) + ["s_nop 1"] + \
            [f"v_mfma_f32_16x16x32_bf16 v[{ACC+24*f+4*gt}:{ACC+24*f+4*gt+3}], v[{A}:{A+3}], v[{B[X]+4*gt}:{B[X]+4*gt+3}], v[{ACC+24*f+4*gt}:{ACC+24*f+4*gt+3}]" for gt in range(6)]
    def mix(rd, cp):
        if OPT['rdfirst']:
            for r in rd: e(r)
            for op in cp: e(op)
            return
        i = 0
        for j, op in enumerate(cp):
            if i < len(rd) and j % 2 == 0:
                e(rd[i]); i += 1
            e(op)
        assert i == len(rd)
    if DIAG:
        e("s_mov_b32 s84, 0\ns_mov_b32 s85, 0")
    A1 = 164
    def mfl(f, Ar, X):
        return [f"v_mfma_f32_16x16x32_bf16 v[{ACC+24*f+4*gt}:{ACC+24*f+4*gt+3}], v[{Ar}:{Ar+3}], v[{B[X]+4*gt}:{B[X]+4*gt+3}], v[{ACC+24*f+4*gt}:{ACC+24*f+4*gt+3}]" for gt in range(6)]
    if OPT['bal']:
        for i in range(4):
            e(f"v_mov_b32 v{A1+i}, 0")
    def unit(X, tag):
        e("s_barrier")
        tmr(80)
        e("""v_add_u32 v12, s30, v5
        v_add_u32 v13, s30, v6
        v_add_u32 v16, s30, v10
        v_add_u32 v17, s30, v11""")
        if OPT['bal']:
            rd = rlist(X)
            m = mfl(1, A1, 1 - X)
            i = 0
            for j, r in enumerate(rd):
                e(r)
                if j >= 5 and j % 2 == 1 and i < 6:
                    e(m[i]); i += 1
            assert i == 6
            if OPT['mv']:
                e("s_waitcnt lgkmcnt(12)")
                for op in dequant_ops(RAW0, ZD[X], NZ, SC, P, A)[:OPT['mv']]:
                    e(op)
        else:
            cp = comp(1, 1 - X)
            if REGZS:
                zr = [f"ds_read_b128 v[{NZ+4*i}:{NZ+4*i+3}], v9 offset:{16*i}" for i in range(4)]
                cp = cp[:40] + zr + cp[40:]
            mix(rlist(X), cp)
        e(f"""v_add_u32 v4, 1024, v4
        v_add_u32 v9, 1024, v9
        s_add_u32 s30, s30, {2*T_STAGE}
        s_cmp_ge_u32 s30, {T_S*T_STAGE}
        s_cselect_b32 s51, {T_S*T_STAGE}, 0
        s_sub_u32 s30, s30, s51
        s_waitcnt lgkmcnt(0)""")
        tmr(82)
        if DIAG:
            e("s_sub_u32 s82, s82, s80\ns_add_u32 s84, s84, s82")
        e("s_barrier")
        tmr(80)
        if OPT['touch']:
            e("s_add_u32 s25, s25, 2")
            tcheck(e, L + tag)
        if OPT['bal']:
            for op in dequant_ops(RAW0, ZD[X], NZ, SC, P, A)[OPT['mv']:]:
                e(op)
            d1 = dequant_ops(RAW1[X], ZD[X], NZ, SC, P, A1)
            m = mfl(0, A, X)
            e(d1[0]); e(d1[1])
            k = 2
            for gt in range(6):
                e(m[gt])
                for op in d1[k:k+7]:
                    e(op)
                k += 7
        else:
            for op in comp(0, X):
                e(op)
        tmr(82)
        if DIAG:
            e("s_sub_u32 s82, s82, s80\ns_add_u32 s85, s85, s82")
    e.label(f"{L}_loop")
    unit(0, "la")
    unit(1, "lb")
    e(f"""s_sub_u32 s31, s31, 1
    s_cmp_lg_u32 s31, 0
    s_cbranch_scc1 {L}_loop""")
    if par == 0:
        e("s_barrier")
    if OPT['bal']:
        e("s_nop 1")
        for op in mfl(1, A1, 1):
            e(op)
    else:
        for op in comp(1, 1):
            e(op)
    stamp(e, 2)
    e(f"""s_mul_i32 s51, s56, 49152
    s_mul_i32 s52, s57, 12288
    s_add_u32 s51, s51, s52
    s_add_u32 s51, s51, {24576*par}
    v_lshlrev_b32 v15, 4, v0
    v_add_u32 v14, s51, v15
    s_mul_i32 s51, s56, 49152
    v_add_u32 v13, s51, v15
    s_nop 7""")
    for kh_ in range(2):
        j = kh_ + 2 * par
        if kh_ == 0:
            e(f"""s_cmp_eq_u32 s57, 1
            s_cbranch_scc1 {L}_ep1""")
        else:
            e.label(f"{L}_ep1")
        for f in range(2):
            for gt in range(6):
                if gt // 2 != j:
                    e(f"ds_write_b128 v14, v[{ACC+24*f+4*gt}:{ACC+24*f+4*gt+3}] offset:{(f*6+gt)*1024}")
        if j < 3:
            e(f"""s_lshl_b32 s51, s6, 1
            s_add_u32 s51, s51, s56
            s_mul_i32 s54, s7, 120
            s_add_u32 s54, s54, s51
            s_add_u32 s54, s54, {40*j}
            s_lshl_b32 s54, s54, 10
            s_add_u32 s54, s54, {T_WS}
            s_add_u32 s55, s54, 20480""")
        e("s_waitcnt lgkmcnt(0)")
        e("s_barrier")
        if j < 3:
            srcs = [x for x in range(4) if x != j]
            n = 0
            for g2 in range(2):
                gt = 2 * j + g2
                for f in range(2):
                    for si, x in enumerate(srcs):
                        r = 20 + ((g2 * 2 + f) * 3 + si) * 4
                        e(f"ds_read_b128 v[{r}:{r+3}], v13 offset:{x*12288 + (f*6+gt)*1024}")
            for g2 in range(2):
                gt = 2 * j + g2
                for f in range(2):
                    e(f"s_waitcnt lgkmcnt({12 - 3*(g2*2+f+1)})")
                    d = ACC + 24 * f + 4 * gt
                    for si in range(3):
                        r = 20 + ((g2 * 2 + f) * 3 + si) * 4
                        for i in range(4):
                            e(f"v_add_f32 v{d+i}, v{d+i}, v{r+i}")
                    e(f"v_cvt_pk_bf16_f32 v{72+4*g2+2*f}, v{d}, v{d+1}")
                    e(f"v_cvt_pk_bf16_f32 v{73+4*g2+2*f}, v{d+2}, v{d+3}")
                e(f"buffer_store_dwordx4 v[{72+4*g2}:{75+4*g2}], v15, s[16:19], s{54+g2} offen")
        if kh_ == 0:
            stamp_flush(e, 4, 0)
            e("s_endpgm")
    stamp_flush(e, 4, 0)
    e("s_endpgm")

def x_loader(e):
    e("""s_sub_u32 s50, s3, 8
    v_and_b32 v60, 15, v0
    v_lshrrev_b32 v61, 4, v0
    s_mov_b32 s52, 1280""")
    for i in range(4):
        e(f"""v_add_u32 v62, {4*i}, v61
        v_mul_lo_u32 v63, v62, s52
        v_or_b32 v62, {((i>>1)&1)<<2}, v61
        v_lshlrev_b32 v62, 1, v62
        v_xor_b32 v62, v60, v62
        v_lshl_add_u32 v{1+i}, v62, 4, v63""")
        if i:
            e(f"v_subrev_u32 v{1+i}, {1024*i}, v{1+i}")
    e(f"""s_mul_i32 s28, s50, 20480
    s_lshl_b32 s51, s6, 8
    s_add_u32 s28, s28, s51
    s_lshl_b32 s53, s50, 12
    s_add_u32 s53, s53, {X_U}""")
    for i in range(4):
        e(f"""v_lshrrev_b32 v62, 3, v0
        v_add_u32 v62, {8*i}, v62
        v_mul_lo_u32 v63, v62, s52
        v_add_u32 v62, {4*i}, v61
        v_and_b32 v62, 7, v62
        v_and_b32 v64, 7, v0
        v_xor_b32 v62, v64, v62
        v_lshl_add_u32 v{5+i}, v62, 4, v63""")
        if i:
            e(f"v_subrev_u32 v{5+i}, {1024*i}, v{5+i}")
    e(f"""s_lshl_b32 s27, s7, 7
    s_lshl_b32 s51, s50, 5
    s_add_u32 s27, s27, s51
    s_mul_i32 s27, s27, 1280
    s_lshl_b32 s54, s50, 12
    s_add_u32 s54, s54, {X_X}
    s_waitcnt lgkmcnt(0)""")
    srd(e, 8, 40, 819200)
    srd(e, 12, 32, 2621440)
    if DIAG:
        srd(e, 16, 48, WS_BYTES)
    def issue():
        e("s_add_u32 m0, s29, s53")
        e("s_nop 0")
        for i in range(4):
            off = f" offset:{1024*i}" if i else ""
            e(f"buffer_load_dwordx4 v{1+i}, s[8:11], s28 offen{off} lds")
        e("s_add_u32 m0, s29, s54")
        e(f"s_add_u32 s28, s28, {64*1280}")
        for i in range(4):
            off = f" offset:{1024*i}" if i else ""
            e(f"buffer_load_dwordx4 v{5+i}, s[12:15], s27 offen{off} lds")
        e("s_add_u32 s27, s27, 128")
    loader_loop(e, "XL", X_NST, X_S, X_STAGE, 8, issue, lead=OPT["xlead"])

def x_consumer(e):
    L = "XC"
    if OPT['xtouch']:
        for rnd in range(2):
            e(f"""s_lshl_b32 s51, s5, 3
            s_add_u32 s51, s51, s3
            s_add_u32 s51, s51, {14*OPT['xfirst'] + 80*rnd}
            s_cmp_ge_u32 s51, 140
            s_cbranch_scc1 {L}_td{rnd}
            s_mul_i32 s52, s51, 147
            s_lshr_b32 s52, s52, 11         ; stage = p/14
            s_mul_i32 s53, s52, 14
            s_sub_u32 s51, s51, s53         ; u
            s_cmp_ge_u32 s51, 4
            s_cbranch_scc1 {L}_tu{rnd}
            s_lshl_b32 s51, s51, 6
            v_add_u32 v62, s51, v0          ; row
            s_mov_b32 s53, 1280
            v_mul_lo_u32 v62, v62, s53
            s_mul_i32 s53, s4, {256*1280}
            s_lshl_b32 s52, s52, 7
            s_add_u32 s53, s53, s52
            buffer_load_dword v{1+rnd}, v62, s[12:15], s53 offen
            s_branch {L}_td{rnd}""")
            e.label(f"{L}_tu{rnd}")
            e(f"""s_sub_u32 s51, s51, 4
            s_lshl_b32 s51, s51, 13
            v_lshlrev_b32 v62, 7, v0
            s_mul_i32 s52, s52, {64*1280}
            s_add_u32 s53, s51, s52
            buffer_load_dword v{1+rnd}, v62, s[8:11], s53 offen""")
            e.label(f"{L}_td{rnd}")
    e("""v_and_b32 v60, 15, v0          ; c
    v_lshrrev_b32 v61, 4, v0        ; q
    s_and_b32 s56, s3, 1
    s_lshr_b32 s57, s3, 1
    v_lshrrev_b32 v62, 2, v60        ; r
    v_and_b32 v63, 1, v61
    v_lshl_add_u32 v63, v63, 2, v62  ; g
    v_lshl_add_u32 v62, v61, 3, v62  ; 8q+r
    v_lshlrev_b32 v62, 8, v62
    v_and_b32 v64, 3, v60
    v_lshl_add_u32 v62, v64, 3, v62
    s_lshl_b32 s51, s56, 2""")
    for a in range(4):
        e(f"""s_add_u32 s58, s51, {a}
        v_xor_b32 v64, s58, v63
        v_lshl_add_u32 v{5+a}, v64, 5, v62""")
        if X_U:
            e(f"v_add_u32 v{5+a}, {X_U}, v{5+a}")
    e(f"""v_lshrrev_b32 v62, 1, v60
    v_xor_b32 v62, v62, v61
    v_lshlrev_b32 v62, 4, v62
    v_lshl_add_u32 v62, v60, 7, v62
    s_lshl_b32 s51, s57, 12
    s_add_u32 s51, s51, {X_X}
    v_add_u32 v9, s51, v62
    v_xor_b32 v10, 64, v9""")
    for i in range(32):
        e(f"v_mov_b32 v{96+i}, 0")
    e("s_mov_b32 s30, 0")
    e(f"s_mov_b32 s31, {X_NST}")
    stamp(e, 1)
    if OPT['tlb']:
        e(f"""s_mul_i32 s51, s7, {160*1024}
        s_add_u32 s51, s51, {XR_WS}
        v_mov_b32 v62, 0
        buffer_load_dword v1, v62, s[16:19], s51 offen""")
    e("s_mov_b32 s24, s5")
    e("s_mov_b32 s25, 0")
    def xtouch(tagL):
        L = tagL
        if OPT['touch'] and OPT['tmode'] == 1:
            for r in range(OPT['xrate']):
                e(f"""s_and_b32 s51, s25, 7
                s_cmp_lg_u32 s51, s3
                s_cbranch_scc1 {L}_nt{r}
                s_mul_i32 s26, s24, {magic(OPT['xu'], 400)[0]}
                s_lshr_b32 s26, s26, {magic(OPT['xu'], 400)[1]}
                s_mul_i32 s51, s26, {OPT['xu']}
                s_sub_u32 s51, s24, s51
                s_add_u32 s51, s51, {OPT['tu']}
                s_add_u32 s26, s26, {OPT['p0'] or 4}
                s_cmp_ge_u32 s26, 24
                s_cbranch_scc1 {L}_nt{r}""")
                touch_setup(e, L + f"x{r}", 3, 20)
                e("buffer_load_dword v2, v3, s[52:55], s27 offen")
                e.label(f"{L}_nt{r}")
                e("""s_add_u32 s24, s24, 10
                s_add_u32 s25, s25, 1""")

    def xslot():
        for a in range(6):
            e(f"v_add_u32 v{11+a}, s30, v{5+a}")
        e(f"""s_add_u32 s30, s30, {X_STAGE}
        s_cmp_ge_u32 s30, {X_S*X_STAGE}
        s_cselect_b32 s30, 0, s30""")
    def xrl(kh):
        base = 32 + 32 * kh
        l = []
        for mt in range(2):
            l.append(f"ds_read_b128 v[{base+16+4*mt}:{base+19+4*mt}], v{15+kh} offset:{2048*mt}")
        for a in range(4):
            l.append(f"ds_read_b64_tr_b16 v[{base+4*a}:{base+4*a+1}], v{11+a} offset:{8192*kh}")
            l.append(f"ds_read_b64_tr_b16 v[{base+4*a+2}:{base+4*a+3}], v{11+a} offset:{8192*kh+1024}")
        return l
    def xblock(kh, rl):
        base = 32 + 32 * kh
        i = 0
        n = 0
        for a in range(4):
            for mt in range(2):
                d = 96 + 8 * a + 4 * mt
                e(f"v_mfma_f32_16x16x32_bf16 v[{d}:{d+3}], v[{base+4*a}:{base+4*a+3}], v[{base+16+4*mt}:{base+19+4*mt}], v[{d}:{d+3}]")
                for _ in range(2 if n < 2 else 1):
                    if i < len(rl):
                        e(rl[i]); i += 1
                n += 1
        assert i == len(rl)
    if OPT['xpipe']:
        e("s_barrier")
        xtouch("XCa")
        xslot()
        for r in xrl(0):
            e(r)
        e(f"s_mov_b32 s31, {X_NST-1}")
        e.label(f"{L}_loop")
        e("s_waitcnt lgkmcnt(0)")
        xblock(0, xrl(1))
        e("s_waitcnt lgkmcnt(0)")
        e("s_barrier")
        xtouch("XCb")
        xslot()
        xblock(1, xrl(0))
        e(f"""s_sub_u32 s31, s31, 1
        s_cmp_lg_u32 s31, 0
        s_cbranch_scc1 {L}_loop""")
        e("s_waitcnt lgkmcnt(0)")
        xblock(0, xrl(1))
        e("s_waitcnt lgkmcnt(0)")
        xblock(1, [])
    else:
        e.label(f"{L}_loop")
        e("s_barrier")
        xtouch("XCa")
        xslot()
        for kh in range(2):
            for r in xrl(kh):
                e(r)
        for kh in range(2):
            e(f"s_waitcnt lgkmcnt({10 if kh == 0 else 0})")
            xblock(kh, [])
        e(f"""s_sub_u32 s31, s31, 1
        s_cmp_lg_u32 s31, 0
        s_cbranch_scc1 {L}_loop""")
    stamp(e, 2)
    e(f"""s_lshl_b32 s51, s7, 3
    s_lshl_b32 s52, s57, 1
    s_add_u32 s51, s51, s52
    s_mul_i32 s51, s51, 20
    s_lshl_b32 s52, s6, 2
    s_add_u32 s51, s51, s52
    s_lshl_b32 s52, s56, 1
    s_add_u32 s51, s51, s52
    s_lshl_b32 s54, s51, 10
    s_add_u32 s54, s54, {XR_WS}
    s_add_u32 s55, s54, 20480
    v_lshlrev_b32 v62, 4, v0
    s_nop 7""")
    for mt in range(2):
        for kb in range(2):
            P = 32 + 8 * mt + 4 * kb
            d0 = 96 + 8 * (2 * kb) + 4 * mt
            d1 = 96 + 8 * (2 * kb + 1) + 4 * mt
            e(f"""v_cvt_pk_bf16_f32 v{P}, v{d0}, v{d0+1}
            v_cvt_pk_bf16_f32 v{P+1}, v{d0+2}, v{d0+3}
            v_cvt_pk_bf16_f32 v{P+2}, v{d1}, v{d1+1}
            v_cvt_pk_bf16_f32 v{P+3}, v{d1+2}, v{d1+3}""")
            so = "s54" if mt == 0 else "s55"
            off = f" offset:{1024*kb}" if kb else ""
            e(f"buffer_store_dwordx4 v[{P}:{P+3}], v62, s[16:19], {so} offen{off}")
    stamp_flush(e, 4, 0)
    e("s_endpgm")

def t_ids(e):
    e("""s_mul_i32 s7, s5, 52
    s_lshr_b32 s7, s7, 8          ; i/5
    s_mul_i32 s51, s7, 5
    s_sub_u32 s6, s5, s51         ; i%5
    s_and_b32 s51, s4, 1
    s_mul_i32 s51, s51, 5
    s_add_u32 s6, s6, s51
    s_lshr_b32 s51, s4, 1
    s_lshl_b32 s51, s51, 2
    s_add_u32 s7, s7, s51""")

def x_ids(e):
    e("""s_sub_u32 s5, s5, 20
    s_cmp_ge_u32 s5, 5
    s_cselect_b32 s51, 1, 0
    s_mul_i32 s52, s51, 5
    s_sub_u32 s6, s5, s52
    s_lshl_b32 s7, s4, 1
    s_add_u32 s7, s7, s51""")

def p1_kernel(e):
    e.raw(".p2align 8")
    e.raw(".type p1_kernel,@function")
    e.label("p1_kernel")
    e(f"""s_cmp_ge_u32 s2, {256 if OPT['touch'] and OPT['tmode'] == 1 else 240}
    s_cbranch_scc1 P1_end""")
    stamp(e, 0)
    e("""s_load_dwordx16 s[32:47], s[0:1], 0
    s_load_dwordx2 s[48:49], s[0:1], 64
    v_lshrrev_b32 v1, 6, v0
    v_and_b32 v0, 63, v0
    s_and_b32 s4, s2, 7
    s_lshr_b32 s5, s2, 3
    v_readfirstlane_b32 s3, v1
    s_nop 3
    s_cmp_lt_u32 s3, 8
    s_cbranch_scc1 P1_cons
    s_cmp_ge_u32 s5, 30
    s_cbranch_scc1 P1_end
    s_cmp_ge_u32 s5, 20
    s_cbranch_scc1 P1_xl""")
    t_ids(e)
    t_loader(e)
    e.label("P1_xl")
    x_ids(e)
    x_loader(e)
    e.label("P1_cons")
    e("s_waitcnt lgkmcnt(0)")
    srd(e, 16, 48, WS_BYTES)
    P0 = OPT['p0']
    if OPT['touch'] and OPT['tmode'] == 1 and P0:
        R = OPT['p0r']
        nw = (P0 - OPT['p0lo']) // 2 // R
        e(f"""s_cmp_lt_u32 s3, 4
        s_cbranch_scc1 P0_done
        s_cmp_ge_u32 s3, {4 + nw}
        s_cbranch_scc1 P0_done""")
        for r in range(R):
            e(f"""s_sub_u32 s51, s3, {4 - nw*r}
            s_lshl_b32 s51, s51, 5
            s_add_u32 s51, s51, s5
            s_lshr_b32 s26, s51, 4
            s_add_u32 s26, s26, {OPT['p0lo']}
            s_and_b32 s51, s51, 15""")
            touch_setup(e, f"P0{r}", 3, 20)
            if r:
                e("s_waitcnt vmcnt(0)")
            e("buffer_load_dword v2, v3, s[52:55], s27 offen")
        e.label("P0_done")
    e("""s_cmp_ge_u32 s5, 30
    s_cbranch_scc1 P1_i
    s_cmp_ge_u32 s5, 20
    s_cbranch_scc1 P1_x""")
    t_ids(e)
    e("""s_cmp_ge_u32 s3, 4
    s_cbranch_scc1 P1_tc1""")
    srd(e, 20, 38, 3072)
    srd(e, 24, 36, 3072)
    t_consumer(e, 0)
    e.label("P1_tc1")
    t_consumer(e, 1)
    e.label("P1_x")
    x_ids(e)
    if OPT['xtouch']:
        srd(e, 8, 40, 819200)
        srd(e, 12, 32, 2621440)
    x_consumer(e)
    e.label("P1_i")
    idle_toucher(e)
    e.label("P1_end")
    e("s_endpgm")

Y_S = 5
Y_STAGE = 28672
Y_NST = 10
P2_LDS = Y_S * Y_STAGE

def p2_kernel(e):
    CUR_K[0] = 1
    e.raw(".p2align 8")
    e.raw(".type p2_kernel,@function")
    e.label("p2_kernel")
    e("""s_cmp_ge_u32 s2, 256
    s_cbranch_scc1 P2_end""")
    stamp(e, 0)
    e("""s_load_dwordx2 s[44:45], s[0:1], 48
    s_load_dwordx2 s[48:49], s[0:1], 64
    v_lshrrev_b32 v1, 6, v0
    v_and_b32 v0, 63, v0
    s_and_b32 s4, s2, 7
    s_lshr_b32 s5, s2, 3
    v_readfirstlane_b32 s3, v1
    v_lshlrev_b32 v1, 4, v0""")
    e("""s_and_b32 s6, s4, 3
    s_lshl_b32 s6, s6, 2
    s_and_b32 s51, s5, 3
    s_add_u32 s6, s6, s51
    s_lshr_b32 s7, s4, 2
    s_lshl_b32 s7, s7, 3
    s_lshr_b32 s51, s5, 2
    s_add_u32 s7, s7, s51
    s_cmp_ge_u32 s3, 4
    s_cbranch_scc0 P2_c""")
    e(f"""s_sub_u32 s50, s3, 4
    s_and_b32 s51, s50, 1
    s_lshr_b32 s52, s50, 1           ; kk
    s_mul_i32 s53, s52, 14336
    s_mul_i32 s55, s51, 3072
    s_add_u32 s54, s53, 6144
    s_add_u32 s53, s53, s55          ; T lds base
    s_lshl_b32 s55, s51, 12
    s_add_u32 s54, s54, s55          ; xr lds base
    s_mul_i32 s55, s51, 3
    s_mul_i32 s56, s7, 6
    s_add_u32 s55, s55, s56
    s_mul_i32 s55, s55, 20
    s_add_u32 s55, s55, s52
    s_lshl_b32 s28, s55, 10
    s_add_u32 s28, s28, {T_WS}
    s_lshl_b32 s55, s51, 2
    s_lshl_b32 s56, s6, 3
    s_add_u32 s55, s55, s56
    s_mul_i32 s55, s55, 20
    s_add_u32 s55, s55, s52
    s_lshl_b32 s27, s55, 10
    s_add_u32 s27, s27, {XR_WS}""")
    for i in range(1, 4):
        e(f"v_add_u32 v{1+i}, {19456*i}, v1")
    e("s_waitcnt lgkmcnt(0)")
    srd(e, 16, 48, WS_BYTES)
    def issue():
        e("s_add_u32 m0, s29, s53")
        e("s_nop 0")
        for i in range(3):
            off = f" offset:{1024*i}" if i else ""
            e(f"buffer_load_dwordx4 v{1+i}, s[16:19], s28 offen{off} lds")
        e("s_add_u32 m0, s29, s54")
        e("s_add_u32 s28, s28, 2048")
        for i in range(4):
            off = f" offset:{1024*i}" if i else ""
            e(f"buffer_load_dwordx4 v{1+i}, s[16:19], s27 offen{off} lds")
        e("s_add_u32 s27, s27, 2048")
    loader_loop(e, "YL", Y_NST, Y_S, Y_STAGE, 7, issue, lead=OPT["ylead"])
    e.label("P2_c")
    ACC = 64
    FB = [8, 112]
    for i in range(48):
        e(f"v_mov_b32 v{ACC+i}, 0")
    e("""s_lshl_b32 s51, s3, 11
    s_add_u32 s51, s51, 6144
    v_add_u32 v2, s51, v1
    s_waitcnt lgkmcnt(0)""")
    srd(e, 16, 48, WS_BYTES)
    srd(e, 8, 44, 6291456)
    e("s_mov_b32 s30, 0")
    if OPT['tlb']:
        e("""s_lshl_b32 s51, s6, 7
        s_lshl_b32 s52, s3, 5
        s_add_u32 s51, s51, s52
        s_mul_i32 s54, s51, 3072
        v_mov_b32 v5, 0
        buffer_load_dword v7, v5, s[8:11], s54 offen""")
    if OPT['ytouch']:
        e("""v_lshrrev_b32 v5, 3, v0
        s_mov_b32 s52, 20480
        v_mul_lo_u32 v5, v5, s52
        v_and_b32 v6, 7, v0
        v_lshl_add_u32 v5, v6, 7, v5""")
        for rnd in range(1):
            e(f"""s_lshl_b32 s51, s3, 5
            s_add_u32 s51, s51, s5
            s_add_u32 s51, s51, {OPT['ylo']}
            s_cmp_ge_u32 s51, {OPT['yhi']}
            s_cbranch_scc1 YT_d{rnd}
            s_mul_i32 s52, s51, 205
            s_lshr_b32 s52, s52, 11          ; kb = p/10
            s_mul_i32 s53, s52, 10
            s_sub_u32 s53, s51, s53          ; grp
            s_lshl_b32 s52, s52, 10
            s_cmp_ge_u32 s53, 4
            s_cbranch_scc1 YT_t{rnd}
            s_and_b32 s54, s4, 3
            s_lshl_b32 s54, s54, 2
            s_add_u32 s54, s54, s53
            s_mul_i32 s54, s54, {8*20480}
            s_add_u32 s54, s54, {XR_WS}
            s_branch YT_l{rnd}""")
            e.label(f"YT_t{rnd}")
            e(f"""s_sub_u32 s53, s53, 4
            s_lshr_b32 s54, s4, 2
            s_mul_i32 s54, s54, 6
            s_add_u32 s54, s54, s53
            s_mul_i32 s54, s54, {8*20480}
            s_add_u32 s54, s54, {T_WS}""")
            e.label(f"YT_l{rnd}")
            e(f"""s_add_u32 s54, s54, s52
            buffer_load_dword v7, v5, s[16:19], s54 offen""")
            e.label(f"YT_d{rnd}")

    def rlist(kk, b):
        l = []
        for mi in range(2):
            l.append(f"ds_read_b128 v[{b+24+4*mi}:{b+27+4*mi}], v4 offset:{kk*14336 + mi*1024}")
        for gt in range(6):
            l.append(f"ds_read_b128 v[{b+4*gt}:{b+4*gt+3}], v3 offset:{kk*14336 + gt*1024}")
        return l

    def block(b, rl):
        i = 0
        for gt in range(6):
            for mi in range(2):
                d = ACC + (gt * 2 + mi) * 4
                e(f"v_mfma_f32_16x16x32_bf16 v[{d}:{d+3}], v[{b+4*gt}:{b+4*gt+3}], v[{b+24+4*mi}:{b+27+4*mi}], v[{d}:{d+3}]")
                if i < len(rl):
                    e(rl[i]); i += 1

    def newslot():
        e(f"""v_add_u32 v3, s30, v1
        v_add_u32 v4, s30, v2
        s_add_u32 s30, s30, {Y_STAGE}
        s_cmp_ge_u32 s30, {Y_S*Y_STAGE}
        s_cselect_b32 s30, 0, s30""")

    e("s_barrier")
    stamp(e, 1)
    newslot()
    for r in rlist(0, FB[0]):
        e(r)
    e(f"s_mov_b32 s31, {Y_NST-1}")
    e.label("P2_loop")
    e("s_waitcnt lgkmcnt(0)")
    block(FB[0], rlist(1, FB[1]))
    e("s_waitcnt lgkmcnt(0)")
    e("s_barrier")
    newslot()
    block(FB[1], rlist(0, FB[0]))
    e("""s_sub_u32 s31, s31, 1
    s_cmp_lg_u32 s31, 0
    s_cbranch_scc1 P2_loop""")
    e("s_waitcnt lgkmcnt(0)")
    block(FB[0], rlist(1, FB[1]))
    e("s_waitcnt lgkmcnt(0)")
    block(FB[1], [])
    stamp(e, 2)
    e("""v_and_b32 v3, 15, v0
    v_lshrrev_b32 v4, 4, v0
    s_mov_b32 s52, 3072
    v_mul_lo_u32 v3, v3, s52
    v_and_b32 v5, 1, v4
    v_lshrrev_b32 v4, 1, v4
    v_lshlrev_b32 v5, 5, v5
    v_lshl_add_u32 v5, v4, 4, v5
    v_add_u32 v3, v3, v5
    s_lshl_b32 s51, s6, 7
    s_lshl_b32 s52, s3, 5
    s_add_u32 s51, s51, s52
    s_mul_i32 s54, s51, 3072
    s_mul_i32 s52, s7, 192
    s_add_u32 s54, s54, s52
    s_add_u32 s55, s54, 49152
    s_nop 7""")
    for mi in range(2):
        for a in range(3):
            P = 8 + (mi * 3 + a) * 4
            dA = ACC + ((2 * a) * 2 + mi) * 4
            dB = ACC + ((2 * a + 1) * 2 + mi) * 4
            e(f"""v_cvt_pk_bf16_f32 v{P}, v{dA}, v{dA+1}
            v_cvt_pk_bf16_f32 v{P+1}, v{dA+2}, v{dA+3}
            v_cvt_pk_bf16_f32 v{P+2}, v{dB}, v{dB+1}
            v_cvt_pk_bf16_f32 v{P+3}, v{dB+2}, v{dB+3}
            s_nop 1
            v_permlane16_swap_b32 v{P}, v{P+2}
            v_permlane16_swap_b32 v{P+1}, v{P+3}""")
            so = "s54" if mi == 0 else "s55"
            off = f" offset:{64*a}" if a else ""
            e("s_nop 1")
            e(f"buffer_store_dwordx4 v[{P}:{P+3}], v3, s[8:11], {so} offen{off}")
    stamp_flush(e, 4, 1)
    e.label("P2_end")
    e("s_endpgm")

def main(out):
    e = E()
    e.raw(HEADER.rstrip('\n'))
    e.raw(f"; @launch kernel=p1_kernel grid=({256 if OPT['touch'] and OPT['tmode'] == 1 else 240},1,1) block=(768,1,1) lds={P1_LDS}")
    e.raw(f"; @launch kernel=p2_kernel grid=(256,1,1) block=(512,1,1) lds={P2_LDS}")
    e.raw("""; y = (x @ U) @ dequant(qw) @ V is evaluated as  xr = bf16(x @ U),  T = bf16(dequant(qw) @ V),  y = bf16(xr @ T)
; Generated by a python script (hand-designed schedule).""")
    e.raw('.amdgcn_target "amdgcn-amd-amdhsa--gfx950"')
    e.raw(".text")
    e.raw(".globl p1_kernel")
    e.raw(".globl p2_kernel")
    p1_kernel(e)
    p2_kernel(e)
    e.raw('.section .rodata,"a"')
    for name, vg, acc in (("p1_kernel", 168, 168), ("p2_kernel", 144, 144)):
        e.raw(".p2align 6")
        e.raw(f""".amdhsa_kernel {name}
  .amdhsa_next_free_vgpr {vg}
  .amdhsa_next_free_sgpr 96
  .amdhsa_accum_offset {acc}
  .amdhsa_group_segment_fixed_size 0
  .amdhsa_kernarg_size 72
  .amdhsa_user_sgpr_count 2
  .amdhsa_user_sgpr_kernarg_segment_ptr 1
  .amdhsa_system_sgpr_workgroup_id_x 1
  .amdhsa_float_denorm_mode_32 3
.end_amdhsa_kernel""")
    open(out, 'w').write(e.text())

if __name__ == '__main__':
    for a in sys.argv[2:]:
        if a == 'diag':
            DIAG = True
        elif '=' in a:
            k, v = a.split('=')
            OPT[k] = int(v)
    main(sys.argv[1] if len(sys.argv) > 1 else 'standalone__weight_only_int_quip__prompt.s')
```
